```python
import torch

def _softmax(x, axis=-1):
    return torch.softmax(x, dim=axis)
def _gelu(x):
    return torch.nn.functional.gelu(x, approximate="tanh")
def _silu(x):
    return torch.nn.functional.silu(x)
def _sigmoid(x):
    return torch.sigmoid(x)
def _layernorm(x, axis=-1, eps=1e-5):
    m = x.mean(dim=axis, keepdim=True)
    v = x.var(dim=axis, keepdim=True, unbiased=False)
    return (x - m) / torch.sqrt(v + eps)
def _scatter_add(tgt, idx, src, axis=0):
    return tgt.clone().index_add_(axis, idx, src)
def _segment_sum(src, seg, n):
    out = torch.zeros((n,) + src.shape[1:], dtype=src.dtype)
    return out.index_add_(0, seg, src)
def _pad(x, pw):
    flat = tuple(v for pair in reversed(pw) for v in pair)
    return torch.nn.functional.pad(x, flat)

kernel_name = 'interleave_layers__linear_kernel_hedgehog__glu_gated_reglu__prompt'

def setup_inputs():

    _w = (lambda a: (lambda t: t.to(torch.bfloat16) if t.is_floating_point() else t)(torch.as_tensor(a)))
    def _A_setup():
        B, S, D, H = 1, 2048, 640, 32
        Dh = D // H
        return {
            "x": _w((lambda *s: torch.randn(*s, dtype=torch.bfloat16) * 0.05)(B, S, D)),
            "wqkv": _w((lambda *s: torch.randn(*s, dtype=torch.bfloat16) * 0.4)(D, 3 * D)),
            "w_phi": _w((lambda *s: torch.randn(*s, dtype=torch.bfloat16) * 0.4)(H, Dh, Dh) * (Dh ** -0.5)),
            "wo": _w((lambda *s: torch.randn(*s, dtype=torch.bfloat16) * 0.05)(D, D)),
        }
    _A_in = _A_setup()

    def _B_setup():
        B, S, D, F = 1, 2048, 640, 1536
        return {
            "x": _w((lambda *s: torch.randn(*s, dtype=torch.bfloat16) * 0.05)(B, S, D)),
            "W_gate": _w((lambda *s: torch.randn(*s, dtype=torch.bfloat16) * 1.6)(D, F) * (2.0 / D) ** 0.5),
            "W_up": _w((lambda *s: torch.randn(*s, dtype=torch.bfloat16) * 1.6)(D, F) * (2.0 / D) ** 0.5),
            "W_down": _w((lambda *s: torch.randn(*s, dtype=torch.bfloat16) * 1.6)(F, D) * (1.0 / F) ** 0.5),
        }
    _B_in = _B_setup()

    return {
        "A_x": _A_in["x"],
        "A_wqkv": _A_in["wqkv"],
        "A_w_phi": _A_in["w_phi"],
        "A_wo": _A_in["wo"],
        "B_x": _B_in["x"],
        "B_W_gate": _B_in["W_gate"],
        "B_W_up": _B_in["W_up"],
        "B_W_down": _B_in["W_down"],
    }

def reference(A_x, A_wqkv, A_w_phi, A_wo, B_x, B_W_gate, B_W_up, B_W_down):
    def _A_ref(x, wqkv, w_phi, wo):
        B, S, D = x.shape
        H = 32; Dh = D // H
        qkv = (lambda x, *d: x.permute(*d))((x @ wqkv).reshape(B, S, 3, H, Dh), 2, 0, 3, 1, 4)
        q, k, v = qkv[0], qkv[1], qkv[2]
        pq = torch.einsum("bhsd,hdf->bhsf", q, w_phi)
        pk = torch.einsum("bhsd,hdf->bhsf", k, w_phi)
        phi_q = torch.concatenate([_softmax(pq, axis=-1), _softmax(-pq, axis=-1)], axis=-1)
        phi_k = torch.concatenate([_softmax(pk, axis=-1), _softmax(-pk, axis=-1)], axis=-1)
        kv = torch.einsum("bhsf,bhsd->bhfd", phi_k, v)
        z  = torch.einsum("bhsf->bhf", phi_k)
        num = torch.einsum("bhqf,bhfd->bhqd", phi_q, kv)
        den = torch.einsum("bhqf,bhf->bhq", phi_q, z)[..., None] + 1e-6
        o = num / den
        return (lambda x, *d: x.permute(*d))(o, 0, 2, 1, 3).reshape(B, S, D) @ wo

    def _B_ref(x, W_gate, W_up, W_down):
        gate = torch.einsum("bsd,df->bsf", x, W_gate)
        up = torch.einsum("bsd,df->bsf", x, W_up)
        gate = gate * (lambda x, dt: x.to(dt))(gate > 0, gate.dtype)
        h = gate * up
        return torch.einsum("bsf,fd->bsd", h, W_down)

    x = A_x
    x = x + _A_ref(_layernorm(x, axis=-1), A_wqkv, A_w_phi, A_wo)
    x = x + _B_ref(_layernorm(x, axis=-1), B_W_gate, B_W_up, B_W_down)
    x = x + _A_ref(_layernorm(x, axis=-1), A_wqkv, A_w_phi, A_wo)
    x = x + _B_ref(_layernorm(x, axis=-1), B_W_gate, B_W_up, B_W_down)
    return x
```

```python
import re

class R:
    __slots__ = ('f', 'i', 'n')
    def __init__(s, f, i, n=1):
        s.f, s.i, s.n = f, i, n
        lim = 102 if f == 's' else 256
        assert 0 <= i and i + n <= lim, (f, i, n)
    def __str__(s):
        return f'{s.f}{s.i}' if s.n == 1 else f'{s.f}[{s.i}:{s.i+s.n-1}]'
    __repr__ = __str__
    def __getitem__(s, k):
        if isinstance(k, slice):
            a = k.start or 0; b = s.n if k.stop is None else k.stop
            assert 0 <= a < b <= s.n, (s, k)
            return R(s.f, s.i + a, b - a)
        assert 0 <= k < s.n, (s, k)
        return R(s.f, s.i + k, 1)
    def regs(s):
        return {(s.f, s.i + k) for k in range(s.n)}
def v(i, n=1): return R('v', i, n)
def a(i, n=1): return R('a', i, n)
def s(i, n=1): return R('s', i, n)

class Neg:
    def __init__(s, r): s.r = r
    def __str__(s): return f'-{s.r}'
class Abs:
    def __init__(s, r): s.r = r
    def __str__(s): return f'abs({s.r})'

SPECIAL = {'vcc': {('x', 'vcc')}, 'exec': {('x', 'exec')}, 'm0': {('x', 'm0')}, 'vcc_lo': {('x', 'vcc')}, 'vcc_hi': {('x','vcc')},
           'exec_lo': {('x', 'exec')}, 'exec_hi': {('x', 'exec')}}
def regs_of(o):
    if isinstance(o, R): return o.regs()
    if isinstance(o, (Neg, Abs)): return regs_of(o.r)
    if isinstance(o, str) and o in SPECIAL: return set(SPECIAL[o])
    return set()

TRANS = ('v_exp_f32', 'v_log_f32', 'v_rcp_f32', 'v_rsq_f32', 'v_sqrt_f32', 'v_sin_f32', 'v_cos_f32', 'v_rcp_iflag_f32')

class Ins:
    __slots__ = ('op', 'ops', 'mods', 'kind', 'rd', 'wr', 'passes', 'srcc', 'cmt', 'tag')
    def __init__(s, op, ops, mods='', cmt=''):
        s.op, s.ops, s.mods, s.cmt = op, list(ops), mods, cmt
        s.passes = 0; s.srcc = set(); s.tag = None
        s.classify()
    def classify(s):
        op, o = s.op, s.ops
        rd, wr = set(), set()
        def R_(xs):
            for x in xs: rd.update(regs_of(x))
        def W_(xs):
            for x in xs: wr.update(regs_of(x))
        if op.startswith('v_mfma'):
            s.kind = 'mfma'; W_(o[:1]); R_(o[1:]); s.srcc = regs_of(o[3])
            s.passes = 8 if '32x32x16' in op else 4 if '16x16x32' in op else None
            assert s.passes
        elif op.startswith('v_cmp'):
            s.kind = 'valu'; W_(o[:1]); R_(o[1:])
            if op.startswith('v_cmpx'): wr.add(('x', 'exec'))
        elif op.startswith('v_permlane') and 'swap' in op:
            s.kind = 'valu'; W_(o[:2]); R_(o[:2])
        elif op in ('v_readfirstlane_b32', 'v_readlane_b32'):
            s.kind = 'valu'; W_(o[:1]); R_(o[1:])
        elif op.startswith(('v_add_co', 'v_sub_co', 'v_addc_co', 'v_subb_co')):
            s.kind = 'valu'; W_(o[:2]); R_(o[2:])
        elif op.startswith('v_'):
            s.kind = 'valu'; W_(o[:1]); R_(o[1:])
            if op.startswith(('v_fmac', 'v_dot2c', 'v_pk_fmac', 'v_writelane')) or 'sdwa' in op or 'dpp' in op or 'row_' in s.mods or 'quad_perm' in s.mods: R_(o[:1])
            if op.startswith('v_cndmask') and len(o) == 3: rd.add(('x', 'vcc'))
        elif op.startswith(('buffer_load', 'global_load')):
            s.kind = 'vmem'
            if 'lds' in s.mods.split() or '_lds_' in op:
                R_(o); rd.add(('x', 'm0'))
            else:
                W_(o[:1]); R_(o[1:])
                if 'd16' in op: R_(o[:1])
        elif op.startswith(('buffer_store', 'global_store', 'buffer_atomic', 'global_atomic')):
            s.kind = 'vmem'; R_(o)
        elif op in ('buffer_wbl2', 'buffer_inv'):
            s.kind = 'vmem'
        elif op.startswith('ds_read') or op.startswith('ds_bpermute') or op.startswith('ds_swizzle'):
            s.kind = 'ds'; W_(o[:1]); R_(o[1:])
            if 'd16' in op: R_(o[:1])
        elif op.startswith('ds_write'):
            s.kind = 'ds'; R_(o)
        elif op.startswith(('s_load', 's_memtime', 's_memrealtime')):
            s.kind = 'smem'; W_(o[:1]); R_(o[1:])
        elif op.startswith(('s_cmp', 's_bitcmp')):
            s.kind = 'salu'; R_(o); wr.add(('x', 'scc'))
        elif op.startswith(('s_cbranch', 's_branch')):
            s.kind = 'branch'
        elif op in ('s_nop', 's_waitcnt', 's_barrier', 's_endpgm', 's_setprio', 's_sleep'):
            s.kind = 'misc'
        elif op.startswith('s_'):
            s.kind = 'salu'; W_(o[:1]); R_(o[1:])
            if 'saveexec' in op: wr.add(('x', 'exec')); rd.add(('x', 'exec'))
            if op in ('s_addk_i32', 's_mulk_i32'): R_(o[:1])
        else:
            raise ValueError('unknown op ' + op)
        s.rd, s.wr = rd, wr
    def text(s):
        t = s.op
        if s.ops: t += ' ' + ', '.join(fmt(x) for x in s.ops)
        if s.mods: t += ' ' + s.mods
        if s.cmt: t += '  ; ' + s.cmt
        return '\t' + t
def fmt(x):
    if isinstance(x, int):
        return str(x) if -16 <= x <= 64 else hex(x & 0xffffffff)
    if isinstance(x, float):
        return repr(x)
    return str(x)

class Label:
    def __init__(s, name): s.name = name
    def text(s): return s.name + ':'
class Raw:
    def __init__(s, t): s.t = t
    def text(s): return s.t

def vregs(x): return {r for r in x if r[0] in 'va'}
def sregs(x): return {r for r in x if r[0] == 's' or r == ('x', 'vcc')}

def need_states(p, c):
    n = 0
    pk, ck = p.kind, c.kind
    if pk == 'valu':
        pv = vregs(p.wr); ps = sregs(p.wr)
        if pv:
            if ck == 'mfma' and pv & c.rd: n = max(n, 2)
            if ck == 'valu':
                if c.op.startswith('v_permlane') and pv & c.rd: n = max(n, 2)
                if ('dpp' in c.op or 'row_' in c.mods or 'quad_perm' in c.mods) and pv & c.rd: n = max(n, 2)
                if c.op in ('v_readfirstlane_b32', 'v_readlane_b32') and pv & c.rd: n = max(n, 1)
                if p.op.startswith(TRANS) and pv & (c.rd) : n = max(n, 1)
                if ('sdwa' in p.op or 'op_sel' in p.mods) and pv & (c.rd | c.wr): n = max(n, 1)
        if ps:
            if ck == 'vmem' and ps & c.rd: n = max(n, 5)
            if ck == 'valu' and ps & c.rd:
                n = max(n, 4 if c.op in ('v_readlane_b32', 'v_writelane_b32') else 2)
            if ck == 'salu' and ps & c.rd: n = max(n, 1)
        if ('x', 'exec') in p.wr:
            if ck == 'mfma': n = max(n, 4)
            if ck == 'valu': n = max(n, 5)
    if pk == 'valu' and p.op.startswith('v_dot'):
        pv = vregs(p.wr)
        if c.op == p.op:
            if pv & (regs_of(c.ops[1]) | regs_of(c.ops[2])): n = max(n, 3)
        elif pv & (c.rd | c.wr): n = max(n, 3)
    if pk == 'salu':
        if ('x', 'm0') in p.wr and ('x', 'm0') in c.rd and ck in ('vmem', 'ds'): n = max(n, 1)
    if pk == 'mfma':
        D = p.wr
        big = {8: 12, 4: 8}[p.passes]
        if ck == 'mfma':
            ab = regs_of(c.ops[1]) | regs_of(c.ops[2])
            if D & ab: n = max(n, big)
            if D & c.srcc:
                same = (str(c.ops[3]) == str(p.ops[0]) and c.passes == p.passes)
                if not same: n = max(n, {8: 10, 4: 6}[p.passes])
            elif D & c.wr:
                n = max(n, big)
        elif ck in ('valu', 'vmem', 'ds'):
            if D & (c.rd | c.wr): n = max(n, big)
            if ck == 'valu' and p.srcc & c.wr: n = max(n, {8: 7, 4: 3}[p.passes])
    if pk in ('vmem',) and ('store' in p.op or 'atomic' in p.op) and ('x3' in p.op or 'x4' in p.op):
        data = regs_of(p.ops[0]) if p.op.startswith('buffer') else regs_of(p.ops[1])
        if data & c.wr: n = max(n, 2 if ck in ('valu', 'mfma') else 1)
    return n

class Asm:
    def __init__(s):
        s.items = []
        s.vm = []
        s.lg = []
        s.nid = 0
        s.uid = 0
    def I(s, op, *ops, mods='', cmt=''):
        ins = Ins(op, ops, mods, cmt)
        s.items.append(ins)
        if ins.kind == 'vmem':
            s.nid += 1; ins.tag = s.nid; s.vm.append(s.nid); return s.nid
        if ins.kind == 'ds':
            s.nid += 1; ins.tag = s.nid; s.lg.append(s.nid); return s.nid
        if ins.kind == 'smem':
            s.lg.append('smem')
        return None
    def __getattr__(s, op):
        if op.startswith(('v_', 's_', 'ds_', 'buffer_', 'global_')):
            return lambda *ops, **kw: s.I(op, *ops, **kw)
        raise AttributeError(op)
    def label(s, name): s.items.append(Label(name))
    def newlabel(s, base='L'):
        s.uid += 1; return f'{base}_{s.uid}'
    def raw(s, t): s.items.append(Raw(t))
    def cmt(s, t): s.items.append(Raw('\t; ' + t))
    def wait_vm(s, tag=None):
        if tag is None:
            if s.vm: s.I('s_waitcnt', 'vmcnt(0)')
            s.vm = []; return
        if tag not in s.vm: return
        k = s.vm.index(tag); n = len(s.vm) - 1 - k
        n = min(n, 63)
        s.I('s_waitcnt', f'vmcnt({n})')
        s.vm = s.vm[len(s.vm) - n:] if n else []
    def wait_lg(s, tag=None):
        if tag is None or 'smem' in s.lg:
            if s.lg: s.I('s_waitcnt', 'lgkmcnt(0)')
            s.lg = []; return
        if tag not in s.lg: return
        k = s.lg.index(tag); n = len(s.lg) - 1 - k
        n = min(n, 15)
        s.I('s_waitcnt', f'lgkmcnt({n})')
        s.lg = s.lg[len(s.lg) - n:] if n else []
    def force_wait_all(s):
        s.I('s_waitcnt', 'vmcnt(0) lgkmcnt(0)'); s.vm = []; s.lg = []
    def vm_done(s, tag): return tag not in s.vm
    def finalize(s, window=24):
        out = []; hist = []
        nins = 0
        for it in s.items:
            if not isinstance(it, Ins):
                out.append(it); continue
            need = 0; dist = 0
            for p in reversed(hist):
                req = need_states(p, it)
                if req > dist: need = max(need, req - dist)
                dist += (int(p.ops[0]) + 1) if p.op == 's_nop' else 1
                if dist >= window: break
            while need > 0:
                k = min(need, 16)
                nop = Ins('s_nop', [k - 1]); out.append(nop); hist.append(nop); need -= k; nins += 1
            out.append(it); hist.append(it)
            if len(hist) > 64: hist = hist[-40:]
        s.items = out
        return nins
    def text(s):
        return '\n'.join(it.text() for it in s.items) + '\n'
    def count(s):
        from collections import Counter
        return Counter(it.kind for it in s.items if isinstance(it, Ins))

def kernel_text(name, asm, vgpr, accum, sgpr=102):
    return (f'.text\n.globl {name}\n.p2align 8\n.type {name},@function\n{name}:\n' + asm.text())
def descriptor(name, vgpr, accum, sgpr=102):
    return (f'.section .rodata,"a"\n.p2align 6\n.amdhsa_kernel {name}\n  .amdhsa_next_free_vgpr {vgpr}\n  .amdhsa_next_free_sgpr {sgpr}\n'
            f'  .amdhsa_accum_offset {accum}\n  .amdhsa_group_segment_fixed_size 0\n  .amdhsa_kernarg_size 88\n  .amdhsa_user_sgpr_count 2\n'
            f'  .amdhsa_user_sgpr_kernarg_segment_ptr 1\n  .amdhsa_system_sgpr_workgroup_id_x 1\n.end_amdhsa_kernel\n')
```

```python
S, D, H, DH, F = 2048, 640, 32, 20, 1536
W1_OFF = 0;                 W1_J = 163840;  W1_SZ = 16 * W1_J
W2_OFF = W1_OFF + W1_SZ;    W2_SZ = 8 * 20 * 5120
W3_OFF = W2_OFF + W2_SZ;    W3_J = 245760;  W3_SZ = 16 * W3_J
W4_OFF = W3_OFF + W3_SZ;    W4_SZ = 8 * 48 * 5120
X_SZ = S * D * 2
XA_OFF = W4_OFF + W4_SZ
XB_OFF = XA_OFF + 2 * X_SZ
O_OFF = XB_OFF + 2 * X_SZ
H_SZ = S * F * 2
H_OFF = O_OFF + 2 * X_SZ
ST_SZ = S * 8 * 2 * 4
STA_OFF = H_OFF + 2 * H_SZ
STB_OFF = STA_OFF + 2 * ST_SZ
KV_SLOT = 3456
KV_SZ = 256 * KV_SLOT
KVP_OFF = STB_OFF + 2 * ST_SZ
FLG_OFF = KVP_OFF + 2 * KV_SZ
FLG_SZ = 2 * 4 * 16 * 256
XID_OFF = FLG_OFF + FLG_SZ
ZERO_SZ = 9 * 4096
DBG_OFF = FLG_OFF + ZERO_SZ
DBG_SZ = 256 * 4 * 256
WS_USED = DBG_OFF + DBG_SZ
OOB = 0x40000000
K_O, K_XB, K_H, K_XA = 0, 1, 2, 3
def flg(layer, kind): return FLG_OFF + (layer * 4 + kind) * 4096
def perm32(m):
    g, h, r = m >> 3, (m >> 2) & 1, m & 3
    return 16 * (g >> 1) + 8 * h + 4 * (g & 1) + r
def kperm_o(kpos):
    jj, pos = divmod(kpos, 40)
    if pos < 32: h, d = pos >> 4, pos & 15
    else: h, d = (pos - 32) >> 2, 16 + (pos & 3)
    return 40 * jj + 20 * h + d
def feat80(ft, row):
    q, r = row >> 2, row & 3
    return 32 * (ft >> 1) + 8 * q + 4 * (ft & 1) + r if ft < 4 else 64 + row
if __name__ == '__main__':
    for k, x in list(globals().items()):
        if isinstance(x, int): print(k, x, hex(x))
```

```python
from asmlib import *
from layout import *
from prepass import srd, sel_frag
from collections import defaultdict

LOG2E = 0x3fb8aa3b
SLOT = 16384
TR = 0
KVB = 6 * SLOT
RD = 6 * SLOT + 4096
MAIN_LDS = 163840
SPIN = 1 << 17

class Cfg:
    diag = False
    reuse = False
    LA1 = 10
    kvld_at = 146

def gen_main(cfg=Cfg):
    A = Asm()
    tail = []
    WS, OUT, XIN = s(8, 4), s(12, 4), s(16, 4)
    b, w, si, sj, sth, sfs, sfast = s(2), s(20), s(21), s(22), s(23), s(24), s(25)
    t_s = [s(26), s(27), s(28), s(29)]
    sW1, sW3, sW2, sW4, sXu, sSTu, sKVw, sKVr, sFl = (s(30 + k) for k in range(9))
    sM0w, sXst, sSTst, sOst, sHst, sFlW1, sFlW2, sxcc, sspin = (s(39 + k) for k in range(9))
    sOld = [s(48 + k) for k in range(4)]; sHld = [s(52 + k) for k in range(4)]
    so, so2 = s(56), s(57)
    PX, POUT, PWS = s(58, 2), s(60, 2), s(62, 2)
    nstamp = [0]
    def stamp():
        if cfg.diag:
            A.wait_lg(); A.s_memtime(s(98, 2)); A.wait_lg(); A.s_mov_b32(s(64 + nstamp[0]), s(98)); nstamp[0] += 1
    tid = v(0); L16, L16b, L16c = v(1), v(2), v(3)
    (vXst0, vXst2, vSTst, vSTld, vOst0, vOst1, vOst2, vHst, vOUT0, vOUT2, vFlA, vFlB, vZ, vKVst0, vKVst1, vKVld,
     vTRw, vTRa, vTRb, vKBw, vKBr0, vKBr1, vRDr, vXid) = (v(4 + k) for k in range(24))
    vRDw = [None, v(28), v(29), v(30)]
    vrs = v(31)
    SEL = v(32, 4)
    RES = v(36, 20)
    RING = [v(56 + 4 * k, 4) for k in range(4)]
    ACC = v(72, 80)
    TB = v(152, 32); PR = v(184, 64); MISC = v(248, 8)
    def lds_addr(off):
        return ((L16, L16b, L16c)[off >> 16], off & 0xffff)

    A.s_cmp_ge_u32(b, 256); A.s_cbranch_scc1('M_end')
    A.s_load_dwordx2(PWS, s(0, 2), 80); A.s_load_dwordx2(PX, s(0, 2), 0); A.s_load_dwordx2(POUT, s(0, 2), 64)
    lane, t0, t1, t2, t3, hf, l15, q = (v(152 + k) for k in range(8))
    m, g, h, r = (v(160 + k) for k in range(4))
    A.v_lshrrev_b32(t0, 6, tid); A.v_and_b32(lane, 63, tid); A.v_readfirstlane_b32(w, t0)
    A.v_lshlrev_b32(L16, 4, lane)
    A.s_and_b32(t_s[0], b, 7); A.s_lshr_b32(t_s[1], b, 3); A.s_and_b32(sj, t_s[1], 15); A.s_lshr_b32(t_s[1], t_s[1], 4)
    A.s_lshl_b32(si, t_s[0], 1); A.s_add_u32(si, si, t_s[1])
    A.s_lshr_b32(sth, sj, 3); A.s_and_b32(sfs, sj, 7)
    A.s_lshl_b32(sM0w, w, 12)
    A.s_mul_i32(sW1, sj, W1_J); A.s_add_u32(sW1, sW1, sM0w)
    if W1_OFF: A.s_add_u32(sW1, sW1, W1_OFF)
    A.s_lshl_b32(t_s[0], si, 2); A.s_add_u32(t_s[0], t_s[0], w); A.s_mul_i32(sXu, t_s[0], 40960); A.s_lshl_b32(sSTu, t_s[0], 11)
    A.wait_lg()
    srd(A, WS, PWS, WS_USED)
    if cfg.diag: A.s_memrealtime(s(96, 2))
    stamp()

    def dma_chunk(base, c, slot):
        res = {}
        def mk(k):
            def f():
                if k == 0:
                    A.s_add_u32(so2, base, c * SLOT); A.s_add_u32('m0', sM0w, slot * SLOT)
                res['tag'] = A.buffer_load_dwordx4(L16, WS, so2, mods=f'offen offset:{k*1024} lds')
            return f
        return [mk(k) for k in range(4)], res
    w1tag = {}
    def issue_w1(cs):
        out = []
        for c in cs:
            fl, res = dma_chunk(sW1, c, c); w1tag[c] = res; out += fl
        return out
    XF = [a(4 * k, 4) for k in range(40)]
    def xloads(base_const):
        tags = {}
        def mk(k):
            def f():
                if k % 4 == 0:
                    if k == 0: A.s_add_u32(so, sXu, base_const)
                    else: A.s_add_u32(so, so, 4096)
                tags[k] = A.buffer_load_dwordx4(XF[k], L16, WS, so, mods=f'offen offset:{(k & 3)*1024} sc1')
            return f
        return [mk(k) for k in range(40)], tags
    x0, x0tags = xloads(XA_OFF)
    for c in range(2):
        for f in issue_w1([c]): f()
        for k in range(5 * c, 5 * c + 5): x0[k]()
    for f in issue_w1([2, 3, 4, 5]): f()

    srd(A, OUT, POUT, X_SZ); srd(A, XIN, PX, X_SZ)
    A.v_add_u32(L16b, 0x10000, L16); A.v_add_u32(L16c, 0x20000, L16)
    A.v_lshrrev_b32(hf, 5, lane); A.v_and_b32(l15, 15, lane); A.v_lshrrev_b32(q, 4, lane)
    A.v_and_b32(m, 31, lane); A.v_lshrrev_b32(g, 3, m); A.v_bfe_u32(h, m, 2, 1); A.v_and_b32(r, 3, m)
    A.s_mul_i32(sW3, sj, W3_J); A.s_add_u32(sW3, sW3, sM0w); A.s_add_u32(sW3, sW3, W3_OFF)
    A.s_mul_i32(t_s[0], sfs, 20); A.s_mul_i32(t_s[1], w, 5); A.s_add_u32(t_s[0], t_s[0], t_s[1]); A.s_mul_i32(sW2, t_s[0], 5120); A.s_add_u32(sW2, sW2, W2_OFF)
    A.s_mul_i32(t_s[0], sfs, 48); A.s_mul_i32(t_s[1], w, 12); A.s_add_u32(t_s[0], t_s[0], t_s[1]); A.s_mul_i32(sW4, t_s[0], 5120); A.s_add_u32(sW4, sW4, W4_OFF)
    A.s_mul_i32(sKVr, sj, 16 * KV_SLOT); A.s_mul_i32(t_s[0], si, KV_SLOT); A.s_add_u32(sKVw, sKVr, t_s[0])
    A.s_lshl_b32(sFl, si, 8)
    A.s_lshl_b32(t_s[0], w, 4); A.s_add_u32(t_s[0], t_s[0], sj); A.s_lshl_b32(t_s[0], t_s[0], 2); A.s_add_u32(sFlW1, sFl, t_s[0])
    A.s_lshl_b32(t_s[0], sth, 2); A.s_add_u32(t_s[0], t_s[0], w); A.s_lshl_b32(t_s[0], t_s[0], 3); A.s_add_u32(t_s[0], t_s[0], sfs)
    A.s_lshl_b32(t_s[0], t_s[0], 2); A.s_add_u32(sFlW2, sFl, t_s[0])
    A.s_lshl_b32(t_s[0], si, 2); A.s_lshl_b32(t_s[1], sth, 1); A.s_add_u32(t_s[0], t_s[0], t_s[1]); A.s_lshr_b32(t_s[1], w, 1); A.s_add_u32(t_s[0], t_s[0], t_s[1])
    A.s_mul_i32(sXst, t_s[0], 40960); A.s_mul_i32(t_s[1], sfs, 5120); A.s_add_u32(sXst, sXst, t_s[1])
    A.s_lshl_b32(sSTst, t_s[0], 11); A.s_lshr_b32(t_s[1], sfs, 1); A.s_lshl_b32(t_s[1], t_s[1], 9); A.s_add_u32(sSTst, sSTst, t_s[1])
    A.s_and_b32(t_s[1], sfs, 1); A.s_lshl_b32(t_s[1], t_s[1], 3); A.s_add_u32(sSTst, sSTst, t_s[1])
    A.s_mul_i32(sOst, si, 163840)
    A.s_mul_i32(sHst, si, 393216); A.s_mul_i32(t_s[1], sj, 3072); A.s_add_u32(sHst, sHst, t_s[1])
    for tau in range(4):
        A.s_add_u32(t_s[0], w, tau); A.s_and_b32(t_s[0], t_s[0], 3)
        if tau:
            A.s_mul_i32(t_s[1], t_s[0], 15360); A.s_add_u32(t_s[1], t_s[1], RD + (3 - tau) * 5120); A.v_add_u32(vRDw[tau], t_s[1], L16)
        A.s_lshl_b32(t_s[1], sth, 2); A.s_add_u32(t_s[0], t_s[0], t_s[1])
        A.s_mul_i32(t_s[1], t_s[0], 20480); A.s_add_u32(sOld[tau], t_s[1], sOst); A.s_mul_i32(t_s[1], w, 5120); A.s_add_u32(sOld[tau], sOld[tau], t_s[1])
        A.s_mul_i32(t_s[1], t_s[0], 49152); A.s_mul_i32(t_s[2], si, 393216); A.s_add_u32(sHld[tau], t_s[1], t_s[2]); A.s_mul_i32(t_s[1], w, 12288); A.s_add_u32(sHld[tau], sHld[tau], t_s[1])
    A.s_mul_i32(t_s[1], w, 15360); A.s_add_u32(t_s[1], t_s[1], RD); A.v_add_u32(vRDr, t_s[1], L16)
    A.s_and_b32(t_s[0], w, 1); A.s_lshl_b32(t_s[0], t_s[0], 4); A.v_add_u32(t3, t_s[0], l15)
    A.v_lshrrev_b32(t0, 1, q); A.v_and_b32(t1, 1, q)
    A.v_lshl_add_u32(t2, t1, 5, t3); A.v_lshlrev_b32(t2, 4, t2); A.v_lshl_add_u32(vXst0, t0, 10, t2)
    A.v_lshl_add_u32(t2, t0, 5, t3); A.v_lshlrev_b32(t2, 4, t2); A.v_lshl_add_u32(t2, t1, 3, t2); A.v_add_u32(vXst2, 4096, t2)
    A.v_lshlrev_b32(t2, 4, t3); A.v_lshl_add_u32(vSTst, hf, 2, t2)
    A.v_lshlrev_b32(t2, 4, m); A.v_lshl_add_u32(vSTld, hf, 10, t2)
    A.s_lshl_b32(t_s[0], w, 1); A.v_lshrrev_b32(t0, 4, m); A.v_add_u32(t0, t_s[0], t0)
    A.s_mov_b32(t_s[1], 49152); A.v_mul_lo_u32(t1, t0, t_s[1]); A.v_lshl_add_u32(t1, l15, 4, t1); A.v_lshl_add_u32(vHst, hf, 8, t1)
    A.v_mul_u32_u24(t0, 20480, t0); A.v_lshl_add_u32(t0, l15, 4, t0)
    A.s_mul_i32(t_s[0], sj, 5)
    for dst_, add in ((vOst0, 0), (vOst1, 1)):
        A.v_lshl_add_u32(t1, hf, 1, t_s[0])
        if add: A.v_add_u32(t1, 1, t1)
        A.v_lshl_add_u32(dst_, t1, 8, t0)
    A.s_add_u32(t_s[0], t_s[0], 4); A.s_lshl_b32(t_s[0], t_s[0], 8); A.v_add_u32(t1, t_s[0], t0); A.v_lshl_add_u32(vOst2, hf, 3, t1)
    A.s_lshl_b32(t_s[0], si, 7); A.s_lshl_b32(t_s[1], sth, 6); A.s_add_u32(t_s[0], t_s[0], t_s[1]); A.s_lshl_b32(t_s[1], w, 4); A.s_add_u32(t_s[0], t_s[0], t_s[1])
    A.v_add_u32(t0, t_s[0], l15); A.v_mul_u32_u24(t0, 1280, t0); A.s_mul_i32(t_s[0], sfs, 160); A.v_add_u32(t0, t_s[0], t0)
    A.v_lshl_add_u32(vOUT0, q, 4, t0); A.v_lshl_add_u32(t0, q, 3, t0); A.v_add_u32(vOUT2, 128, t0)
    A.v_bfe_u32(t0, lane, 2, 1); A.s_lshl_b32(t_s[0], sth, 1); A.v_add_u32(t0, t_s[0], t0); A.v_lshlrev_b32(t0, 4, t0)
    A.s_lshl_b32(t_s[0], w, 2); A.v_add3_u32(t0, t0, r, t_s[0]); A.v_lshlrev_b32(vFlA, 2, t0)
    A.s_lshl_b32(t_s[0], w, 4); A.v_add_u32(t0, t_s[0], l15); A.v_lshlrev_b32(vFlB, 2, t0)
    A.v_mov_b32(t3, OOB)
    A.v_cmp_eq_u32('vcc', 0, lane); A.v_cndmask_b32(vZ, t3, lane, 'vcc')
    A.s_and_b32(t_s[0], w, 1); A.s_lshl_b32(t_s[0], t_s[0], 4); A.v_add_u32(t0, t_s[0], l15)
    A.s_lshr_b32(t_s[1], w, 1); A.s_mul_i32(t_s[2], t_s[1], 21); A.v_add_u32(t1, t_s[2], t0); A.v_mul_u32_u24(t1, 80, t1)
    A.v_cmp_gt_u32('vcc', 21, t0); A.v_cndmask_b32(t1, t3, t1, 'vcc')
    A.v_lshl_add_u32(vKVst0, q, 4, t1)
    A.v_lshl_add_u32(t1, q, 3, t1); A.v_add_u32(t1, 64, t1); A.v_cmp_gt_u32('vcc', 2, q); A.v_cndmask_b32(vKVst1, t3, t1, 'vcc')
    A.v_lshlrev_b32(t0, 4, tid); A.v_add_u32(vKBw, KVB, t0); A.v_cmp_gt_u32('vcc', 210, tid); A.v_cndmask_b32(vKVld, t3, t0, 'vcc')
    A.s_lshl_b32(t_s[0], w, 5); A.v_lshl_add_u32(t0, hf, 7, m); A.v_add_u32(t0, t_s[0], t0); A.v_mul_u32_u24(vTRw, 160, t0)
    A.s_lshl_b32(t_s[0], t_s[1], 7); A.v_lshrrev_b32(t0, 2, lane); A.v_add_u32(t0, t_s[0], t0)
    A.v_mul_u32_u24(t0, 160, t0); A.v_lshl_add_u32(vTRa, r, 3, t0)
    A.s_and_b32(t_s[0], w, 1); A.s_lshl_b32(t_s[0], t_s[0], 5); A.s_add_u32(t_s[0], t_s[0], 80); A.v_add_u32(vTRb, t_s[0], vTRa)
    A.v_lshl_add_u32(t0, g, 2, r); A.v_mul_u32_u24(t1, 21, hf); A.v_add_u32(t1, t1, t0); A.v_mul_u32_u24(t1, 80, t1); A.v_add_u32(t1, KVB, t1)
    A.v_mov_b32(t2, KVB + 3360)
    A.v_cmp_eq_u32('vcc', h, hf); A.v_cndmask_b32(vKBr0, t2, t1, 'vcc')
    A.v_add_u32(t1, 1280, t1); A.v_cndmask_b32(t1, t2, t1, 'vcc'); A.v_cmp_gt_u32('vcc', 5, t0); A.v_cndmask_b32(vKBr1, t2, t1, 'vcc')
    A.v_mov_b32(t2, -100 & 0xffffffff); A.v_cmp_eq_u32('vcc', h, hf); A.v_cndmask_b32(t0, t2, t0, 'vcc')
    sel_frag(A, SEL, t0, t1, t2)
    A.s_getreg_b32(sxcc, 'hwreg(HW_REG_XCC_ID, 0, 4)'); A.s_add_u32(sxcc, sxcc, 1)
    A.s_lshl_b32(t_s[0], si, 7); A.s_lshl_b32(t_s[1], sj, 2); A.s_add_u32(t_s[0], t_s[0], t_s[1]); A.s_add_u32(t_s[0], t_s[0], XID_OFF)
    A.v_mov_b32(t0, sxcc)
    A.buffer_store_dword(t0, vZ, WS, t_s[0], mods='offen sc1')
    A.s_mov_b32(sfast, 0)

    def poll(vaddr, sbase, const, need, dst=None):
        dst = dst or MISC[7]
        L = A.newlabel('poll'); Lx = A.newlabel('pollx')
        A.s_add_u32(t_s[3], sbase, const); A.s_mov_b32(sspin, 0)
        A.label(L)
        A.buffer_load_dword(dst, vaddr, WS, t_s[3], mods='offen sc1')
        A.s_add_u32(sspin, sspin, 1); A.s_cmp_gt_u32(sspin, SPIN); A.s_cbranch_scc1(Lx)
        A.I('s_waitcnt', 'vmcnt(0)'); A.vm = []
        A.v_cmp_gt_u32('vcc', need, dst)
        A.s_cbranch_vccnz(L)
        A.label(Lx)
        A.I('s_waitcnt', 'vmcnt(0)')
    def publish(tag, sidx, const, value):
        Ls = A.newlabel('slow'); Lb = A.newlabel('back')
        A.v_mov_b32(MISC[6], value); A.s_add_u32(t_s[3], sidx, const)
        A.wait_vm(tag)
        A.s_cmp_eq_u32(sfast, 0); A.s_cbranch_scc1(Ls)
        A.buffer_store_dword(MISC[6], vZ, WS, t_s[3], mods='offen')
        A.label(Lb)
        def slow():
            A.label(Ls)
            A.I('buffer_wbl2', mods='sc1'); A.I('s_waitcnt', 'vmcnt(0)')
            A.buffer_store_dword(MISC[6], vZ, WS, t_s[3], mods='offen sc1')
            A.s_branch(Lb)
        tail.append(slow)
    def spread(sched, items, start, end=None, per=None):
        n = len(items)
        for k, f in enumerate(items):
            idx = start + (k // per if per else (k * (end - start)) // n)
            sched[idx].append(f)
    def V(op, *ops, **kw): return lambda: A.I(op, *ops, **kw)
    def rstd_stream(ST, mode):
        S_, Q_, S2, Q2 = ST[0], ST[1], ST[2], ST[3]
        o = [V('v_add_f32', S_, ST[0], ST[2]), V('v_add_f32', Q_, ST[1], ST[3]), V('v_add_f32', ST[4], ST[4], ST[6]), V('v_add_f32', ST[5], ST[5], ST[7]),
             V('v_add_f32', S_, S_, ST[4]), V('v_add_f32', Q_, Q_, ST[5]), V('v_mov_b32', S2, S_), V('v_mov_b32', Q2, Q_),
             V('v_permlane32_swap_b32', S_, S2), V('v_permlane32_swap_b32', Q_, Q2), V('v_add_f32', S_, S_, S2), V('v_add_f32', Q_, Q_, Q2),
             V('v_mul_f32', S_, 0x3acccccd, S_), V('v_mul_f32', Q_, 0x3acccccd, Q_), V('v_fma_f32', Q_, Neg(S_), S_, Q_),
             V('v_max_f32', Q_, 0, Q_), V('v_add_f32', Q_, 0x3727c5ac, Q_)]
        if mode == 'k': o += [V('v_rsq_f32', vrs, Q_), V('v_mul_f32', MISC[0], LOG2E, vrs)]
        else: o += [V('v_rcp_f32', vrs, Q_)]
        return o
    def softmax_stream(P, T, dest):
        sc, mx, mn, sp, sn = MISC[0], MISC[1], MISC[2], MISC[3], MISC[4]
        o = [V('v_max3_f32', mx, P[0], P[1], P[2]), V('v_min3_f32', mn, P[0], P[1], P[2])]
        for k in range(3, 19, 2): o += [V('v_max3_f32', mx, mx, P[k], P[k + 1]), V('v_min3_f32', mn, mn, P[k], P[k + 1])]
        o += [V('v_max_f32', mx, mx, P[19]), V('v_min_f32', mn, mn, P[19]), V('v_mul_f32', mx, sc, mx), V('v_mul_f32', mn, sc, mn)]
        for k in range(20):
            o += [V('v_fma_f32', T[k], P[k], sc, Neg(mx)), V('v_fma_f32', P[k], Neg(P[k]), sc, mn)]
            if k >= 1: o += [V('v_exp_f32', T[k - 1], T[k - 1]), V('v_exp_f32', P[k - 1], P[k - 1])]
            if k == 3: o += [V('v_add_f32', sp, T[0], T[1]), V('v_add_f32', sn, P[0], P[1])]
            if k > 3: o += [V('v_add_f32', sp, sp, T[k - 2]), V('v_add_f32', sn, sn, P[k - 2])]
        o += [V('v_exp_f32', T[19], T[19]), V('v_exp_f32', P[19], P[19]), V('v_add_f32', sp, sp, T[18]), V('v_add_f32', sn, sn, P[18]),
              V('v_add_f32', sp, sp, T[19]), V('v_add_f32', sn, sn, P[19]), V('v_rcp_f32', sp, sp), V('v_rcp_f32', sn, sn)]
        for src, rc, base in ((T, sp, 0), (P, sn, 20)):
            for k in range(0, 20, 2):
                o += [V('v_mul_f32', src[k], rc, src[k]), V('v_mul_f32', src[k + 1], rc, src[k + 1]), V('v_cvt_pk_bf16_f32', dest(base + k), src[k], src[k + 1])]
        return o
    def lds_stream(n, frag_off, mk_mfma, sched, pre=None, first_reads_done=False):
        tags = {}
        def rd(k):
            ad, off = lds_addr(frag_off(k)); tags[k] = A.ds_read_b128(RING[k % 4], ad, mods=f'offset:{off}')
        return tags, rd

    W2F = [a(160 + 4 * k, 4) for k in range(24)] + [TB[28:32]]
    OF = [a(4 * k, 4) for k in range(20)]
    w3slot = {0: 3, 1: 4, 2: 5, 3: 0, 4: 1, 5: 2, 6: 6, 7: 7, 8: 8, 9: 9, 10: 3, 11: 4, 12: 5, 13: 0, 14: 1}
    w3tag = {}
    def issue_w3(cs):
        out = []
        for c in cs:
            fl, res = dma_chunk(sW3, c, w3slot[c]); w3tag[c] = res; out += fl
        return out
    def wloads(frags, sbase, order, n_per):
        tags = {}; state = {'cur': None}
        def mk(ri, mi):
            def f():
                blk = mi >> 2
                if state['cur'] != blk:
                    A.s_add_u32(t_s[2], sbase, blk * 4096); state['cur'] = blk
                tags[ri] = A.buffer_load_dwordx4(frags[ri], L16, WS, t_s[2], mods=f'offen offset:{(mi & 3)*1024}')
            return f
        return [mk(ri, mi) for ri, mi in order], tags, state

    def run_stream(lo, hi, frag_off, mk_mfma, pre, post, tags, rd, total):
        for idx in range(lo, hi):
            for f in pre.get(idx, []): f()
            if idx + 3 < total and (idx + 3) not in tags: rd(idx + 3)
            A.wait_lg(tags[idx])
            mk_mfma(idx)
            for f in post.get(idx, []): f()

    def p1(l):
        A.cmt(f'======== P1 layer {l}')
        lx = 0 if cfg.reuse else l
        acc = [ACC[16 * t: 16 * t + 16] for t in range(4)]
        LA = cfg.LA1
        if l == 0:
            xl, xt = x0, x0tags
        else:
            poll(vFlB, sFl, flg(l, K_XA), 1)
            stamp()
            xl, xt = xloads(XA_OFF + l * X_SZ)
            for k in range(LA): xl[k]()
        ST = PR[0:8]; sttag = {}
        def ldst():
            A.s_add_u32(t_s[2], sSTu, STA_OFF + l * ST_SZ)
            A.buffer_load_dwordx4(ST[0:4], vSTld, WS, t_s[2], mods='offen sc1')
            sttag[0] = A.buffer_load_dwordx4(ST[4:8], vSTld, WS, t_s[2], mods='offen offset:512 sc1')
        pre, post = defaultdict(list), defaultdict(list)
        for s_ in range(LA, 40): post[2 * (s_ - LA)].append(xl[s_])
        post[2 * (40 - LA)].append(ldst)
        spread(post, issue_w1([6, 7, 8, 9]), 2 * (40 - LA) + 2, per=1) if LA < 8 else spread(post, issue_w1([6, 7, 8, 9]), 2 * (40 - LA) + 2, 2 * (40 - LA) + 2 + 28)
        xid = {}
        def frag_off(idx): return idx * 1024
        def mf(idx):
            if idx < 80: t, s_ = idx & 1, idx >> 1
            else: t, s_ = divmod(idx - 80, 40); t += 2
            if idx < 80 and t == 0: A.wait_vm(xt[s_])
            A.v_mfma_f32_32x32x16_bf16(acc[t], RING[idx % 4], XF[s_], acc[t] if s_ else 0)
        tags, rd = lds_stream(160, frag_off, mf, None)
        if l == 0:
            A.wait_vm(w1tag[0]['tag']); A.s_barrier()
            pre[13].append(lambda: (A.wait_vm(w1tag[1]['tag']), A.s_barrier()))
            pre[29].append(lambda: (A.wait_vm(w1tag[5]['tag']), A.s_barrier()))
        else:
            A.wait_vm(w1tag[5]['tag']); A.s_barrier()
        for k in range(3): rd(k)
        pre[92].append(lambda: (A.wait_vm(w1tag[7]['tag']), A.s_barrier()))
        if l == 0:
            def ldxid():
                A.s_lshl_b32(t_s[2], si, 7); A.s_add_u32(t_s[2], t_s[2], XID_OFF); A.v_and_b32(MISC[5], 60, vFlB)
                xid['tag'] = A.buffer_load_dword(vXid, MISC[5], WS, t_s[2], mods='offen sc1')
            post[92].append(ldxid)
        w2l, w2t, w2s = wloads(W2F, sW2, [(k, k) for k in range(25)], 1)
        spread(post, w2l[:13], 94, 120)
        Pk = [acc[0][k] for k in range(16)] + [acc[1][k] for k in range(4)]
        Tk = [PR[8 + k] for k in range(20)]
        vs = [lambda: A.wait_vm(sttag[0])] + rstd_stream(ST, 'k')
        spread(post, vs, 74, 80)
        sm = softmax_stream(Pk, Tk, lambda f: TB[f >> 1])
        Vv = [acc[1][4 + k] for k in range(12)] + [acc[2][k] for k in range(8)]
        def vpack(k0, k1):
            o = []
            for k in range(k0, k1, 2):
                o += [V('v_mul_f32', Vv[k], vrs, Vv[k]), V('v_mul_f32', Vv[k + 1], vrs, Vv[k + 1]), V('v_cvt_pk_bf16_f32', TB[20 + (k >> 1)], Vv[k], Vv[k + 1])]
            return o
        def trw(k): return lambda: A.ds_write_b128(vTRw, TB[4 * k: 4 * k + 4], mods=f'offset:{TR + 16*k}')
        extra = vpack(0, 12) + [V('v_mov_b32', TB[30], 0x3f80), V('v_mov_b32', TB[31], 0)]
        nsh = 150
        spread(post, sm[:nsh], 81, 120)
        run_stream(0, 120, frag_off, mf, pre, post, tags, rd, 120)
        for f in sm[nsh:] + extra: f()
        for k in range(6): trw(k)()
        for f in vpack(12, 20): f()
        for k in range(6, 8): trw(k)()
        A.wait_lg(); A.wait_vm(w1tag[9]['tag']); A.s_barrier()
        stamp()
        kacc = [acc[0][4 * ft: 4 * ft + 4] for ft in range(3)]
        KB = [PR[16 * (k & 1): 16 * (k & 1) + 16] for k in range(4)]
        KB = [PR[0:16], PR[16:32], PR[32:48], PR[48:64]]
        ktag = {}
        for ks in range(4):
            for u in range(2): A.ds_read_b64_tr_b16(KB[ks][12 + 2 * u: 14 + 2 * u], vTRb, mods=f'offset:{TR + 5120*ks + 2560*u}')
            for ft in range(3):
                for u in range(2): ktag[ks, ft] = A.ds_read_b64_tr_b16(KB[ks][4 * ft + 2 * u: 4 * ft + 2 * u + 2], vTRa, mods=f'offset:{TR + 5120*ks + 2560*u + 32*ft}')
            if ks >= 1:
                for ft in range(3):
                    A.wait_lg(ktag[ks - 1, ft]); A.v_mfma_f32_16x16x32_bf16(kacc[ft], KB[ks - 1][4 * ft: 4 * ft + 4], KB[ks - 1][12:16], kacc[ft] if ks > 1 else 0)
        for ft in range(3):
            A.wait_lg(ktag[3, ft]); A.v_mfma_f32_16x16x32_bf16(kacc[ft], KB[3][4 * ft: 4 * ft + 4], KB[3][12:16], kacc[ft])
        for k in range(120, 123): rd(k)
        KP = acc[1][0:6]
        for k in range(6): A.v_cvt_pk_bf16_f32(KP[k], acc[0][2 * k], acc[0][2 * k + 1])
        for k in range(6): A.v_min_u32(KP[k], 0xfffffffe, KP[k])
        A.s_add_u32(t_s[2], sKVw, KVP_OFF + l * KV_SZ); w2s['cur'] = None
        A.buffer_store_dwordx4(KP[0:4], vKVst0, WS, t_s[2], mods='offen sc1')
        A.buffer_store_dwordx2(KP[4:6], vKVst1, WS, t_s[2], mods='offen sc1')
        stamp()
        pre, post = defaultdict(list), defaultdict(list)
        spread(post, w2l[13:], 121, cfg.kvld_at - 1)
        PRF = [PR[4 * k: 4 * k + 4] for k in range(16)]; ptag = {}
        def pld(k):
            def f():
                if k == 0: A.s_add_u32(so, sKVr, KVP_OFF + l * KV_SZ)
                else: A.s_add_u32(so, so, KV_SLOT)
                ptag[k] = A.buffer_load_dwordx4(PRF[k], vKVld, WS, so, mods='offen sc1')
            return f
        pl = [pld(k) for k in range(16)]
        nin = min(16, 160 - cfg.kvld_at)
        spread(post, pl[:nin], cfg.kvld_at, per=1)
        run_stream(120, 160, frag_off, mf, pre, post, tags, rd, 160)
        for f in pl[nin:]: f()
        rest = issue_w3([0, 1, 2])
        if l == 0:
            rtag = {}
            def ldres():
                A.buffer_load_dwordx4(RES[10:14], vOUT0, XIN, 0, mods='offen'); A.buffer_load_dwordx4(RES[14:18], vOUT0, XIN, 0, mods='offen offset:64')
                rtag[0] = A.buffer_load_dwordx2(RES[18:20], vOUT2, XIN, 0, mods='offen')
            rest.append(ldres)
        Pq = [acc[2][8 + k] for k in range(8)] + [acc[3][k] for k in range(12)]
        Tq = [acc[1][k] for k in range(16)] + [acc[0][k] for k in range(4)]
        def qdest(f): return TB[4 * ((f & 15) >> 2) + 2 * (f >> 4) + ((f & 3) >> 1)] if f < 32 else TB[16 + ((f - 32) >> 1)]
        sq = softmax_stream(Pq, Tq, qdest)
        step = len(sq) // (len(rest) + 1)
        for k, f in enumerate(sq):
            f()
            if k % step == step - 1 and rest: rest.pop(0)()
        for f in rest: f()
        stamp()
        Lre = A.newlabel('kvre'); Lrt = A.newlabel('kvretry')
        RACC = v(136, 16); mxu = MISC[5]
        A.s_mov_b32(sspin, 0)
        A.label(Lre)
        for k in range(16):
            A.wait_vm(ptag[k])
            A.v_mfma_f32_32x32x16_bf16(RACC, SEL, PRF[k], RACC if k else 0)
            if k == 0: A.v_max_u32(mxu, PRF[0][0], PRF[0][1])
            else: A.v_max3_u32(mxu, mxu, PRF[k][0], PRF[k][1])
            A.v_max3_u32(mxu, mxu, PRF[k][2], PRF[k][3])
        A.v_cmp_eq_u32('vcc', -1, mxu)
        A.s_cbranch_vccnz(Lrt)
        Lok = A.newlabel('kvok'); A.label(Lok)
        def retry():
            A.label(Lrt)
            A.s_add_u32(sspin, sspin, 1); A.s_cmp_gt_u32(sspin, SPIN >> 2); A.s_cbranch_scc1(Lok)
            A.s_nop(7)
            for f in pl: f()
            A.I('s_waitcnt', 'vmcnt(0)')
            A.s_branch(Lre)
        tail.append(retry)
        for k in range(4): A.v_cvt_pk_bf16_f32(MISC[k], RACC[2 * k], RACC[2 * k + 1])
        A.ds_write_b128(vKBw, MISC[0:4])
        A.wait_lg(); A.s_barrier()
        stamp()
        otag = {}
        for T_ in range(2):
            for s_ in range(5): otag[T_, s_] = A.ds_read_b128(PRF[5 * T_ + s_], (vKBr0, vKBr1)[T_], mods=f'offset:{16*s_}')
        oacc = [acc[0], acc[1]]
        for T_ in (1, 0):
            for s_ in range(5):
                A.wait_lg(otag[1, 4] if T_ == 1 else otag[0, s_])
                A.v_mfma_f32_32x32x16_bf16(oacc[T_], PRF[5 * T_ + s_], TB[4 * s_: 4 * s_ + 4], oacc[T_] if s_ else 0)
        if l == 0:
            A.wait_vm(xid['tag'])
            Lx = A.newlabel('xidok'); Ly = A.newlabel('xidpoll')
            A.v_cmp_eq_u32('vcc', 0, vXid); A.s_cbranch_vccnz(Ly); A.label(Lx)
            def xp():
                A.label(Ly); A.s_lshl_b32(t_s[2], si, 7); A.v_and_b32(MISC[5], 60, vFlB)
                poll(MISC[5], t_s[2], XID_OFF, 1, dst=vXid); A.s_branch(Lx)
            tail.append(xp)
            A.v_cmp_ne_u32('vcc', sxcc, vXid); A.s_cmp_eq_u64('vcc', 0); A.s_cselect_b32(sfast, 1, 0)
        den = MISC[1]
        A.v_add_f32(den, 0x358637bd, oacc[1][4]); A.v_rcp_f32(den, den)
        Ov = [oacc[0][k] for k in range(16)] + [oacc[1][k] for k in range(4)]
        OP = PR[0:10]
        A.s_add_u32(t_s[2], sOst, O_OFF + lx * X_SZ)
        for k in list(range(16, 20, 2)) + list(range(0, 16, 2)):
            A.v_mul_f32(Ov[k], den, Ov[k]); A.v_mul_f32(Ov[k + 1], den, Ov[k + 1]); A.v_cvt_pk_bf16_f32(OP[k >> 1], Ov[k], Ov[k + 1])
            if k == 18: A.buffer_store_dwordx2(OP[8:10], vOst2, WS, t_s[2], mods='offen')
            if k == 6: A.buffer_store_dwordx4(OP[0:4], vOst0, WS, t_s[2], mods='offen')
            if k == 14: last = A.buffer_store_dwordx4(OP[4:8], vOst1, WS, t_s[2], mods='offen')
        if l == 0:
            A.wait_vm(rtag[0])
            for k in range(10):
                A.v_lshlrev_b32(RES[2 * k], 16, RES[10 + k]); A.v_and_b32(RES[2 * k + 1], 0xffff0000, RES[10 + k])
        publish(last, sFlW1, flg(l, K_O), 1)
        stamp()
        return w2t

    def ksplit_gemm(nsteps, order, WF, wtag, AF, aload, atag, LAst, fillers):
        acc = [[ACC[20 * tau + 4 * ft: 20 * tau + 4 * ft + 4] for ft in range(5)] for tau in range(4)]
        fillers = list(fillers)
        for n in range(nsteps):
            taus = (1, 2, 3, 0) if n == nsteps - 1 else (0, 1, 2, 3)
            for ti, tau in enumerate(taus):
                A.wait_vm(atag[n, tau])
                for ft in range(5):
                    if ti == 0 and wtag is not None: A.wait_vm(wtag[(n, ft)])
                    A.v_mfma_f32_16x16x32_bf16(acc[tau][ft], WF(n, ft), AF(n, tau), acc[tau][ft] if n else 0)
                    if ft == 0 and n + LAst < nsteps: aload(n + LAst, ti)
                    elif ft in (2, 4) and n + LAst >= nsteps and fillers: fillers.pop(0)()
        for f in fillers: f()
        return acc
    def reduce_epilogue(acc, final, xconst, stconst, flagconst):
        for tau in (1, 2, 3):
            for ft in range(5): A.ds_write_b128(vRDw[tau], acc[tau][ft], mods=f'offset:{ft*1024}')
        A.wait_lg(); A.s_barrier()
        rt = {}
        for ft in range(5):
            for k in range(3): rt[ft] = A.ds_read_b128(acc[k + 1][ft], vRDr, mods=f'offset:{k*5120 + ft*1024}')
        for ft in range(5):
            for e in range(0, 4, 2): A.v_pk_add_f32(RES[4 * ft + e: 4 * ft + e + 2], RES[4 * ft + e: 4 * ft + e + 2], acc[0][ft][e:e + 2])
        XP = v(136, 10) if False else None
        for ft in range(5):
            A.wait_lg(rt[ft])
            for e in range(0, 4, 2):
                R2 = RES[4 * ft + e: 4 * ft + e + 2]
                A.v_pk_add_f32(acc[1][ft][e:e + 2], acc[1][ft][e:e + 2], acc[2][ft][e:e + 2])
                A.v_pk_add_f32(R2, R2, acc[3][ft][e:e + 2])
                A.v_pk_add_f32(R2, R2, acc[1][ft][e:e + 2])
        XP = ACC[0:10]
        for k in range(10): A.v_cvt_pk_bf16_f32(XP[k], RES[2 * k], RES[2 * k + 1])
        if final:
            A.buffer_store_dwordx4(XP[0:4], vOUT0, OUT, 0, mods='offen'); A.buffer_store_dwordx4(XP[4:8], vOUT0, OUT, 0, mods='offen offset:64')
            A.buffer_store_dwordx2(XP[8:10], vOUT2, OUT, 0, mods='offen')
            return
        A.s_add_u32(t_s[2], sXst, xconst)
        A.buffer_store_dwordx4(XP[0:4], vXst0, WS, t_s[2], mods='offen'); A.buffer_store_dwordx4(XP[4:8], vXst0, WS, t_s[2], mods='offen offset:2048')
        A.buffer_store_dwordx2(XP[8:10], vXst2, WS, t_s[2], mods='offen')
        S2, Q2 = ACC[10:12], ACC[12:14]
        A.v_pk_add_f32(S2, RES[0:2], RES[2:4]); A.v_pk_mul_f32(Q2, RES[0:2], RES[0:2])
        for k in range(2, 20, 2):
            if k >= 4: A.v_pk_add_f32(S2, S2, RES[k:k + 2])
            A.v_pk_fma_f32(Q2, RES[k:k + 2], RES[k:k + 2], Q2)
        A.v_add_f32(S2[0], S2[0], S2[1]); A.v_add_f32(Q2[0], Q2[0], Q2[1])
        A.v_permlane32_swap_b32(S2[0], Q2[0]); A.v_add_f32(S2[0], S2[0], Q2[0]); A.v_mov_b32(S2[1], S2[0])
        A.v_permlane16_swap_b32(S2[0], S2[1]); A.v_add_f32(S2[0], S2[0], S2[1])
        A.s_add_u32(t_s[2], sSTst, stconst)
        last = A.buffer_store_dword(S2[0], vSTst, WS, t_s[2], mods='offen')
        publish(last, sFlW2, flagconst, 1)

    def p2(l, w2t):
        A.cmt(f'======== P2 layer {l}')
        lx = 0 if cfg.reuse else l
        poll(vFlA, sFl, flg(l, K_O), 1)
        stamp()
        atag = {}
        def aload(n, tau):
            A.s_add_u32(so, sOld[tau], O_OFF + lx * X_SZ + (n >> 2) * 4096)
            atag[n, tau] = A.buffer_load_dwordx4(OF[4 * n + tau], L16, WS, so, mods=f'offen offset:{(n & 3)*1024} sc1')
        for n in range(2):
            for tau in range(4): aload(n, tau)
        acc = ksplit_gemm(5, None, lambda n, ft: W2F[5 * n + ft], None, lambda n, tau: OF[4 * n + tau], aload, atag, 2, issue_w3([3, 4, 5]))
        stamp()
        reduce_epilogue(acc, False, XB_OFF + lx * X_SZ, STB_OFF + l * ST_SZ, flg(l, K_XB))
        stamp()

    W4F = [a(160 + 4 * k, 4) for k in range(24)] + [v(152 + 4 * k, 4) for k in range(24)] + [a(4 * k, 4) for k in range(12)]
    HF = [a(48 + 4 * k, 4) for k in range(28)]
    p4order = [3 * jj + p for p in range(3) for jj in range(4)]
    def p3(l):
        A.cmt(f'======== P3 layer {l}')
        lx = 0 if cfg.reuse else l
        acc = [[ACC[32 * u + 16 * gu: 32 * u + 16 * gu + 16] for gu in range(2)] for u in range(2)]
        LA = cfg.LA1
        poll(vFlB, sFl, flg(l, K_XB), 1)
        stamp()
        xl, xt = xloads(XB_OFF + lx * X_SZ)
        for k in range(LA): xl[k]()
        ST = v(136, 8); sttag = {}
        def ldst():
            A.s_add_u32(t_s[2], sSTu, STB_OFF + l * ST_SZ)
            A.buffer_load_dwordx4(ST[0:4], vSTld, WS, t_s[2], mods='offen sc1')
            sttag[0] = A.buffer_load_dwordx4(ST[4:8], vSTld, WS, t_s[2], mods='offen offset:512 sc1')
        pre, post = defaultdict(list), defaultdict(list)
        for s_ in range(LA, 40): post[2 * (s_ - LA)].append(xl[s_])
        post[2 * (40 - LA)].append(ldst)
        e0 = 2 * (40 - LA) + 2
        spread(post, issue_w3([6, 7, 8, 9]), e0, e0 + 28)
        def frag_off(idx): return w3slot[idx >> 4] * SLOT + (idx & 15) * 1024
        def mf(idx):
            p, rem = divmod(idx, 80); s_, gu = rem >> 1, rem & 1
            if idx < 80 and gu == 0: A.wait_vm(xt[s_])
            ac = acc[p & 1][gu]
            A.v_mfma_f32_32x32x16_bf16(ac, RING[idx % 4], XF[s_], ac if s_ else 0)
        tags, rd = lds_stream(240, frag_off, mf, None)
        A.wait_vm(w3tag[5]['tag']); A.s_barrier()
        for k in range(3): rd(k)
        pre[92].append(lambda: (A.wait_vm(w3tag[7]['tag']), A.s_barrier()))
        spread(post, issue_w3([10, 11, 12, 13, 14]), 92, 124)
        pre[124].append(lambda: (A.wait_vm(w3tag[9]['tag']), A.s_barrier()))
        pre[156].append(lambda: (A.wait_vm(w3tag[14]['tag']), A.s_barrier()))
        order = [(5 * n + ft, 5 * p4order[n] + ft) for n in range(12) for ft in range(5)]
        w4l, w4t, w4s = wloads(W4F, sW4, order, 1)
        spread(post, w4l[:48], 126, 216)
        spread(post, w4l[48:], 216, 240)
        spread(post, [lambda: A.wait_vm(sttag[0])] + rstd_stream(ST, 'sq'), 74, 80)
        HP = [v(144, 4), v(148, 4)]
        htag = {}
        def epi(p, packed=False):
            G, U = acc[p & 1]; o = []
            for c in range(2):
                for k in range(8 * c, 8 * c + 8, 2):
                    o += [V('v_max_f32', G[k], 0, G[k]), V('v_max_f32', G[k + 1], 0, G[k + 1]), V('v_mul_f32', U[k], vrs, U[k]), V('v_mul_f32', U[k + 1], vrs, U[k + 1]),
                          V('v_mul_f32', G[k], G[k], U[k]), V('v_mul_f32', G[k + 1], G[k + 1], U[k + 1]), V('v_cvt_pk_bf16_f32', HP[c][(k & 7) >> 1], G[k], G[k + 1])]
                def st(c=c):
                    A.s_add_u32(so, sHst, H_OFF + lx * H_SZ)
                    htag[p] = A.buffer_store_dwordx4(HP[c], vHst, WS, so, mods=f'offen offset:{p*1024 + c*512}')
                o.append(st)
            return o
        spread(post, epi(0), 82, 112)
        spread(post, epi(1), 162, 192)
        run_stream(0, 240, frag_off, mf, pre, post, tags, rd, 240)
        stamp()
        for f in epi(2): f()
        publish(htag[2], sFlW1, flg(l, K_H), 3)
        stamp()
        return w4t
    def p4(l, w4t):
        A.cmt(f'======== P4 layer {l}')
        lx = 0 if cfg.reuse else l
        poll(vFlA, sFl, flg(l, K_H), 3)
        stamp()
        atag = {}
        def aload(n, tau):
            ms = p4order[n]
            A.s_add_u32(so, sHld[tau], H_OFF + lx * H_SZ + (ms >> 2) * 4096)
            atag[n, tau] = A.buffer_load_dwordx4(HF[(4 * n + tau) % 28], L16, WS, so, mods=f'offen offset:{(ms & 3)*1024} sc1')
        LAst = 3
        for n in range(LAst):
            for tau in range(4): aload(n, tau)
        fill = []
        if l == 0:
            A.s_barrier()
            fill = issue_w1([0, 1, 2, 3, 4, 5])
        acc = ksplit_gemm(12, None, lambda n, ft: W4F[5 * n + ft], None, lambda n, tau: HF[(4 * n + tau) % 28], aload, atag, LAst, fill)
        stamp()
        reduce_epilogue(acc, l == 1, XA_OFF + (l + 1) * X_SZ, STA_OFF + (l + 1) * ST_SZ, flg(l + 1, K_XA) if l == 0 else None)
        stamp()
    for l in range(2):
        w2t = p1(l); p2(l, w2t); w4t = p3(l); p4(l, w4t)
    if cfg.diag:
        A.I('s_waitcnt', 'vmcnt(0)'); stamp()
        A.s_memrealtime(s(98, 2)); A.wait_lg()
        n = nstamp[0]; assert n <= 32
        A.s_lshl_b32(t_s[0], b, 10); A.s_lshl_b32(t_s[1], w, 8); A.s_add_u32(t_s[0], t_s[0], t_s[1]); A.s_add_u32(t_s[0], t_s[0], DBG_OFF)
        for k, sr in enumerate([s(64 + k) for k in range(n)] + [s(96), s(98), sfast]):
            A.v_mov_b32(MISC[0], sr)
            A.buffer_store_dword(MISC[0], vZ, WS, t_s[0], mods=f'offen offset:{4*(k if k < n else 40 + k - n)}')
    A.label('M_end')
    A.s_endpgm()
    k = 0
    while k < len(tail):
        A.vm = []; A.lg = []; tail[k](); k += 1
    nn = A.finalize()
    return A, nn, nstamp[0]
```

```python
from asmlib import *
from layout import *

N_W1, N_W3, N_X, N_W24 = 48, 96, 64, 46
B_W3 = N_W1; B_X = B_W3 + N_W3; B_W24 = B_X + N_X; B_END = B_W24 + N_W24; PRE_GRID = 256
PRE_LDS = 81920 + 4096
PHI_LDS = 61440

def srd(A, d, ptr, size):
    A.s_mov_b32(d[0], ptr[0]); A.s_mov_b32(d[1], ptr[1]); A.s_mov_b32(d[2], size); A.s_mov_b32(d[3], 0x20000)

def sel_frag(A, dst, idx, t0, t1):
    A.v_and_b32(t0, 1, idx); A.v_lshlrev_b32(t0, 4, t0); A.v_mov_b32(t1, 0x3f80); A.v_lshlrev_b32(t0, t0, t1)
    A.v_ashrrev_i32(t1, 1, idx)
    for n in range(4):
        A.v_cmp_eq_u32('vcc', n, t1)
        A.v_cndmask_b32(dst[n], 0, t0, 'vcc')

def gen_prepass(diag=False):
    A = Asm()
    def end():
        if diag:
            A.I('s_waitcnt', 'vmcnt(0)')
            A.s_memrealtime(s(62, 2)); A.I('s_waitcnt', 'lgkmcnt(0)')
            A.v_mov_b32(v(20), s(60)); A.v_mov_b32(v(21), s(62)); A.v_mov_b32(v(22), s(58)); A.v_mov_b32(v(23), s(64))
            A.s_lshl_b32(s(3), s(2), 6); A.s_lshl_b32(s(4), s(20), 4); A.s_add_u32(s(3), s(3), s(4)); A.s_add_u32(s(3), s(3), DBG_OFF)
            A.v_mov_b32(v(24), 0)
            A.buffer_store_dwordx4(v(20, 4), v(24), s(8, 4), s(3), mods='offen')
        A.s_endpgm(); A.vm = []; A.lg = []
    def stamp():
        if diag:
            A.s_memrealtime(s(64, 2)); A.wait_lg()
    if diag: A.s_memrealtime(s(60, 2))
    P = s(40, 16); PX, PQKV, PPHI, PWO, PWG, PWU, PWD = P[0:2], P[2:4], P[4:6], P[6:8], P[10:12], P[12:14], P[14:16]
    PWS = s(56, 2)
    WS, SRC, PHI = s(8, 4), s(12, 4), s(16, 4)
    b, w = s(2), s(20)
    A.s_cmp_ge_u32(b, PRE_GRID); A.s_cbranch_scc1('PP_end')
    A.s_load_dwordx16(P, s(0, 2), 0); A.s_load_dwordx2(PWS, s(0, 2), 80)
    tid, lane, l16, m, hf, g, h, r, pm = v(0), v(1), v(2), v(3), v(4), v(5), v(6), v(7), v(8)
    t0, t1, t2, t3 = v(9), v(10), v(11), v(12)
    A.v_and_b32(lane, 63, tid); A.v_lshlrev_b32(l16, 4, lane)
    A.v_lshrrev_b32(t0, 6, tid); A.v_and_b32(m, 31, tid); A.v_readfirstlane_b32(w, t0)
    A.v_lshrrev_b32(hf, 5, lane); A.v_lshrrev_b32(g, 3, m); A.v_bfe_u32(h, m, 2, 1); A.v_and_b32(r, 3, m)
    A.v_and_b32(pm, 0x13, m); A.v_lshl_or_b32(pm, h, 3, pm); A.v_bfe_u32(t0, m, 3, 1); A.v_lshl_or_b32(pm, t0, 2, pm)
    A.wait_lg()
    if diag: A.s_memrealtime(s(58, 2)); A.s_mov_b32(s(64), 0)
    srd(A, WS, PWS, WS_USED)
    sj, st, so, sb, sstr, sm0 = s(21), s(22), s(23), s(24), s(25), s(30)
    def fill():
        F4 = v(28, 4)
        for k in range(4): A.v_mov_b32(F4[k], -1)
        A.v_lshlrev_b32(t0, 4, tid); A.s_mul_i32(s(31), b, 6912); A.s_add_u32(s(31), s(31), KVP_OFF)
        A.buffer_store_dwordx4(F4, t0, WS, s(31), mods='offen')
        A.v_cmp_gt_u32('vcc', 176, tid); A.v_mov_b32(t1, OOB); A.v_cndmask_b32(t1, t1, t0, 'vcc'); A.s_add_u32(s(31), s(31), 4096)
        A.buffer_store_dwordx4(F4, t1, WS, s(31), mods='offen')
        A.s_cmp_lt_u32(b, 9); A.s_cselect_b32(s(32), 0, OOB); A.s_lshl_b32(s(31), b, 12); A.s_add_u32(s(31), s(31), FLG_OFF); A.s_add_u32(s(31), s(31), s(32))
        for k in range(4): A.v_mov_b32(v(24 + k), 0)
        A.buffer_store_dwordx4(v(24, 4), t0, WS, s(31), mods='offen')
    A.s_cmp_ge_u32(b, B_END); A.s_cbranch_scc1('PP_fillonly')
    A.s_cmp_ge_u32(b, B_W24); A.s_cbranch_scc1('PP_w24')
    A.s_cmp_ge_u32(b, B_X); A.s_cbranch_scc1('PP_x')
    A.s_cmp_ge_u32(b, B_W3); A.s_cbranch_scc1('PP_w3')
    acc = [v(32 + 16 * k, 16) for k in range(10)]
    AF = [v(192 + 4 * k, 4) for k in range(6)]
    T = [v(216 + 4 * k, 4) for k in range(6)]
    vA = [v(13 + k) for k in range(5)]
    def center_store(nct, voff, vstr):
        neg = []
        for ct in range(nct):
            sm = v(240 + 2 * ct, 2)
            base = 32 + 80 * ct
            A.v_pk_add_f32(sm, v(base, 2), v(base + 2, 2))
            for k in range(2, 40): A.v_pk_add_f32(sm, sm, v(base + 2 * k, 2))
            A.v_add_f32(sm[0], sm[0], sm[1]); A.v_mov_b32(sm[1], sm[0])
            A.v_permlane32_swap_b32(sm[0], sm[1]); A.v_add_f32(sm[0], sm[0], sm[1])
        A.s_lshl_b32(s(26), w, 7); A.s_add_u32(s(26), s(26), 65536); A.v_lshl_add_u32(t2, m, 2, s(26))
        for ct in range(nct): A.ds_write_b32(t2, v(240 + 2 * ct), mods=f'offset:{512*ct}')
        A.wait_lg(); A.s_barrier()
        A.v_lshlrev_b32(t2, 2, m); A.v_add_u32(t2, 65536, t2)
        for ct in range(nct):
            for k in range(4): A.ds_read_b32(v(244 + 4 * ct + k), t2, mods=f'offset:{512*ct + k*128}')
        A.wait_lg()
        for ct in range(nct):
            sm = v(240 + 2 * ct, 2); q = v(244 + 4 * ct, 4)
            A.v_add_f32(t0, q[0], q[1]); A.v_add_f32(t1, q[2], q[3]); A.v_add_f32(t0, t0, t1)
            A.v_mul_f32(sm[0], 0xbacccccd, t0); A.v_mov_b32(sm[1], sm[0])
        n = 0
        for ct in range(nct):
            sm = v(240 + 2 * ct, 2)
            for bb in range(5):
                for hh in range(2):
                    o = AF[n % 6]; n += 1
                    ac = acc[ct * 5 + bb]
                    for k in range(4):
                        pr = ac[8 * hh + 2 * k: 8 * hh + 2 * k + 2]
                        A.v_pk_add_f32(pr, pr, sm)
                    for k in range(4): A.v_cvt_pk_bf16_f32(o[k], ac[8 * hh + 2 * k], ac[8 * hh + 2 * k + 1])
                    A.buffer_store_dwordx4(o, voff[ct], WS, 0, mods='offen')
                    A.v_add_u32(voff[ct], vstr[ct], voff[ct])
    srd(A, SRC, PQKV, D * 3 * D * 2); srd(A, PHI, PPHI, H * DH * DH * 2)
    ssec = st
    A.s_and_b32(sj, b, 7); A.s_lshl_b32(sj, sj, 1); A.s_bfe_u32(s(26), b, (1 << 16) | 3); A.s_add_u32(sj, sj, s(26)); A.s_lshr_b32(ssec, b, 4)
    A.s_add_u32(s(26), ssec, 1); A.s_mul_i32(s(26), s(26), 1280); A.s_cmp_eq_u32(ssec, 2); A.s_cselect_b32(s(26), 0, s(26))
    A.s_mul_i32(s(27), sj, 80); A.s_add_u32(so, s(26), s(27)); A.s_mul_i32(s(27), w, 160 * 3840); A.s_add_u32(so, so, s(27))
    for n in range(5):
        A.v_add_u32(t0, 64 * n, lane); A.v_mul_u32_u24(t1, 205, t0); A.v_lshrrev_b32(t1, 10, t1)
        A.v_mul_u32_u24(t2, 5, t1); A.v_sub_u32(t2, t0, t2); A.v_mul_u32_u24(t1, 3840, t1); A.v_lshl_add_u32(vA[n], t2, 4, t1)
    A.s_mul_i32(sm0, w, 13312)
    for n in range(13):
        A.s_mov_b32('m0', sm0)
        A.buffer_load_dwordx4(vA[n % 5], SRC, so, mods='offen lds')
        A.s_add_u32(sm0, sm0, 1024)
        if n % 5 == 4: A.s_add_u32(so, so, 64 * 3840)
    lastA = A.vm[-1]
    A.s_mul_i32(s(27), sj, 1600)
    A.v_mov_b32(t3, OOB)
    A.s_mov_b32('m0', PHI_LDS)
    A.v_cmp_gt_u32('vcc', 50, lane); A.v_cndmask_b32(t0, t3, l16, 'vcc')
    A.buffer_load_dwordx4(t0, PHI, s(27), mods='offen lds')
    A.s_mov_b32('m0', PHI_LDS + 1024)
    A.v_subrev_u32(t1, 96, l16); A.v_cmp_lt_u32('vcc', 55, lane); A.v_cndmask_b32(t0, t3, t1, 'vcc')
    A.buffer_load_dwordx4(t0, PHI, s(27), mods='offen lds')
    A.s_mov_b32('m0', PHI_LDS + 2048)
    A.v_add_u32(t1, 58 * 16, l16); A.v_cmp_gt_u32('vcc', 42, lane); A.v_cndmask_b32(t0, t3, t1, 'vcc')
    A.buffer_load_dwordx4(t0, PHI, s(27), mods='offen lds')
    lastP = A.vm[-1]
    fill()
    dl0 = v(18); fv = [v(19), v(20)]
    A.v_mul_u32_u24(t0, 20, h); A.v_lshlrev_b32(dl0, 3, hf); A.v_sub_u32(dl0, dl0, t0)
    A.v_lshl_add_u32(fv[0], g, 2, r); A.v_add_u32(fv[1], 16, fv[0])
    A.s_cmp_eq_u32(ssec, 1); A.s_cbranch_scc1('PP_w1_v')
    vm_save = list(A.vm)
    A.wait_vm(lastP)
    US = [v(32 + k) for k in range(48)]
    B0 = v(21)
    A.v_mul_u32_u24(B0, 1920, h); A.v_lshl_add_u32(B0, fv[0], 1, B0)
    A.v_mul_i32_i24(t0, 40, dl0); A.v_add3_u32(B0, B0, t0, A_const(A, s(26), PHI_LDS))
    for ct in range(2):
        for c in list(range(0, 8)) + list(range(16, 24)) + list(range(32, 40)):
            k = (c >> 4) * 8 + (c & 7)
            A.ds_read_u16(US[24 * ct + k], B0, mods=f'offset:{c*40 + 32*ct}')
            if len(A.lg) > 14: A.wait_lg(A.lg[-8])
    A.wait_lg()
    for k in range(24): A.v_lshl_or_b32(T[k >> 2][k & 3], US[2 * k + 1], 16, US[2 * k])
    A.s_branch('PP_w1_go')
    A.label('PP_w1_v')
    A.vm = vm_save
    for ct in range(2):
        A.v_cmp_gt_u32('vcc', 20, fv[ct]); A.v_sub_u32(t0, fv[ct], dl0); A.v_mov_b32(t1, -1000 & 0xffffffff); A.v_cndmask_b32(v(21), t1, t0, 'vcc')
        for u in range(3):
            if u: A.v_subrev_u32(v(21), 16, v(21))
            sel_frag(A, T[3 * ct + u], v(21), t0, t1)
    A.wait_vm(lastP)
    A.label('PP_w1_go')
    stamp()
    A.s_mul_i32(s(26), w, 13312); A.v_mul_u32_u24(t0, 80, pm); A.v_lshl_add_u32(t0, hf, 4, t0); A.v_add_u32(v(21), s(26), t0)
    tg = {}
    def rdA(i):
        bb, u = divmod(i, 3); tg[i] = A.ds_read_b128(AF[i % 6], v(21), mods=f'offset:{bb*2560 + u*32}')
    for i in range(4): rdA(i)
    for i in range(15):
        bb, u = divmod(i, 3)
        if i + 4 < 15: rdA(i + 4)
        A.wait_lg(tg[i])
        for ct in range(2): A.v_mfma_f32_32x32x16_bf16(acc[ct * 5 + bb], AF[i % 6], T[3 * ct + u], acc[ct * 5 + bb] if u else 0)
    voff = [v(22), v(23)]; vstr = [v(24), v(25)]
    A.s_mul_i32(s(26), ssec, 5); A.s_mul_i32(s(27), sj, W1_J); A.s_add_u32(s(27), s(27), W1_OFF); A.s_mul_i32(s(28), w, 10)
    A.s_cmp_eq_u32(ssec, 2); A.s_cselect_b32(s(29), 2, 1)
    for ct in range(2):
        A.v_add_u32(t0, s(26), g)
        if ct: A.v_add_u32(t0, 4, t0)
        A.v_lshrrev_b32(t1, 2, t0); A.v_and_b32(t0, 3, t0)
        A.v_cmp_gt_u32('vcc', 2, t1); A.v_mov_b32(t2, 2048); A.v_mov_b32(t3, 1024); A.v_cndmask_b32(vstr[ct], t3, t2, 'vcc')
        A.v_mul_u32_u24(t2, 40, t1); A.v_cndmask_b32(t1, t2, t1, 'vcc'); A.v_lshlrev_b32(t1, 10, t1)
        A.v_mad_u32_u24(t1, vstr[ct], s(28), t1)
        A.v_and_b32(t2, 7, m); A.v_lshl_add_u32(t2, t0, 3, t2); A.v_lshl_add_u32(t2, hf, 5, t2)
        A.v_lshl_add_u32(t1, t2, 4, t1); A.v_add_u32(voff[ct], s(27), t1)
        if ct:
            A.v_cmp_gt_u32('vcc', s(29), g); A.v_mov_b32(t2, OOB); A.v_cndmask_b32(voff[ct], t2, voff[ct], 'vcc')
    center_store(2, voff, vstr)
    end()
    A.label('PP_w3'); A.cmt('role W3')
    A.s_sub_u32(s(26), b, B_W3); A.s_lshr_b32(s(27), s(26), 4); A.s_lshl_b32(s(27), s(27), 3); A.s_and_b32(s(28), s(26), 7); A.s_add_u32(s(27), s(27), s(28))
    A.s_cmp_ge_u32(s(27), 24); A.s_cselect_b32(SRC[0], PWU[0], PWG[0]); A.s_cselect_b32(SRC[1], PWU[1], PWG[1]); A.s_cselect_b32(s(28), 1, 0); A.s_cselect_b32(s(29), 24, 0)
    A.s_mov_b32(SRC[2], D * F * 2); A.s_mov_b32(SRC[3], 0x20000)
    A.s_sub_u32(s(27), s(27), s(29)); A.s_lshl_b32(s(27), s(27), 1); A.s_bfe_u32(s(26), s(26), (1 << 16) | 3); A.s_add_u32(s(27), s(27), s(26))
    A.s_mul_i32(sj, s(27), 43); A.s_lshr_b32(sj, sj, 7); A.s_mul_i32(s(26), sj, 3); A.s_sub_u32(st, s(27), s(26))
    A.s_lshl_b32(so, s(27), 6); A.s_mul_i32(s(26), w, 160 * 3072); A.s_add_u32(so, so, s(26))
    A.v_lshrrev_b32(t0, 2, lane); A.v_mul_u32_u24(t0, 3072, t0); A.v_lshrrev_b32(t1, 4, lane); A.v_xor_b32(t1, t1, lane); A.v_and_b32(t1, 3, t1)
    A.v_lshl_add_u32(vA[0], t1, 4, t0)
    A.s_mul_i32(sm0, w, 10240)
    tags = []
    for n in range(10):
        A.s_mov_b32('m0', sm0)
        tags.append(A.buffer_load_dwordx4(vA[0], SRC, so, mods='offen lds'))
        A.s_add_u32(sm0, sm0, 1024); A.s_add_u32(so, so, 16 * 3072)
    fill()
    A.v_lshlrev_b32(t2, 3, hf); A.v_sub_u32(v(18), pm, t2)
    for u in range(2):
        if u: A.v_subrev_u32(v(18), 16, v(18))
        sel_frag(A, T[u], v(18), t0, t1)
    A.s_mul_i32(s(26), w, 10240)
    A.v_bfe_u32(t0, pm, 2, 2); A.v_xor_b32(t0, t0, hf); A.v_lshlrev_b32(t0, 4, t0); A.v_lshl_add_u32(t0, pm, 6, t0); A.v_add_u32(v(19), s(26), t0)
    A.v_xor_b32(v(20), 32, v(19))
    for bb in range(5):
        A.wait_vm(tags[2 * bb + 1])
        if bb == 0: stamp()
        tg = [A.ds_read_b128(AF[(2 * bb + u) % 6], v(19 + u), mods=f'offset:{bb*2048}') for u in range(2)]
        for u in range(2):
            A.wait_lg(tg[u]); A.v_mfma_f32_32x32x16_bf16(acc[bb], AF[(2 * bb + u) % 6], T[u], acc[bb] if u else 0)
    A.s_mul_i32(sb, st, 80); A.s_add_u32(sb, sb, s(28)); A.s_mul_i32(s(26), w, 20); A.s_add_u32(sb, sb, s(26)); A.s_lshl_b32(sb, sb, 10)
    A.s_mul_i32(s(26), sj, W3_J); A.s_add_u32(sb, sb, s(26)); A.s_add_u32(sb, sb, W3_OFF)
    A.v_add_u32(v(22), sb, l16)
    center_store(1, [v(22)], [2048])
    end()
    A.label('PP_w24'); A.cmt('role W2/W4')
    su = s(21)
    rowi = [v(32 + k) for k in range(5)]; chk = [v(37 + k) for k in range(5)]
    for n in range(5):
        A.v_add_u32(t0, 64 * n, lane); A.v_mul_u32_u24(t1, 205, t0); A.v_lshrrev_b32(rowi[n], 11, t1)
        A.v_mul_u32_u24(t2, 10, rowi[n]); A.v_sub_u32(t2, t0, t2); A.v_lshlrev_b32(chk[n], 4, t2)
    A.s_sub_u32(su, b, B_W24); A.s_mul_i32(su, su, 12); A.s_add_u32(su, su, w)
    A.s_mul_i32(sm0, w, 15360)
    dst = [s(33), s(34), s(35)]
    last = []
    SR2 = s(36, 4)
    for it in range(3):
        L2, LG = A.newlabel('PP_w2'), A.newlabel('PP_go')
        A.s_cmp_ge_u32(su, 384); A.s_cbranch_scc1(L2)
        srd(A, SR2, PWD, F * D * 2)
        A.s_lshr_b32(s(26), su, 3); A.s_and_b32(s(27), su, 7)
        A.s_mul_i32(dst[it], s(27), 48); A.s_add_u32(dst[it], dst[it], s(26)); A.s_mul_i32(dst[it], dst[it], 5120); A.s_add_u32(dst[it], dst[it], W4_OFF)
        A.s_lshl_b32(s(26), s(26), 5)
        for n in range(5): A.v_add_u32(vA[n], s(26), rowi[n])
        A.s_branch(LG)
        A.label(L2)
        srd(A, SR2, PWO, D * D * 2)
        A.s_sub_u32(s(28), su, 384); A.s_lshr_b32(s(26), s(28), 3); A.s_and_b32(s(27), s(28), 7)
        A.s_mul_i32(dst[it], s(27), 20); A.s_add_u32(dst[it], dst[it], s(26)); A.s_mul_i32(dst[it], dst[it], 5120); A.s_add_u32(dst[it], dst[it], W2_OFF)
        A.s_cmp_ge_u32(su, 544); A.s_cselect_b32(dst[it], OOB, dst[it])
        A.s_lshl_b32(s(26), s(26), 5)
        for n in range(5):
            kp = vA[n]
            A.v_add_u32(kp, s(26), rowi[n])
            A.v_mul_u32_u24(t0, 1639, kp); A.v_lshrrev_b32(t0, 16, t0); A.v_mul_u32_u24(t0, 40, t0)
            A.v_sub_u32(t1, kp, t0)
            A.v_lshrrev_b32(t2, 4, t1); A.v_mul_u32_u24(t2, 20, t2); A.v_and_b32(t3, 15, t1); A.v_add_u32(t2, t2, t3)
            A.v_bfe_u32(t3, t1, 2, 1); A.v_mul_u32_u24(t3, 20, t3); A.v_and_b32(kp, 3, t1); A.v_add3_u32(t3, t3, kp, 16)
            A.v_cmp_gt_u32('vcc', 32, t1); A.v_cndmask_b32(t2, t3, t2, 'vcc')
            A.v_add_u32(kp, t0, t2)
        A.label(LG)
        A.s_mul_i32(so, s(27), 160)
        for n in range(5):
            A.v_mad_u32_u24(vA[n], vA[n], A_const(A, s(29), 1280), chk[n])
            A.s_mov_b32('m0', sm0)
            tgl = A.buffer_load_dwordx4(vA[n], SR2, so, mods='offen lds')
            A.s_add_u32(sm0, sm0, 1024)
        last.append(tgl)
        A.s_add_u32(su, su, 4)
    fill()
    row, qp, Q = v(14), v(15), v(16)
    A.v_bfe_u32(qp, lane, 2, 2); A.v_lshrrev_b32(Q, 4, lane)
    A.v_lshl_add_u32(row, qp, 3, r)
    SE = [T[0], T[1], T[2]]
    A.v_lshlrev_b32(t2, 3, Q)
    A.v_sub_u32(v(19), row, t2); sel_frag(A, SE[0], v(19), t0, t1)
    A.v_add_u32(v(19), 4, v(19)); sel_frag(A, SE[1], v(19), t0, t1)
    A.v_and_b32(v(19), 15, lane); A.v_sub_u32(v(19), v(19), t2); sel_frag(A, SE[2], v(19), t0, t1)
    A.s_mul_i32(s(26), w, 15360)
    A.v_mul_u32_u24(t0, 160, row); A.v_add_u32(t0, s(26), t0)
    A.v_lshl_add_u32(v(19), Q, 4, t0)
    A.v_and_b32(t1, 1, Q); A.v_lshl_add_u32(v(20), t1, 4, t0)
    for it in range(3):
        A.wait_vm(last[it])
        if it == 0: stamp()
        tg = {}
        for cg in range(3):
            for aa in range(2):
                tg[cg, aa] = A.ds_read_b128(AF[cg * 2 + aa], v(19) if cg < 2 else v(20), mods=f'offset:{it*5120 + aa*640 + cg*64}')
        for ft in range(5):
            cg = ft >> 1
            A.wait_lg(tg[cg, 1])
            for aa in range(2):
                A.v_mfma_f32_16x16x32_bf16(v(48 + ft * 8 + aa * 4, 4), AF[cg * 2 + aa], SE[ft & 1 if ft < 4 else 2], 0)
        for ft in range(5):
            o = v(96 + 20 * it + 4 * ft, 4)
            for k in range(4): A.v_cvt_pk_bf16_f32(o[k], v(48 + ft * 8 + 2 * k), v(48 + ft * 8 + 2 * k + 1))
            if ft == 4: A.s_add_u32(dst[it], dst[it], 4096)
            A.buffer_store_dwordx4(o, l16, WS, dst[it], mods=f'offen offset:{(ft & 3) * 1024}')
    end()
    A.label('PP_x'); A.cmt('role X')
    srd(A, SRC, PX, X_SZ)
    A.s_sub_u32(su, b, B_X)
    tk, cp = v(14), v(15)
    A.v_lshrrev_b32(tk, 3, lane); A.s_lshl_b32(s(26), w, 3); A.v_add_u32(tk, s(26), tk)
    A.v_and_b32(cp, 7, lane)
    A.v_mul_u32_u24(t0, 1280, tk); A.v_lshl_add_u32(vA[0], cp, 4, t0)
    A.s_mul_i32(so, su, 40960)
    XF = [v(32 + 4 * k, 4) for k in range(10)]
    tags = [A.buffer_load_dwordx4(XF[k], vA[0], SRC, so, mods=f'offen offset:{k*128}') for k in range(10)]
    fill()
    A.v_lshrrev_b32(t0, 1, cp); A.v_lshlrev_b32(t0, 10, t0); A.v_and_b32(t1, 1, cp); A.v_lshl_add_u32(t1, t1, 5, tk); A.v_lshl_add_u32(v(16), t1, 4, t0)
    A.s_add_u32(so, so, XA_OFF)
    A.v_lshrrev_b32(t0, 1, cp); A.v_lshlrev_b32(t0, 9, t0); A.v_lshl_add_u32(t0, tk, 4, t0); A.v_and_b32(t1, 1, cp); A.v_lshl_add_u32(v(17), t1, 3, t0)
    A.s_lshl_b32(s(26), su, 11); A.s_add_u32(s(26), s(26), STA_OFF)
    A.v_mov_b32(v(18), 0x3f803f80)
    S_, Q_ = v(20), v(21)
    A.v_mov_b32(S_, 0); A.v_mov_b32(Q_, 0)
    for k in range(10):
        A.wait_vm(tags[k])
        if k == 0: stamp()
        A.buffer_store_dwordx4(XF[k], v(16), WS, so, mods='offen')
        A.s_add_u32(so, so, 4096)
        for n in range(4):
            A.v_dot2_f32_bf16(S_, XF[k][n], v(18), S_); A.v_dot2_f32_bf16(Q_, XF[k][n], XF[k][n], Q_)
    A.s_nop(2)
    A.buffer_store_dwordx2(v(20, 2), v(17), WS, s(26), mods='offen')
    end()
    A.label('PP_fillonly')
    fill()
    end()
    A.label('PP_end')
    A.s_endpgm()
    A.finalize()
    return A
def A_const(A, sreg, val):
    A.s_mov_b32(sreg, val); return sreg
if __name__ == '__main__':
    import sys, struct
    for x in range(320): assert (x * 205) >> 10 == x // 5 and (x * 205) >> 11 == x // 10
    for x in range(48): assert (x * 43) >> 7 == x // 3
    A = gen_prepass(diag=len(sys.argv) > 2)
    kn = 'pre_kernel'
    txt = f'; @launch kernel=pre_kernel grid=({PRE_GRID},1,1) block=(256,1,1) lds={PRE_LDS}\n.amdgcn_target "amdgcn-amd-amdhsa--gfx950"\n' + kernel_text(kn, A, 256, 256) + descriptor(kn, 256, 256)
    open(sys.argv[1], 'w').write(txt)
    print(A.count())
```

```python
import sys
from asmlib import *
from layout import *
import prepass, main
NAME = 'interleave_layers__linear_kernel_hedgehog__glu_gated_reglu__prompt'
def build(path, cfg=main.Cfg, extra_empty=0):
    P = prepass.gen_prepass()
    M, nn, ns = main.gen_main(cfg)
    hdr = open('cdna_kernels/' + NAME + '.s.ref').read().split('; Override')[0]
    hdr += f'; @launch kernel=pre_kernel grid=({prepass.PRE_GRID},1,1) block=(256,1,1) lds={prepass.PRE_LDS}\n'
    for k in range(extra_empty): hdr += '; @launch kernel=empty_kernel grid=(256,1,1) block=(256,1,1) lds=0\n'
    hdr += f'; @launch kernel={NAME}_kernel grid=(256,1,1) block=(256,1,1) lds={main.MAIN_LDS}\n'
    txt = hdr + '.amdgcn_target "amdgcn-amd-amdhsa--gfx950"\n' + kernel_text('pre_kernel', P, 256, 256) + kernel_text(NAME + '_kernel', M, 512, 256)
    desc = descriptor('pre_kernel', 256, 256) + descriptor(NAME + '_kernel', 512, 256)
    if extra_empty:
        E = Asm(); E.s_endpgm(); txt += kernel_text('empty_kernel', E, 8, 8); desc += descriptor('empty_kernel', 8, 8)
    open(path, 'w').write(txt + desc)
    print(path, 'main:', dict(M.count()), 'nops inserted', nn, 'stamps', ns)
if __name__ == '__main__':
    class C(main.Cfg): pass
    extra = 0
    for kv in sys.argv[2:]:
        k, x = kv.split('=')
        if k == 'empty': extra = int(x)
        else: setattr(C, k, int(x))
    build(sys.argv[1], C, extra)
```

```python
import re

class R:
    __slots__ = ('f', 'i', 'n')
    def __init__(s, f, i, n=1):
        s.f, s.i, s.n = f, i, n
        lim = 102 if f == 's' else 256
        assert 0 <= i and i + n <= lim, (f, i, n)
    def __str__(s):
        return f'{s.f}{s.i}' if s.n == 1 else f'{s.f}[{s.i}:{s.i+s.n-1}]'
    __repr__ = __str__
    def __getitem__(s, k):
        if isinstance(k, slice):
            a = k.start or 0; b = s.n if k.stop is None else k.stop
            assert 0 <= a < b <= s.n, (s, k)
            return R(s.f, s.i + a, b - a)
        assert 0 <= k < s.n, (s, k)
        return R(s.f, s.i + k, 1)
    def regs(s):
        return {(s.f, s.i + k) for k in range(s.n)}
def v(i, n=1): return R('v', i, n)
def a(i, n=1): return R('a', i, n)
def s(i, n=1): return R('s', i, n)

class Neg:
    def __init__(s, r): s.r = r
    def __str__(s): return f'-{s.r}'
class Abs:
    def __init__(s, r): s.r = r
    def __str__(s): return f'abs({s.r})'

SPECIAL = {'vcc': {('x', 'vcc')}, 'exec': {('x', 'exec')}, 'm0': {('x', 'm0')}, 'vcc_lo': {('x', 'vcc')}, 'vcc_hi': {('x','vcc')},
           'exec_lo': {('x', 'exec')}, 'exec_hi': {('x', 'exec')}}
def regs_of(o):
    if isinstance(o, R): return o.regs()
    if isinstance(o, (Neg, Abs)): return regs_of(o.r)
    if isinstance(o, str) and o in SPECIAL: return set(SPECIAL[o])
    return set()

TRANS = ('v_exp_f32', 'v_log_f32', 'v_rcp_f32', 'v_rsq_f32', 'v_sqrt_f32', 'v_sin_f32', 'v_cos_f32', 'v_rcp_iflag_f32')

class Ins:
    __slots__ = ('op', 'ops', 'mods', 'kind', 'rd', 'wr', 'passes', 'srcc', 'cmt', 'tag')
    def __init__(s, op, ops, mods='', cmt=''):
        s.op, s.ops, s.mods, s.cmt = op, list(ops), mods, cmt
        s.passes = 0; s.srcc = set(); s.tag = None
        s.classify()
    def classify(s):
        op, o = s.op, s.ops
        rd, wr = set(), set()
        def R_(xs):
            for x in xs: rd.update(regs_of(x))
        def W_(xs):
            for x in xs: wr.update(regs_of(x))
        if op.startswith('v_mfma'):
            s.kind = 'mfma'; W_(o[:1]); R_(o[1:]); s.srcc = regs_of(o[3])
            s.passes = 8 if '32x32x16' in op else 4 if '16x16x32' in op else None
            assert s.passes
        elif op.startswith('v_cmp'):
            s.kind = 'valu'; W_(o[:1]); R_(o[1:])
            if op.startswith('v_cmpx'): wr.add(('x', 'exec'))
        elif op.startswith('v_permlane') and 'swap' in op:
            s.kind = 'valu'; W_(o[:2]); R_(o[:2])
        elif op in ('v_readfirstlane_b32', 'v_readlane_b32'):
            s.kind = 'valu'; W_(o[:1]); R_(o[1:])
        elif op.startswith(('v_add_co', 'v_sub_co', 'v_addc_co', 'v_subb_co')):
            s.kind = 'valu'; W_(o[:2]); R_(o[2:])
        elif op.startswith('v_'):
            s.kind = 'valu'; W_(o[:1]); R_(o[1:])
            if op.startswith(('v_fmac', 'v_dot2c', 'v_pk_fmac', 'v_writelane')) or 'sdwa' in op or 'dpp' in op or 'row_' in s.mods or 'quad_perm' in s.mods: R_(o[:1])
            if op.startswith('v_cndmask') and len(o) == 3: rd.add(('x', 'vcc'))
        elif op.startswith(('buffer_load', 'global_load')):
            s.kind = 'vmem'
            if 'lds' in s.mods.split() or '_lds_' in op:
                R_(o); rd.add(('x', 'm0'))
            else:
                W_(o[:1]); R_(o[1:])
                if 'd16' in op: R_(o[:1])
        elif op.startswith(('buffer_store', 'global_store', 'buffer_atomic', 'global_atomic')):
            s.kind = 'vmem'; R_(o)
        elif op in ('buffer_wbl2', 'buffer_inv'):
            s.kind = 'vmem'
        elif op.startswith('ds_read') or op.startswith('ds_bpermute') or op.startswith('ds_swizzle'):
            s.kind = 'ds'; W_(o[:1]); R_(o[1:])
            if 'd16' in op: R_(o[:1])
        elif op.startswith('ds_write'):
            s.kind = 'ds'; R_(o)
        elif op.startswith(('s_load', 's_memtime', 's_memrealtime')):
            s.kind = 'smem'; W_(o[:1]); R_(o[1:])
        elif op.startswith(('s_cmp', 's_bitcmp')):
            s.kind = 'salu'; R_(o); wr.add(('x', 'scc'))
        elif op.startswith(('s_cbranch', 's_branch')):
            s.kind = 'branch'
        elif op in ('s_nop', 's_waitcnt', 's_barrier', 's_endpgm', 's_setprio', 's_sleep'):
            s.kind = 'misc'
        elif op.startswith('s_'):
            s.kind = 'salu'; W_(o[:1]); R_(o[1:])
            if 'saveexec' in op: wr.add(('x', 'exec')); rd.add(('x', 'exec'))
            if op in ('s_addk_i32', 's_mulk_i32'): R_(o[:1])
        else:
            raise ValueError('unknown op ' + op)
        s.rd, s.wr = rd, wr
    def text(s):
        t = s.op
        if s.ops: t += ' ' + ', '.join(fmt(x) for x in s.ops)
        if s.mods: t += ' ' + s.mods
        if s.cmt: t += '  ; ' + s.cmt
        return '\t' + t
def fmt(x):
    if isinstance(x, int):
        return str(x) if -16 <= x <= 64 else hex(x & 0xffffffff)
    if isinstance(x, float):
        return repr(x)
    return str(x)

class Label:
    def __init__(s, name): s.name = name
    def text(s): return s.name + ':'
class Raw:
    def __init__(s, t): s.t = t
    def text(s): return s.t

def vregs(x): return {r for r in x if r[0] in 'va'}
def sregs(x): return {r for r in x if r[0] == 's' or r == ('x', 'vcc')}

def need_states(p, c):
    n = 0
    pk, ck = p.kind, c.kind
    if pk == 'valu':
        pv = vregs(p.wr); ps = sregs(p.wr)
        if pv:
            if ck == 'mfma' and pv & c.rd: n = max(n, 2)
            if ck == 'valu':
                if c.op.startswith('v_permlane') and pv & c.rd: n = max(n, 2)
                if ('dpp' in c.op or 'row_' in c.mods or 'quad_perm' in c.mods) and pv & c.rd: n = max(n, 2)
                if c.op in ('v_readfirstlane_b32', 'v_readlane_b32') and pv & c.rd: n = max(n, 1)
                if p.op.startswith(TRANS) and pv & (c.rd) : n = max(n, 1)
                if ('sdwa' in p.op or 'op_sel' in p.mods) and pv & (c.rd | c.wr): n = max(n, 1)
        if ps:
            if ck == 'vmem' and ps & c.rd: n = max(n, 5)
            if ck == 'valu' and ps & c.rd:
                n = max(n, 4 if c.op in ('v_readlane_b32', 'v_writelane_b32') else 2)
            if ck == 'salu' and ps & c.rd: n = max(n, 1)
        if ('x', 'exec') in p.wr:
            if ck == 'mfma': n = max(n, 4)
            if ck == 'valu': n = max(n, 5)
    if pk == 'valu' and p.op.startswith('v_dot'):
        pv = vregs(p.wr)
        if c.op == p.op:
            if pv & (regs_of(c.ops[1]) | regs_of(c.ops[2])): n = max(n, 3)
        elif pv & (c.rd | c.wr): n = max(n, 3)
    if pk == 'salu':
        if ('x', 'm0') in p.wr and ('x', 'm0') in c.rd and ck in ('vmem', 'ds'): n = max(n, 1)
    if pk == 'mfma':
        D = p.wr
        big = {8: 12, 4: 8}[p.passes]
        if ck == 'mfma':
            ab = regs_of(c.ops[1]) | regs_of(c.ops[2])
            if D & ab: n = max(n, big)
            if D & c.srcc:
                same = (str(c.ops[3]) == str(p.ops[0]) and c.passes == p.passes)
                if not same: n = max(n, {8: 10, 4: 6}[p.passes])
            elif D & c.wr:
                n = max(n, big)
        elif ck in ('valu', 'vmem', 'ds'):
            if D & (c.rd | c.wr): n = max(n, big)
            if ck == 'valu' and p.srcc & c.wr: n = max(n, {8: 7, 4: 3}[p.passes])
    if pk in ('vmem',) and ('store' in p.op or 'atomic' in p.op) and ('x3' in p.op or 'x4' in p.op):
        data = regs_of(p.ops[0]) if p.op.startswith('buffer') else regs_of(p.ops[1])
        if data & c.wr: n = max(n, 2 if ck in ('valu', 'mfma') else 1)
    return n

class Asm:
    def __init__(s):
        s.items = []
        s.vm = []
        s.lg = []
        s.nid = 0
        s.uid = 0
        s.t = 0; s.mfree = 0; s.port = 0; s.link = 0; s.prev = 0; s.done = {}; s.ldsfree = 0
        s.fly = []; s.trace = []; s.label_ = None
    COST = {'hit': (70, 0, 280), 'm2': (105, 128, 560), 'm4': (87, 64, 560), 'kv': (88, 110, 1500), 'st': (70, 0, 330), 'small': (16, 0, 280), 'touch': (40, 30, 560), 'slow': (256, 60, 700)}
    NCAP = 9
    def inflight(s): return sum(1 for d in s.fly if d > s.t)
    def I(s, op, *ops, mods='', cmt='', k=None):
        ins = Ins(op, ops, mods, cmt)
        s.items.append(ins)
        if ins.kind == 'mfma':
            st = max(s.t, s.mfree); s.mfree = st + 4 * ins.passes; s.t = st + 8
        elif ins.kind == 'valu': s.t += 8 if (op.startswith(TRANS) or op.startswith('v_pk')) else 4
        elif op == 's_barrier': s.t += 40
        elif op == 's_nop': s.t += 4 * (int(ops[0]) + 1)
        elif op != 's_waitcnt': s.t += 4
        if ins.kind == 'vmem':
            s.nid += 1; ins.tag = s.nid; s.vm.append(s.nid)
            pc, lc, lat = s.COST[k or ('small' if 'x4' not in op else 'st' if 'store' in op else 'hit')]
            big = pc >= 60
            if big:
                s.fly = [d for d in s.fly if d > s.t]
                if len(s.fly) >= s.NCAP: s.t = s.fly[len(s.fly) - s.NCAP]
            s.port = max(s.port, s.t) + pc
            d = s.port - pc + lat
            if lc:
                s.link = max(s.link, s.t) + lc; d = max(d, s.link - lc + lat)
            s.prev = max(s.prev + (pc if s.prev > s.t else 0) * 0, d, s.prev); s.done[s.nid] = s.prev
            if big: s.fly.append(s.prev)
            s.trace.append((s.t, s.prev, s.label_ or k or op))
            return s.nid
        if ins.kind == 'ds':
            s.nid += 1; ins.tag = s.nid; s.lg.append(s.nid)
            c = 52 if 'write_b128' in op else 16 if 'b128' in op else 8
            s.ldsfree = max(s.ldsfree, s.t) + c; s.done[s.nid] = s.ldsfree + 64
            return s.nid
        if ins.kind == 'smem':
            s.lg.append('smem')
        return None
    def __getattr__(s, op):
        if op.startswith(('v_', 's_', 'ds_', 'buffer_', 'global_')):
            return lambda *ops, **kw: s.I(op, *ops, **kw)
        raise AttributeError(op)
    def label(s, name): s.items.append(Label(name))
    def newlabel(s, base='L'):
        s.uid += 1; return f'{base}_{s.uid}'
    def raw(s, t): s.items.append(Raw(t))
    def cmt(s, t): s.items.append(Raw('\t; ' + t))
    def wait_vm(s, tag=None):
        if tag is None:
            if s.vm: s.I('s_waitcnt', 'vmcnt(0)'); s.t = max(s.t, s.prev)
            s.vm = []; return
        if tag not in s.vm: return
        s.t = max(s.t, s.done.get(tag, 0))
        k = s.vm.index(tag); n = len(s.vm) - 1 - k
        n = min(n, 63)
        s.I('s_waitcnt', f'vmcnt({n})')
        s.vm = s.vm[len(s.vm) - n:] if n else []
    def wait_lg(s, tag=None):
        if tag is None or 'smem' in s.lg:
            if s.lg: s.I('s_waitcnt', 'lgkmcnt(0)'); s.t = max([s.t] + [s.done.get(x, 0) for x in s.lg])
            s.lg = []; return
        if tag not in s.lg: return
        s.t = max(s.t, s.done.get(tag, 0))
        k = s.lg.index(tag); n = len(s.lg) - 1 - k
        n = min(n, 15)
        s.I('s_waitcnt', f'lgkmcnt({n})')
        s.lg = s.lg[len(s.lg) - n:] if n else []
    def force_wait_all(s):
        s.I('s_waitcnt', 'vmcnt(0) lgkmcnt(0)'); s.vm = []; s.lg = []
    def vm_done(s, tag): return tag not in s.vm
    def finalize(s, window=24):
        out = []; hist = []
        nins = 0
        for it in s.items:
            if not isinstance(it, Ins):
                out.append(it); continue
            need = 0; dist = 0
            for p in reversed(hist):
                req = need_states(p, it)
                if req > dist: need = max(need, req - dist)
                dist += (int(p.ops[0]) + 1) if p.op == 's_nop' else 1
                if dist >= window: break
            while need > 0:
                k = min(need, 16)
                nop = Ins('s_nop', [k - 1]); out.append(nop); hist.append(nop); need -= k; nins += 1
            out.append(it); hist.append(it)
            if len(hist) > 64: hist = hist[-40:]
        s.items = out
        return nins
    def text(s):
        return '\n'.join(it.text() for it in s.items) + '\n'
    def count(s):
        from collections import Counter
        return Counter(it.kind for it in s.items if isinstance(it, Ins))

def kernel_text(name, asm, vgpr, accum, sgpr=102):
    return (f'.text\n.globl {name}\n.p2align 8\n.type {name},@function\n{name}:\n' + asm.text())
def descriptor(name, vgpr, accum, sgpr=102):
    return (f'.section .rodata,"a"\n.p2align 6\n.amdhsa_kernel {name}\n  .amdhsa_next_free_vgpr {vgpr}\n  .amdhsa_next_free_sgpr {sgpr}\n'
            f'  .amdhsa_accum_offset {accum}\n  .amdhsa_group_segment_fixed_size 0\n  .amdhsa_kernarg_size 88\n  .amdhsa_user_sgpr_count 2\n'
            f'  .amdhsa_user_sgpr_kernarg_segment_ptr 1\n  .amdhsa_system_sgpr_workgroup_id_x 1\n.end_amdhsa_kernel\n')
```

```python
S, D, H, DH, F = 2048, 640, 32, 20, 1536
W1_OFF = 0;                 W1_J = 163840;  W1_SZ = 16 * W1_J
W2_OFF = W1_OFF + W1_SZ;    W2_SZ = 8 * 20 * 5120
W3_OFF = W2_OFF + W2_SZ;    W3_J = 245760;  W3_SZ = 16 * W3_J
W4_OFF = W3_OFF + W3_SZ;    W4_SZ = 8 * 48 * 5120
X_SZ = S * D * 2
XA_OFF = W4_OFF + W4_SZ
XB_OFF = XA_OFF + 2 * X_SZ
O_OFF = XB_OFF + 2 * X_SZ
H_SZ = S * F * 2
H_OFF = O_OFF + 2 * X_SZ
ST_SZ = S * 8 * 2 * 4
STA_OFF = H_OFF + 2 * H_SZ
STB_OFF = STA_OFF + 2 * ST_SZ
KV_SLOT = 3456
KV_SZ = 256 * KV_SLOT
KVP_OFF = STB_OFF + 2 * ST_SZ
FLG_OFF = KVP_OFF + 2 * KV_SZ
FLG_SZ = 2 * 4 * 16 * 256
XID_OFF = FLG_OFF + FLG_SZ
ZERO_SZ = 9 * 4096
PF_OFF = FLG_OFF + ZERO_SZ
DBG_OFF = PF_OFF + 256 * 128
DBG_SZ = 256 * 4 * 256
WS_USED = DBG_OFF + DBG_SZ
OOB = 0x40000000
class Bufs:
    def __init__(s, alias):
        s.alias = alias
        s.o_tile = 49152 if alias else 20480
    def xa(s, l): return XA_OFF if s.alias else XA_OFF + l * X_SZ
    def xb(s, l): return XA_OFF if s.alias else XB_OFF + l * X_SZ
    def o(s, l): return H_OFF if s.alias else O_OFF + l * X_SZ
    def h(s, l): return H_OFF if s.alias else H_OFF + l * H_SZ
    def sta(s, l): return STA_OFF if s.alias else STA_OFF + l * ST_SZ
    def stb(s, l): return STA_OFF if s.alias else STB_OFF + l * ST_SZ
K_O, K_XB, K_H, K_XA = 0, 1, 2, 3
def flg(layer, kind): return FLG_OFF + (layer * 4 + kind) * 4096
def perm32(m):
    g, h, r = m >> 3, (m >> 2) & 1, m & 3
    return 16 * (g >> 1) + 8 * h + 4 * (g & 1) + r
def kperm_o(kpos):
    jj, pos = divmod(kpos, 40)
    if pos < 32: h, d = pos >> 4, pos & 15
    else: h, d = (pos - 32) >> 2, 16 + (pos & 3)
    return 40 * jj + 20 * h + d
def feat80(ft, row):
    q, r = row >> 2, row & 3
    return 32 * (ft >> 1) + 8 * q + 4 * (ft & 1) + r if ft < 4 else 64 + row
if __name__ == '__main__':
    for k, x in list(globals().items()):
        if isinstance(x, int): print(k, x, hex(x))
```

```python
from asmlib import *
from layout import *
from prepass import srd, sel_frag, emit_prep, B_W3, B_X, B_W24, B_END
from collections import defaultdict

LOG2E = 0x3fb8aa3b
SLOT = 16384
TR = 0
KVB = 6 * SLOT
RD = 6 * SLOT + 4096
MAIN_LDS = 163840
SPIN = 1 << 17

class Cfg:
    diag = False
    fine = None
    alias = 1
    touch = 1
    early = 1
    LA1 = 10
    nt1 = 0; nt2 = 0; nt3 = 0; nt4 = 0
    help = 1; psc1 = 1; pfat = 72; LK = 40; backlog = 800; win = 4; mix1 = 0; mix3 = 0; mix4 = 0; alt = 0; qslack = 0; kvdelay = 900; LA4 = 3
    kvld_at = 146

def gen_main(cfg=Cfg, ev_in=None):
    A = Asm()
    B = Bufs(cfg.alias)
    ev = {}; ev_in = ev_in or {}
    tail = []
    WS, OUT, XIN = s(8, 4), s(12, 4), s(16, 4)
    b, w, si, sj, sth, sfs, sfast = s(2), s(20), s(21), s(22), s(23), s(24), s(25)
    t_s = [s(26), s(27), s(28), s(29)]
    sW1, sW3, sW2, sW4, sXu, sSTu, sKVw, sKVr, sFl = (s(30 + k) for k in range(9))
    sM0w, sXst, sSTst, sOst, sHst, sFlW1, sFlW2, sxcc, sspin = (s(39 + k) for k in range(9))
    sOld = [s(48 + k) for k in range(4)]; sHld = [s(52 + k) for k in range(4)]
    so, so2 = s(88), s(89)
    POUT, PDBG, PX, PWS = s(56, 2), s(58, 2), s(60, 2), s(62, 2)
    DBG = s(84, 4); sNonce = s(90)
    nstamp = [0]; STAMPS = [s(64 + k) for k in range(20)] + [s(91), s(92), s(95), s(100), s(101), s(3), s(4), s(5), s(6), s(7), s(0), s(1)]
    def stamp(tag=None):
        if tag in (None, 'always'): ev.setdefault('stamps', []).append(A.t)
        if cfg.diag and (tag == cfg.fine or tag == 'always'):
            A.wait_lg(); A.s_memtime(s(98, 2)); A.wait_lg(); A.s_mov_b32(STAMPS[nstamp[0]], s(98)); nstamp[0] += 1
    tid = v(0); L16, L16b, L16c = v(1), v(2), v(3)
    (vXst0, vXst2, vSTst, vSTld, vOst0, vOst1, vOst2, vHst, vOUT0, vOUT2, vFlA, vFlB, vZ, vKVst0, vKVst1, vKVld,
     vTRw, vTRa, vTRb, vKBw, vKBr0, vKBr1, vRDr, vT) = (v(4 + k) for k in range(24))
    vRDw = [None, v(28), v(29), v(30)]
    vrs = v(31)
    SEL = v(32, 4)
    RES = v(36, 20); DUMMY = tid
    sBk = s(94)
    RING = [v(56 + 4 * k, 4) for k in range(4)]
    ACC = v(72, 80)
    TB = v(152, 32); PR = v(184, 64); MISC = v(248, 8)
    def lds_addr(off):
        return ((L16, L16b, L16c)[off >> 16], off & 0xffff)

    A.s_cmp_ge_u32(b, 256); A.s_cbranch_scc1('M_end')
    def after_karg():
        A.s_mov_b32(PX[0], s(40)); A.s_mov_b32(PX[1], s(41))
        srd(A, DBG, PDBG, 256)
        if cfg.diag: A.s_memrealtime(s(96, 2))
        stamp('always')
        L = A.newlabel('nononce')
        A.s_cmp_lg_u32(b, 0); A.s_cbranch_scc1(L)
        A.s_memrealtime(s(98, 2)); A.v_lshlrev_b32(v(10), 8, v(0)); A.wait_lg()
        A.s_or_b32(s(98), s(98), 1); A.v_mov_b32(v(9), s(98))
        A.buffer_store_dword(v(9), v(10), DBG, 0, mods='offen sc1')
        A.label(L)
    def fill():
        t0, t1, F4, Z4 = v(9), v(10), v(28, 4), v(24, 4)
        a0, a1, a2 = s(31), s(32), s(95)
        A.s_and_b32(a0, b, 7); A.s_lshl_b32(a0, a0, 1); A.s_lshr_b32(a1, b, 7); A.s_add_u32(a0, a0, a1)
        A.s_bfe_u32(a1, b, (4 << 16) | 3)
        for k in range(4): A.v_mov_b32(F4[k], -1); A.v_mov_b32(Z4[k], 0)
        A.s_lshl_b32(a2, a1, 4); A.s_add_u32(a2, a2, a0); A.s_mul_i32(a2, a2, KV_SLOT); A.s_add_u32(a2, a2, KVP_OFF)
        A.v_lshlrev_b32(t0, 4, v(0)); A.v_cmp_gt_u32('vcc', KV_SLOT // 16, v(0)); A.v_mov_b32(t1, OOB); A.v_cndmask_b32(t0, t1, t0, 'vcc')
        A.buffer_store_dwordx4(F4, t0, WS, a2, mods='offen sc1')
        A.s_add_u32(a2, a2, KV_SZ)
        A.buffer_store_dwordx4(F4, t0, WS, a2, mods='offen sc1')
        A.v_cmp_gt_u32('vcc', 16, v(0)); A.v_cndmask_b32(t0, t1, t0, 'vcc')
        A.s_lshl_b32(a0, a0, 8); A.s_lshl_b32(a2, a1, 12); A.s_add_u32(a2, a2, a0); A.s_add_u32(a2, a2, FLG_OFF)
        A.s_cmp_lt_u32(a1, 8); A.s_cselect_b32(a2, a2, OOB)
        A.buffer_store_dwordx4(Z4, t0, WS, a2, mods='offen sc1')
        A.buffer_load_dword(v(255), Z4[0], DBG, 0, mods='offen sc1')
    def pstamp(k):
        if cfg.diag and cfg.fine == 'pp':
            A.wait_lg(); A.s_memtime(s(98, 2)); A.wait_lg(); A.s_mov_b32(STAMPS[k], s(98))
    if cfg.diag and cfg.fine == 'pp': A.s_mov_b32(STAMPS[1], 0); A.s_mov_b32(STAMPS[2], 0)
    emit_prep(A, fill, after_karg, ' sc1' if cfg.psc1 else '', pstamp, cfg.help)
    if cfg.diag and cfg.fine == 'pp': nstamp[0] = 3
    A.label('PP_done')
    A.t = 0; A.mfree = A.port = A.link = A.prev = A.ldsfree = 0; A.fly = []; A.trace = []
    stamp(); stamp('pp')
    lane, t0, t1, t2, t3, hf, l15, q = (v(152 + k) for k in range(8))
    m, g, h, r = (v(160 + k) for k in range(4))
    vN = v(255); vPF0, vPF1 = RES[0], RES[1]; PFD = RES[2:4]
    Ln = A.newlabel('nonce'); Lo = A.newlabel('nonceok')
    A.s_getreg_b32(sxcc, 'hwreg(HW_REG_XCC_ID, 0, 4)')
    A.v_mov_b32(t3, OOB); A.v_cmp_eq_u32('vcc', 0, tid); A.v_cndmask_b32(t1, t3, tid, 'vcc'); A.v_mov_b32(t0, 0)
    A.s_mov_b32(sspin, 0)
    A.I('s_waitcnt', 'vmcnt(0)')
    stamp('pp')
    A.label(Ln)
    A.v_readfirstlane_b32(sNonce, vN); A.s_cmp_lg_u32(sNonce, 0); A.s_cbranch_scc1(Lo)
    A.s_add_u32(sspin, sspin, 1); A.s_cmp_gt_u32(sspin, SPIN); A.s_cbranch_scc1(Lo)
    A.buffer_load_dword(vN, t0, DBG, 0, mods='offen sc1'); A.wait_vm()
    A.s_branch(Ln)
    A.label(Lo)
    A.s_not_b32(t_s[0], sNonce); A.s_andn2_b32(t_s[0], t_s[0], 15); A.s_or_b32(sxcc, sxcc, t_s[0])
    A.v_mov_b32(PFD[0], sNonce); A.v_mov_b32(PFD[1], sxcc)
    A.s_lshl_b32(t_s[0], b, 7); A.s_add_u32(t_s[0], t_s[0], PF_OFF)
    A.s_barrier()
    A.buffer_store_dwordx2(PFD, t1, WS, t_s[0], mods='offen sc1')
    A.s_mov_b32(sfast, 0)
    stamp(); stamp('pp')
    A.v_and_b32(lane, 63, tid)
    A.v_lshlrev_b32(L16, 4, lane)
    A.s_and_b32(t_s[0], b, 7); A.s_lshr_b32(t_s[1], b, 3); A.s_and_b32(sj, t_s[1], 15); A.s_lshr_b32(t_s[1], t_s[1], 4)
    A.s_lshl_b32(si, t_s[0], 1); A.s_add_u32(si, si, t_s[1])
    A.s_lshr_b32(sth, sj, 3); A.s_and_b32(sfs, sj, 7)
    A.s_lshl_b32(sM0w, w, 12)
    A.s_mul_i32(sW1, sj, W1_J); A.s_add_u32(sW1, sW1, sM0w)
    if W1_OFF: A.s_add_u32(sW1, sW1, W1_OFF)
    A.s_lshl_b32(t_s[0], si, 2); A.s_add_u32(t_s[0], t_s[0], w); A.s_mul_i32(sXu, t_s[0], 40960); A.s_lshl_b32(sSTu, t_s[0], 11)

    def dma_chunk(base, c, slot, nt=0):
        res = {}
        def mk(k):
            def f():
                if k == 0:
                    A.s_add_u32(so2, base, c * SLOT); A.s_add_u32('m0', sM0w, slot * SLOT)
                res['tag'] = A.buffer_load_dwordx4(L16, WS, so2, mods=f'offen offset:{k*1024} lds', k='m2')
            return f
        return [mk(k) for k in range(4)], res
    w1tag = {}
    def issue_w1(cs):
        out = []
        for c in cs:
            fl, res = dma_chunk(sW1, c, c, cfg.nt1); w1tag[c] = res; out += fl
        return out
    XF = [a(4 * k, 4) for k in range(40)]
    def xloads(base_const):
        tags = {}
        def mk(k):
            def f():
                if k % 4 == 0:
                    if k == 0: A.s_add_u32(so, sXu, base_const)
                    else: A.s_add_u32(so, so, 4096)
                tags[k] = A.buffer_load_dwordx4(XF[k], L16, WS, so, mods=f'offen offset:{(k & 3)*1024} sc1')
            return f
        return [mk(k) for k in range(40)], tags
    srd(A, OUT, POUT, X_SZ); srd(A, XIN, PX, X_SZ)
    A.v_add_u32(L16b, 0x10000, L16); A.v_add_u32(L16c, 0x20000, L16)
    A.v_lshrrev_b32(hf, 5, lane); A.v_and_b32(l15, 15, lane); A.v_lshrrev_b32(q, 4, lane)
    A.v_and_b32(m, 31, lane); A.v_lshrrev_b32(g, 3, m); A.v_bfe_u32(h, m, 2, 1); A.v_and_b32(r, 3, m)
    A.s_mul_i32(sW3, sj, W3_J); A.s_add_u32(sW3, sW3, sM0w); A.s_add_u32(sW3, sW3, W3_OFF)
    A.s_mul_i32(t_s[0], sfs, 20); A.s_mul_i32(t_s[1], w, 5); A.s_add_u32(t_s[0], t_s[0], t_s[1]); A.s_mul_i32(sW2, t_s[0], 5120); A.s_add_u32(sW2, sW2, W2_OFF)
    A.s_mul_i32(t_s[0], sfs, 48); A.s_mul_i32(t_s[1], w, 12); A.s_add_u32(t_s[0], t_s[0], t_s[1]); A.s_mul_i32(sW4, t_s[0], 5120); A.s_add_u32(sW4, sW4, W4_OFF)
    A.s_mul_i32(sKVr, sj, 16 * KV_SLOT); A.s_mul_i32(t_s[0], si, KV_SLOT); A.s_add_u32(sKVw, sKVr, t_s[0])
    A.s_lshl_b32(sFl, si, 8)
    A.s_lshl_b32(t_s[0], w, 4); A.s_add_u32(t_s[0], t_s[0], sj); A.s_lshl_b32(t_s[0], t_s[0], 2); A.s_add_u32(sFlW1, sFl, t_s[0])
    A.s_lshl_b32(t_s[0], sth, 2); A.s_add_u32(t_s[0], t_s[0], w); A.s_lshl_b32(t_s[0], t_s[0], 3); A.s_add_u32(t_s[0], t_s[0], sfs)
    A.s_lshl_b32(t_s[0], t_s[0], 2); A.s_add_u32(sFlW2, sFl, t_s[0])
    A.s_lshl_b32(t_s[0], si, 2); A.s_lshl_b32(t_s[1], sth, 1); A.s_add_u32(t_s[0], t_s[0], t_s[1]); A.s_lshr_b32(t_s[1], w, 1); A.s_add_u32(t_s[0], t_s[0], t_s[1])
    A.s_mul_i32(sXst, t_s[0], 40960); A.s_mul_i32(t_s[1], sfs, 5120); A.s_add_u32(sXst, sXst, t_s[1])
    A.s_lshl_b32(sSTst, t_s[0], 11); A.s_and_b32(t_s[1], w, 1); A.s_lshl_b32(t_s[1], t_s[1], 10); A.s_add_u32(sSTst, sSTst, t_s[1])
    A.s_lshl_b32(t_s[1], sfs, 7); A.s_add_u32(sSTst, sSTst, t_s[1])
    A.s_mul_i32(sOst, si, 8 * B.o_tile)
    A.s_mul_i32(sHst, si, 393216); A.s_mul_i32(t_s[1], sj, 3072); A.s_add_u32(sHst, sHst, t_s[1])
    for tau in range(4):
        A.s_add_u32(t_s[0], w, tau); A.s_and_b32(t_s[0], t_s[0], 3)
        if tau:
            A.s_mul_i32(t_s[1], t_s[0], 15360); A.s_add_u32(t_s[1], t_s[1], RD + (3 - tau) * 5120); A.v_add_u32(vRDw[tau], t_s[1], L16)
        A.s_lshl_b32(t_s[1], sth, 2); A.s_add_u32(t_s[0], t_s[0], t_s[1])
        A.s_mul_i32(t_s[1], t_s[0], B.o_tile); A.s_add_u32(sOld[tau], t_s[1], sOst); A.s_mul_i32(t_s[1], w, 5120); A.s_add_u32(sOld[tau], sOld[tau], t_s[1])
        A.s_mul_i32(t_s[1], t_s[0], 49152); A.s_mul_i32(t_s[2], si, 393216); A.s_add_u32(sHld[tau], t_s[1], t_s[2]); A.s_mul_i32(t_s[1], w, 12288); A.s_add_u32(sHld[tau], sHld[tau], t_s[1])
    A.s_mul_i32(t_s[1], w, 15360); A.s_add_u32(t_s[1], t_s[1], RD); A.v_add_u32(vRDr, t_s[1], L16)
    A.s_and_b32(t_s[0], w, 1); A.s_lshl_b32(t_s[0], t_s[0], 4); A.v_add_u32(t3, t_s[0], l15)
    A.v_lshrrev_b32(t0, 1, q); A.v_and_b32(t1, 1, q)
    A.v_lshl_add_u32(t2, t1, 5, t3); A.v_lshlrev_b32(t2, 4, t2); A.v_lshl_add_u32(vXst0, t0, 10, t2)
    A.v_lshl_add_u32(t2, t0, 5, t3); A.v_lshlrev_b32(t2, 4, t2); A.v_lshl_add_u32(t2, t1, 3, t2); A.v_add_u32(vXst2, 4096, t2)
    A.v_lshlrev_b32(t2, 3, l15); A.v_lshl_add_u32(vSTst, hf, 2, t2)
    A.v_lshrrev_b32(t0, 4, m); A.v_lshl_add_u32(t2, t0, 10, t2); A.v_lshl_add_u32(vSTld, hf, 9, t2)
    A.s_lshl_b32(t_s[0], w, 1); A.v_lshrrev_b32(t0, 4, m); A.v_add_u32(t0, t_s[0], t0)
    A.s_mov_b32(t_s[1], 49152); A.v_mul_lo_u32(t1, t0, t_s[1]); A.v_lshl_add_u32(t1, l15, 4, t1); A.v_lshl_add_u32(vHst, hf, 8, t1)
    A.v_mul_u32_u24(t0, B.o_tile, t0); A.v_lshl_add_u32(t0, l15, 4, t0)
    A.s_mul_i32(t_s[0], sj, 5)
    for dst_, add in ((vOst0, 0), (vOst1, 1)):
        A.v_lshl_add_u32(t1, hf, 1, t_s[0])
        if add: A.v_add_u32(t1, 1, t1)
        A.v_lshl_add_u32(dst_, t1, 8, t0)
    A.s_add_u32(t_s[0], t_s[0], 4); A.s_lshl_b32(t_s[0], t_s[0], 8); A.v_add_u32(t1, t_s[0], t0); A.v_lshl_add_u32(vOst2, hf, 3, t1)
    A.s_lshl_b32(t_s[0], si, 7); A.s_lshl_b32(t_s[1], sth, 6); A.s_add_u32(t_s[0], t_s[0], t_s[1]); A.s_lshl_b32(t_s[1], w, 4); A.s_add_u32(t_s[0], t_s[0], t_s[1])
    A.v_add_u32(t0, t_s[0], l15); A.v_mul_u32_u24(t0, 1280, t0); A.s_mul_i32(t_s[0], sfs, 160); A.v_add_u32(t0, t_s[0], t0)
    A.v_lshl_add_u32(vOUT0, q, 4, t0); A.v_lshl_add_u32(t0, q, 3, t0); A.v_add_u32(vOUT2, 128, t0)
    A.v_bfe_u32(t0, lane, 2, 1); A.s_lshl_b32(t_s[0], sth, 1); A.v_add_u32(t0, t_s[0], t0); A.v_lshlrev_b32(t0, 4, t0)
    A.s_lshl_b32(t_s[0], w, 2); A.v_add3_u32(t0, t0, r, t_s[0]); A.v_lshlrev_b32(vFlA, 2, t0)
    A.s_lshl_b32(t_s[0], w, 4); A.v_add_u32(t0, t_s[0], l15); A.v_lshlrev_b32(vFlB, 2, t0)
    A.v_mov_b32(t3, OOB)
    A.v_cmp_eq_u32('vcc', 0, lane); A.v_cndmask_b32(vZ, t3, lane, 'vcc')
    A.s_and_b32(t_s[0], w, 1); A.s_lshl_b32(t_s[0], t_s[0], 4); A.v_add_u32(t0, t_s[0], l15)
    A.s_lshr_b32(t_s[1], w, 1); A.s_mul_i32(t_s[2], t_s[1], 21); A.v_add_u32(t1, t_s[2], t0); A.v_mul_u32_u24(t1, 80, t1)
    A.v_cmp_gt_u32('vcc', 21, t0); A.v_cndmask_b32(t1, t3, t1, 'vcc')
    A.v_lshl_add_u32(vKVst0, q, 4, t1)
    A.v_lshl_add_u32(t1, q, 3, t1); A.v_add_u32(t1, 64, t1); A.v_cmp_gt_u32('vcc', 2, q); A.v_cndmask_b32(vKVst1, t3, t1, 'vcc')
    A.v_lshlrev_b32(t0, 4, tid); A.v_add_u32(vKBw, KVB, t0); A.v_cmp_gt_u32('vcc', 210, tid); A.v_cndmask_b32(vKVld, t3, t0, 'vcc')
    A.s_lshl_b32(t_s[0], w, 5); A.v_lshl_add_u32(t0, hf, 7, m); A.v_add_u32(t0, t_s[0], t0); A.v_mul_u32_u24(vTRw, 160, t0)
    A.s_lshl_b32(t_s[0], t_s[1], 7); A.v_lshrrev_b32(t0, 2, lane); A.v_add_u32(t0, t_s[0], t0)
    A.v_mul_u32_u24(t0, 160, t0); A.v_lshl_add_u32(vTRa, r, 3, t0)
    A.s_and_b32(t_s[0], w, 1); A.s_lshl_b32(t_s[0], t_s[0], 5); A.s_add_u32(t_s[0], t_s[0], 80); A.v_add_u32(vTRb, t_s[0], vTRa)
    A.v_lshl_add_u32(t0, g, 2, r); A.v_mul_u32_u24(t1, 21, hf); A.v_add_u32(t1, t1, t0); A.v_mul_u32_u24(t1, 80, t1); A.v_add_u32(t1, KVB, t1)
    A.v_mov_b32(t2, KVB + 3360)
    A.v_cmp_eq_u32('vcc', h, hf); A.v_cndmask_b32(vKBr0, t2, t1, 'vcc')
    A.v_add_u32(t1, 1280, t1); A.v_cndmask_b32(t1, t2, t1, 'vcc'); A.v_cmp_gt_u32('vcc', 5, t0); A.v_cndmask_b32(vKBr1, t2, t1, 'vcc')
    A.v_mov_b32(t2, -100 & 0xffffffff); A.v_cmp_eq_u32('vcc', h, hf); A.v_cndmask_b32(t0, t2, t0, 'vcc')
    sel_frag(A, SEL, t0, t1, t2)
    A.s_lshr_b32(t_s[0], sj, 1); A.s_and_b32(t_s[1], sj, 1); A.s_lshl_b32(t_s[1], t_s[1], 3); A.s_add_u32(t_s[0], t_s[0], t_s[1])
    A.v_and_b32(t0, 7, lane); A.v_min_u32(t1, 2, t0); A.v_lshl_add_u32(t1, t1, 4, t_s[0])
    A.s_lshl_b32(t_s[0], si, 2); A.s_add_u32(t_s[0], t_s[0], B_X); A.v_and_b32(t2, 3, t0); A.v_add_u32(t2, t_s[0], t2)
    A.v_cmp_gt_u32('vcc', 4, t0); A.v_cndmask_b32(t1, t2, t1, 'vcc'); A.v_lshlrev_b32(vPF0, 7, t1)
    A.s_bfe_u32(t_s[0], b, (1 << 16) | 7); A.s_lshl_b32(t_s[0], t_s[0], 7); A.s_and_b32(t_s[1], b, 7); A.s_add_u32(t_s[0], t_s[0], t_s[1])
    A.v_lshl_add_u32(t0, l15, 3, t_s[0])
    A.v_and_b32(t1, 7, lane); A.v_bfe_u32(t2, lane, 3, 1); A.v_lshl_add_u32(t1, t2, 7, t1); A.s_lshl_b32(t_s[0], sj, 3); A.v_add_u32(t1, t_s[0], t1)
    A.v_mov_b32(t2, B_W24); A.v_add3_u32(t2, t2, lane, -16); A.v_min_u32(t2, B_END - 1, t2)
    A.s_mul_i32(t_s[0], sj, 3); A.v_min_u32(vN2 := v(165), 2, r); A.v_add_u32(vN2, t_s[0], vN2)
    A.v_lshrrev_b32(v(166), 1, vN2); A.v_mad_u32_u24(v(166), h, 24, v(166))
    A.v_and_b32(vN2, 1, vN2); A.v_lshlrev_b32(vN2, 3, vN2); A.v_and_b32(v(167), 7, v(166)); A.v_add_u32(vN2, vN2, v(167))
    A.v_lshrrev_b32(v(166), 3, v(166)); A.v_lshl_add_u32(vN2, v(166), 4, vN2); A.v_add_u32(vN2, B_W3, vN2)
    A.s_cmp_eq_u32(w, 0); A.s_cselect_b64('vcc', -1, 0); A.v_cndmask_b32(t2, t2, t1, 'vcc')
    A.s_cmp_eq_u32(w, 3); A.s_cselect_b64('vcc', -1, 0); A.v_cndmask_b32(t2, t2, vN2, 'vcc')
    A.v_cmp_gt_u32('vcc', 16, lane); A.v_cndmask_b32(t2, t2, t0, 'vcc'); A.v_lshlrev_b32(vPF1, 7, t2)
    def pf_bad():
        A.v_xor_b32(MISC[5], sxcc, PFD[1]); A.v_lshrrev_b32(MISC[5], 4, MISC[5]); A.v_xor_b32(MISC[6], sNonce, PFD[0]); A.v_or_b32(MISC[5], MISC[5], MISC[6])
        A.v_cmp_ne_u32('vcc', 0, MISC[5])
    def pf_poll(va):
        L = A.newlabel('pfpoll'); Lx = A.newlabel('pfx')
        A.s_mov_b32(t_s[3], PF_OFF); A.s_mov_b32(sspin, 0)
        A.label(L)
        A.buffer_load_dwordx2(PFD, va, WS, t_s[3], mods='offen sc1')
        A.s_add_u32(sspin, sspin, 1); A.s_cmp_gt_u32(sspin, SPIN); A.s_cbranch_scc1(Lx)
        A.wait_vm(); pf_bad(); A.s_cbranch_vccnz(L)
        A.label(Lx); A.I('s_waitcnt', 'vmcnt(0)')
    stamp('pp')
    pf_poll(vPF0)
    stamp(); stamp('pp')
    x0, x0tags = xloads(B.xa(0))
    for c in range(2):
        for f in issue_w1([c]): f()
        for k in range(5 * c, 5 * c + 5): x0[k]()

    class Bulk:
        def __init__(q): q.items = []; q.open = set(); q.cur = None; q.quiet = None; q.altc = 0
        def add(q, name, fs, gate, kind, dma=False):
            for f in fs: q.items.append((name, f, gate, kind, dma))
        def gate(q, g): q.open.add(g)
        def predict(q, kind):
            pc, lc, lat = A.COST[kind]
            d = max(A.port, A.t) + lat
            if lc: d = max(d, max(A.link, A.t) + lat)
            return max(d, A.prev)
        def pick(q, prefer=None):
            first = None
            for k, it in enumerate(q.items):
                if it[2] is not None and it[2] not in q.open: continue
                if it[4] and q.cur is not None and it[0] != q.cur: continue
                if first is None: first = k
                if prefer is None or it[3] == prefer: return k
            return first
        def emit(q, k):
            it = q.items.pop(k); A.label_ = it[0]; it[1](); A.label_ = None
            if it[4]: q.cur = it[0] if any(x[0] == it[0] for x in q.items) else None
        def pump(q, force=0, limit=None):
            n = 0
            while True:
                k0 = q.pick()
                kv = k0 is not None and q.items[k0][3] == 'kv'
                if force <= n and ((A.prev - A.t >= (limit or cfg.backlog) and not kv) or A.inflight() >= A.NCAP - 1): return
                if force <= n and n >= 1: return
                pref = None
                if cfg.alt and q.altc % cfg.alt == cfg.alt - 1: pref = 'm4'
                k = q.pick(pref)
                if k is None: return
                if kv: k = k0
                elif q.quiet is not None and q.predict(q.items[k][3]) > q.quiet: return
                q.altc += 1
                q.emit(k); n += 1
        def flush(q, name):
            while any(x[0] == name for x in q.items):
                if q.cur is not None and q.cur != name: k = next(i for i, x in enumerate(q.items) if x[0] == q.cur)
                else: k = next(i for i, x in enumerate(q.items) if x[0] == name)
                it = q.items[k]; assert it[2] is None or it[2] in q.open, ('gate closed', it[0], it[2])
                q.emit(k)
        def quiet_for(q, name):
            q.quiet = ev_in.get(name, 1 << 60) + cfg.qslack
        def mark(q, name):
            ev[name] = A.t; q.quiet = None
    Q = Bulk()
    sTt = s(93)
    def poll(vaddr, sbase, const, need, dst=None):
        dst = dst or MISC[7]
        L = A.newlabel('poll'); Lx = A.newlabel('pollx')
        A.s_add_u32(t_s[3], sbase, const); A.s_mov_b32(sspin, 0)
        A.label(L)
        A.buffer_load_dword(dst, vaddr, WS, t_s[3], mods='offen sc1')
        A.s_add_u32(sspin, sspin, 1); A.s_cmp_gt_u32(sspin, SPIN); A.s_cbranch_scc1(Lx)
        A.wait_vm()
        A.v_cmp_gt_u32('vcc', need, dst)
        A.s_cbranch_vccnz(L)
        A.label(Lx)
        A.I('s_waitcnt', 'vmcnt(0)')
        A.t += 300
    def check_issue(vaddr, sbase, const):
        A.s_add_u32(t_s[3], sbase, const)
        return A.buffer_load_dword(MISC[7], vaddr, WS, t_s[3], mods='offen sc1')
    def check_wait(tag, vaddr, sbase, const, need):
        Lp = A.newlabel('chkpoll'); Lb = A.newlabel('chkok')
        A.wait_vm(tag)
        A.v_cmp_gt_u32('vcc', need, MISC[7]); A.s_cbranch_vccnz(Lp)
        A.label(Lb)
        def slow():
            A.label(Lp); poll(vaddr, sbase, const, need); A.s_branch(Lb)
        tail.append(slow)
    def publish(tag, sidx, const, value):
        Ls = A.newlabel('slow'); Lb = A.newlabel('back')
        A.v_mov_b32(MISC[6], value); A.s_add_u32(t_s[3], sidx, const)
        A.wait_vm(tag)
        A.s_cmp_eq_u32(sfast, 0); A.s_cbranch_scc1(Ls)
        A.buffer_store_dword(MISC[6], vZ, WS, t_s[3], mods='offen')
        A.label(Lb)
        def slow():
            A.label(Ls)
            A.I('buffer_wbl2', mods='sc1'); A.I('s_waitcnt', 'vmcnt(0)')
            A.buffer_store_dword(MISC[6], vZ, WS, t_s[3], mods='offen sc1')
            A.s_branch(Lb)
        tail.append(slow)
    def sync(tag, sidx, const, vpoll):
        Q.pump(force=cfg.win)
        publish(tag, sidx, const, 1)
        poll(vpoll, sFl, const, 1)
    def touch(vaddr, sbase, const, imm=0):
        def f():
            A.s_add_u32(sTt, sbase, const)
            A.buffer_load_dword(DUMMY, vaddr, WS, sTt, mods=f'offen offset:{imm} sc1', k='touch')
        return f
    def t_O(l): return [touch(x, sOst, B.o(l)) for x in (vOst0, vOst1, vOst2)] if cfg.touch else []
    def t_X(xc, stc): return [touch(vXst0, sXst, xc), touch(vXst0, sXst, xc, 2048), touch(vXst2, sXst, xc), touch(vSTst, sSTst, stc)] if cfg.touch else []
    def t_H(l, p): return [touch(vHst, sHst, B.h(l), p * 1024 + c * 512) for c in range(2)] if cfg.touch else []
    def t_F(va, l, kind): return [touch(va, sFl, flg(l, kind))] if cfg.touch else []
    def spread(sched, items, start, end=None, per=None):
        n = len(items)
        for k, f in enumerate(items):
            idx = start + (k // per if per else (k * (end - start)) // n)
            sched[idx].append(f)
    def V(op, *ops, **kw): return lambda: A.I(op, *ops, **kw)
    def run_valu(fs, every=5):
        for k, f in enumerate(fs):
            f()
            if k % every == every - 1: Q.pump()
    def st_loads(ST, const):
        tag = {}
        def f():
            A.s_add_u32(t_s[2], sSTu, const)
            for k in range(4): tag[0] = A.buffer_load_dwordx2(ST[2 * k: 2 * k + 2], vSTld, WS, t_s[2], mods=f'offen offset:{128*k} sc1', k='touch')
        return f, tag
    def rstd_stream(ST, mode):
        S_, Q_, S2, Q2 = ST[0], ST[1], ST[2], ST[3]
        o = [V('v_add_f32', S_, ST[0], ST[2]), V('v_add_f32', Q_, ST[1], ST[3]), V('v_add_f32', ST[4], ST[4], ST[6]), V('v_add_f32', ST[5], ST[5], ST[7]),
             V('v_add_f32', S_, S_, ST[4]), V('v_add_f32', Q_, Q_, ST[5]), V('v_mov_b32', S2, S_), V('v_mov_b32', Q2, Q_),
             V('v_permlane32_swap_b32', S_, S2), V('v_permlane32_swap_b32', Q_, Q2), V('v_add_f32', S_, S_, S2), V('v_add_f32', Q_, Q_, Q2),
             V('v_mul_f32', S_, 0x3acccccd, S_), V('v_mul_f32', Q_, 0x3acccccd, Q_), V('v_fma_f32', Q_, Neg(S_), S_, Q_),
             V('v_max_f32', Q_, 0, Q_), V('v_add_f32', Q_, 0x3727c5ac, Q_)]
        if mode == 'k': o += [V('v_rsq_f32', vrs, Q_), V('v_mul_f32', MISC[0], LOG2E, vrs)]
        else: o += [V('v_rcp_f32', vrs, Q_)]
        return o
    def softmax_stream(P, T, dest):
        sc, mx, mn, sp, sn = MISC[0], MISC[1], MISC[2], MISC[3], MISC[4]
        o = [V('v_max3_f32', mx, P[0], P[1], P[2]), V('v_min3_f32', mn, P[0], P[1], P[2])]
        for k in range(3, 19, 2): o += [V('v_max3_f32', mx, mx, P[k], P[k + 1]), V('v_min3_f32', mn, mn, P[k], P[k + 1])]
        o += [V('v_max_f32', mx, mx, P[19]), V('v_min_f32', mn, mn, P[19]), V('v_mul_f32', mx, sc, mx), V('v_mul_f32', mn, sc, mn)]
        for k in range(20):
            o += [V('v_fma_f32', T[k], P[k], sc, Neg(mx)), V('v_fma_f32', P[k], Neg(P[k]), sc, mn)]
            if k >= 1: o += [V('v_exp_f32', T[k - 1], T[k - 1]), V('v_exp_f32', P[k - 1], P[k - 1])]
            if k == 3: o += [V('v_add_f32', sp, T[0], T[1]), V('v_add_f32', sn, P[0], P[1])]
            if k > 3: o += [V('v_add_f32', sp, sp, T[k - 2]), V('v_add_f32', sn, sn, P[k - 2])]
        o += [V('v_exp_f32', T[19], T[19]), V('v_exp_f32', P[19], P[19]), V('v_add_f32', sp, sp, T[18]), V('v_add_f32', sn, sn, P[18]),
              V('v_add_f32', sp, sp, T[19]), V('v_add_f32', sn, sn, P[19]), V('v_rcp_f32', sp, sp), V('v_rcp_f32', sn, sn)]
        for src, rc, base in ((T, sp, 0), (P, sn, 20)):
            for k in range(0, 20, 2):
                o += [V('v_mul_f32', src[k], rc, src[k]), V('v_mul_f32', src[k + 1], rc, src[k + 1]), V('v_cvt_pk_bf16_f32', dest(base + k), src[k], src[k + 1])]
        return o

    class Stream:
        def __init__(z, name, nchunk, slot, tagd, covered, onbar):
            z.name, z.nchunk, z.slot, z.tagd, z.cov, z.onbar = name, nchunk, slot, tagd, covered, onbar
            z.tags = {}
        def off(z, k): return z.slot[k >> 4] * SLOT + (k & 15) * 1024
        def barrier(z, idx, need=None):
            if need is not None: Q.flush(f'{z.name}{need}')
            c = z.cov if need is None else max(z.cov, need)
            while c + 1 < z.nchunk and 'tag' in z.tagd.get(c + 1, {}) and not any(x[0] == f'{z.name}{c+1}' for x in Q.items) \
                    and A.done[z.tagd[c + 1]['tag']] <= A.t + 100: c += 1
            if c > z.cov: A.wait_vm(z.tagd[c]['tag'])
            z.cov = c
            A.s_barrier(); z.onbar(idx)
        def rd(z, k, idx):
            if (k >> 4) > z.cov: z.barrier(idx, k >> 4)
            ad, off = lds_addr(z.off(k)); z.tags[k] = A.ds_read_b128(RING[k % 4], ad, mods=f'offset:{off}')
        def due(z, idx):
            for c in range(min(z.nchunk - 1, (idx + cfg.LK) >> 4) + 1):
                for k, it in enumerate(Q.items):
                    if it[0] == f'{z.name}{c}':
                        if it[2] not in Q.open: return False
                        if Q.cur is not None and Q.cur != it[0]: k = next(i for i, x in enumerate(Q.items) if x[0] == Q.cur)
                        Q.emit(k); return True
            return False
        def run(z, lo, hi, mk, pre, post, total, mix=0, mix_end=0):
            for idx in range(lo, hi):
                for f in pre.get(idx, []): f()
                if idx + 3 < total and (idx + 3) not in z.tags: z.rd(idx + 3, idx)
                A.wait_lg(z.tags[idx])
                mk(idx)
                for f in post.get(idx, []): f()
                if idx % 2 == 1 and z.due(idx): continue
                if idx < mix_end:
                    if mix and idx % mix == mix - 1: Q.pump(force=1)
                else: Q.pump()

    W2F = [a(160 + 4 * k, 4) for k in range(24)] + [a(80, 4)]
    OF = [a(4 * k, 4) for k in range(20)]
    W4F = [v(152 + 4 * k, 4) for k in range(24)] + [a(160 + 4 * k, 4) for k in range(24)] + [a(4 * k, 4) for k in range(12)]
    HF = [a(48 + 4 * k, 4) for k in range(28)]
    p4order = [3 * jj + p for p in range(3) for jj in range(4)]
    w3slot = {0: 3, 1: 4, 2: 5, 3: 0, 4: 1, 5: 2, 6: 6, 7: 7, 8: 8, 9: 9, 10: 3, 11: 4, 12: 5, 13: 0, 14: 1}
    w1slot = {c: c for c in range(10)}
    w3tag = {}; bk = {'cur': None}; w1tags = {0: w1tag, 1: {}}
    def q_w3(l, c, gate):
        fl, res = dma_chunk(sW3, c, w3slot[c]); w3tag[c] = res; Q.add(f'W3_{l}_{c}', fl, gate, 'm2', True)
    def q_w1(l, c, gate):
        fl, res = dma_chunk(sW1, c, c); w1tags[l][c] = res; Q.add(f'W1_{l}_{c}', fl, gate, 'm2', True)
    def wloads(frags, sbase, order):
        tags = {}
        def mk(ri, mi):
            def f():
                key = (str(sbase), mi >> 2)
                if bk['cur'] != key:
                    A.s_add_u32(sBk, sbase, (mi >> 2) * 4096); bk['cur'] = key
                tags[ri] = A.buffer_load_dwordx4(frags[ri], L16, WS, sBk, mods=f'offen offset:{(mi & 3)*1024}', k='m4')
            return f
        return [mk(ri, mi) for ri, mi in order], tags
    wt = {}
    def enqueue(l):
        for c in (range(2, 10) if l == 0 else (8, 9)): q_w1(l, c, f'p1s{l}')
        Q.add(f'tO{l}', t_O(l), f'p1s{l}', 'touch')
        w2l, wt['w2'] = wloads(W2F, sW2, [(k, k) for k in range(25)])
        Q.add(f'W2_{l}', w2l[:24], f'p1s{l}' if l else 'prep', 'm4'); Q.add(f'W2_{l}', w2l[24:], f't3done{l}', 'm4')
        if l == 0: Q.add('tH0', t_H(0, 0) + t_H(0, 1) + t_H(0, 2), 'B2_0', 'touch')
        Q.add(f'tX{l}', t_X(B.xb(l), B.stb(l)) + t_F(vFlA, l, K_O), f't3done{l}', 'touch')
        for c in (0, 1): q_w3(l, c, f'B1_{l}')
        q_w3(l, 2, f'B2_{l}')
        for c in (3, 4, 5): q_w3(l, c, f'B3_{l}')
        Q.add(f'tH{l}a', t_H(l, 0) + t_F(vFlB, l, K_XB), f'p2s{l}', 'touch')
        for c in (6, 7, 8, 9): q_w3(l, c, f'RD2_{l}')
        Q.add(f'tH{l}b', t_H(l, 1) + t_H(l, 2) + t_F(vFlA, l, K_H), f'p3f{l}_14', 'touch')
        for c in range(10, 15): q_w3(l, c, f'p3f{l}_{c}')
        order = [(5 * n + ft, 5 * p4order[n] + ft) for n in range(12) for ft in range(5)]
        w4l, wt['w4'] = wloads(W4F, sW4, order)
        for k, f in enumerate(w4l): Q.add(f'W4_{l}_{k // 5}', [f], f'Ost{l}' if k < 24 else f'p2g{l}' if k < 48 else f'xfree{l}', 'm4')
        if l == 0:
            Q.add('tX1', t_X(B.xa(1), B.sta(1)) + t_F(vFlB, 1, K_XA), 'p4m', 'touch')
            for c in range(8): q_w1(1, c, 'p4s' if c < 6 else 'RD4')

    def p1(l):
        A.cmt(f'======== P1 layer {l}')
        acc = [ACC[16 * t: 16 * t + 16] for t in range(4)]
        LA = cfg.LA1
        if l == 0: xl, xt = x0, x0tags
        else:
            xl, xt = xloads(B.xa(l))
            for k in range(LA): xl[k]()
        enqueue(l)
        ST = PR[0:8]
        ldst, sttag = st_loads(ST, B.sta(l))
        pre, post = defaultdict(list), defaultdict(list)
        for s_ in range(LA, 40): post[2 * (s_ - LA)].append(xl[s_])
        e0 = 2 * (40 - LA)
        post[e0].append(ldst)
        xid = {}
        def onbar(idx):
            Q.gate(f'p1s{l}')
            if idx >= 80: Q.gate(f'B1_{l}')
        Z = Stream(f'W1_{l}_', 10, w1slot, w1tags[l], -1, onbar)
        def mf(idx):
            if idx < 80: t, s_ = idx & 1, idx >> 1
            else: t, s_ = divmod(idx - 80, 40); t += 2
            if idx < 80 and t == 0: A.wait_vm(xt[s_])
            A.v_mfma_f32_32x32x16_bf16(acc[t], RING[idx % 4], XF[s_], acc[t] if s_ else 0)
        for k in range(3): Z.rd(k, 0)
        if l == 0:
            def pf_issue():
                A.s_mov_b32(t_s[3], PF_OFF); xid['tag'] = A.buffer_load_dwordx2(PFD, vPF1, WS, t_s[3], mods='offen sc1', k='touch')
            def pf_check():
                Lp = A.newlabel('pf1poll'); Lb = A.newlabel('pf1ok')
                A.wait_vm(xid['tag']); pf_bad(); A.s_cbranch_vccnz(Lp); A.label(Lb)
                def slow(): A.label(Lp); pf_poll(vPF1); A.s_branch(Lb)
                tail.append(slow)
                A.v_cmp_ne_u32('vcc', sxcc, PFD[1]); A.s_and_b32(t_s[3], 'vcc_lo', 0xffff); A.s_cmp_eq_u32(t_s[3], 0); A.s_cselect_b32(sfast, 1, 0)
            post[cfg.pfat - 24].append(pf_issue)
            pre[cfg.pfat].append(lambda: (pf_check(), Z.barrier(cfg.pfat), Q.gate('prep')))
        pre[84].append(lambda: Z.barrier(84))
        Pk = [acc[0][k] for k in range(16)] + [acc[1][k] for k in range(4)]
        Tk = [PR[8 + k] for k in range(20)]
        spread(post, [lambda: A.wait_vm(sttag[0])] + rstd_stream(ST, 'k'), 74, 80)
        sm = softmax_stream(Pk, Tk, lambda f: TB[f >> 1])
        Vv = [acc[1][4 + k] for k in range(12)] + [acc[2][k] for k in range(8)]
        def vpack(k0, k1):
            o = []
            for k in range(k0, k1, 2):
                o += [V('v_mul_f32', Vv[k], vrs, Vv[k]), V('v_mul_f32', Vv[k + 1], vrs, Vv[k + 1]), V('v_cvt_pk_bf16_f32', TB[20 + (k >> 1)], Vv[k], Vv[k + 1])]
            return o
        def trw(k): return lambda: A.ds_write_b128(vTRw, TB[4 * k: 4 * k + 4], mods=f'offset:{TR + 16*k}')
        extra = vpack(0, 12) + [V('v_mov_b32', TB[30], 0x3f80), V('v_mov_b32', TB[31], 0)]
        nsh = 150
        spread(post, sm[:nsh], 81, 120)
        Z.run(0, 120, mf, pre, post, 120, cfg.mix1, e0)
        rem = sm[nsh:]; seq = []
        n_after = {len(rem) - 48: 0, len(rem) - 36: 1, len(rem) - 24: 2, len(rem) - 12: 3}
        for k, f in enumerate(rem):
            if k in n_after: seq.append(trw(n_after[k]))
            seq.append(f)
        seq += [trw(4)] + extra + [trw(5)] + vpack(12, 20) + [trw(6), trw(7)]
        run_valu(seq)
        A.wait_lg(); Z.barrier(120, 7); Q.gate(f'B2_{l}')
        stamp()
        kacc = [acc[0][4 * ft: 4 * ft + 4] for ft in range(3)]
        KB = [PR[0:16], PR[16:32], PR[32:48], PR[48:64]]
        ktag = {}
        for ks in range(4):
            for u in range(2): A.ds_read_b64_tr_b16(KB[ks][12 + 2 * u: 14 + 2 * u], vTRb, mods=f'offset:{TR + 5120*ks + 2560*u}')
            for ft in range(3):
                for u in range(2): ktag[ks, ft] = A.ds_read_b64_tr_b16(KB[ks][4 * ft + 2 * u: 4 * ft + 2 * u + 2], vTRa, mods=f'offset:{TR + 5120*ks + 2560*u + 32*ft}')
            if ks >= 1:
                for ft in range(3):
                    A.wait_lg(ktag[ks - 1, ft]); A.v_mfma_f32_16x16x32_bf16(kacc[ft], KB[ks - 1][4 * ft: 4 * ft + 4], KB[ks - 1][12:16], kacc[ft] if ks > 1 else 0)
            Q.pump()
        for ft in range(3):
            A.wait_lg(ktag[3, ft]); A.v_mfma_f32_16x16x32_bf16(kacc[ft], KB[3][4 * ft: 4 * ft + 4], KB[3][12:16], kacc[ft])
        for k in range(120, 123): Z.rd(k, 120)
        KP = acc[1][0:6]
        for k in range(6): A.v_cvt_pk_bf16_f32(KP[k], acc[0][2 * k], acc[0][2 * k + 1])
        for k in range(6): A.v_min_u32(KP[k], 0xfffffffe, KP[k])
        A.s_add_u32(t_s[2], sKVw, KVP_OFF + l * KV_SZ)
        A.buffer_store_dwordx4(KP[0:4], vKVst0, WS, t_s[2], mods='offen sc1')
        A.buffer_store_dwordx2(KP[4:6], vKVst1, WS, t_s[2], mods='offen sc1')
        stamp()
        pre, post = defaultdict(list), defaultdict(list)
        PRF = [PR[4 * k: 4 * k + 4] for k in range(16)]; ptag = {}
        def pld(k):
            def f():
                if k == 0: A.s_add_u32(so, sKVr, KVP_OFF + l * KV_SZ); Q.mark(f'kvld{l}')
                else: A.s_add_u32(so, so, KV_SLOT)
                ptag[k] = A.buffer_load_dwordx4(PRF[k], vKVld, WS, so, mods='offen sc1', k='kv')
            return f
        pl = [pld(k) for k in range(16)]
        Q.quiet_for(f'kvld{l}'); Q.quiet += 500
        Q.items = [(f'KV{l}', f, f'kvgo{l}', 'kv', False) for f in pl] + Q.items
        def kvgo(): Q.gate(f'kvgo{l}'); Q.quiet = None
        pre[cfg.kvld_at].append(kvgo)
        Z.run(120, 160, mf, pre, post, 160)
        Q.gate(f't3done{l}')
        if l == 0:
            A.buffer_load_dwordx4(RES[10:14], vOUT0, XIN, 0, mods='offen', k='slow'); A.buffer_load_dwordx4(RES[14:18], vOUT0, XIN, 0, mods='offen offset:64', k='slow')
            rtag = A.buffer_load_dwordx2(RES[18:20], vOUT2, XIN, 0, mods='offen', k='slow')
        Q.quiet_for(f'Ost{l}')
        Pq = [acc[2][8 + k] for k in range(8)] + [acc[3][k] for k in range(12)]
        Tq = [acc[1][k] for k in range(16)] + [acc[0][k] for k in range(4)]
        def qdest(f): return TB[4 * ((f & 15) >> 2) + 2 * (f >> 4) + ((f & 3) >> 1)] if f < 32 else TB[16 + ((f - 32) >> 1)]
        for k, f in enumerate(softmax_stream(Pq, Tq, qdest)):
            f()
            if k % 5 == 4: Q.pump(limit=cfg.backlog + 1400)
        Q.flush(f'KV{l}')
        stamp()
        Lre = A.newlabel('kvre'); Lrt = A.newlabel('kvretry')
        RACC = v(136, 16); mxu = MISC[5]
        A.s_mov_b32(sspin, 0)
        A.label(Lre)
        for k in range(16):
            A.wait_vm(ptag[k])
            A.v_mfma_f32_32x32x16_bf16(RACC, SEL, PRF[k], RACC if k else 0)
            if k == 0: A.v_max_u32(mxu, PRF[0][0], PRF[0][1])
            else: A.v_max3_u32(mxu, mxu, PRF[k][0], PRF[k][1])
            A.v_max3_u32(mxu, mxu, PRF[k][2], PRF[k][3])
        A.v_cmp_eq_u32('vcc', -1, mxu)
        A.s_cbranch_vccnz(Lrt)
        Lok = A.newlabel('kvok'); A.label(Lok)
        def retry():
            A.label(Lrt)
            A.s_add_u32(sspin, sspin, 1); A.s_cmp_gt_u32(sspin, SPIN >> 2); A.s_cbranch_scc1(Lok)
            A.s_nop(7)
            for f in pl: f()
            A.I('s_waitcnt', 'vmcnt(0)')
            A.s_branch(Lre)
        tail.append(retry)
        for k in range(4): A.v_cvt_pk_bf16_f32(MISC[k], RACC[2 * k], RACC[2 * k + 1])
        A.ds_write_b128(vKBw, MISC[0:4])
        Q.pump()
        A.wait_lg(); A.s_barrier(); Q.gate(f'B3_{l}')
        stamp()
        otag = {}
        for T_ in (1, 0):
            for s_ in range(5): otag[T_, s_] = A.ds_read_b128(PRF[5 * T_ + s_], (vKBr0, vKBr1)[T_], mods=f'offset:{16*s_}')
        oacc = [acc[0], acc[1]]
        for T_ in (1, 0):
            for s_ in range(5):
                A.wait_lg(otag[T_, s_])
                A.v_mfma_f32_32x32x16_bf16(oacc[T_], PRF[5 * T_ + s_], TB[4 * s_: 4 * s_ + 4], oacc[T_] if s_ else 0)
                Q.pump()
        den = MISC[1]
        A.v_add_f32(den, 0x358637bd, oacc[1][4]); A.v_rcp_f32(den, den)
        Ov = [oacc[0][k] for k in range(16)] + [oacc[1][k] for k in range(4)]
        OP = v(136, 10)
        A.s_add_u32(t_s[2], sOst, B.o(l))
        for k in list(range(16, 20, 2)) + list(range(0, 16, 2)):
            A.v_mul_f32(Ov[k], den, Ov[k]); A.v_mul_f32(Ov[k + 1], den, Ov[k + 1]); A.v_cvt_pk_bf16_f32(OP[k >> 1], Ov[k], Ov[k + 1])
            if k == 18: A.buffer_store_dwordx2(OP[8:10], vOst2, WS, t_s[2], mods='offen', k='st')
            if k == 6: A.buffer_store_dwordx4(OP[0:4], vOst0, WS, t_s[2], mods='offen')
            if k == 14: last = A.buffer_store_dwordx4(OP[4:8], vOst1, WS, t_s[2], mods='offen')
        Q.mark(f'Ost{l}'); Q.gate(f'Ost{l}')
        Q.flush(f'W2_{l}')
        if l == 0:
            A.wait_vm(rtag)
            for k in range(10):
                A.v_lshlrev_b32(RES[2 * k], 16, RES[10 + k]); A.v_and_b32(RES[2 * k + 1], 0xffff0000, RES[10 + k])
        stamp()
        sync(last, sFlW1, flg(l, K_O), vFlA)
        stamp()

    def ksplit_gemm(nsteps, WF, wneed, AF, atag, sched, pump_from, mix):
        acc = [[ACC[20 * tau + 4 * ft: 20 * tau + 4 * ft + 4] for ft in range(5)] for tau in range(4)]
        def mf(n, tau, ft):
            if ft == 0: A.wait_vm(atag[n, tau])
            wneed(n, ft)
            A.v_mfma_f32_16x16x32_bf16(acc[tau][ft], WF(n, ft), AF(n, tau), acc[tau][ft] if n else 0)
        def hook(key):
            for f in sched.get(key, []): f()
            if key[2] in (1, 4):
                if key[0] >= pump_from: Q.pump()
                elif mix and key[2] == 1 and key[1] % mix == 0: Q.pump(force=1)
        for n in range(nsteps - 2):
            for tau in range(4):
                for ft in range(5):
                    mf(n, tau, ft); hook((n, tau, ft))
        pend = []
        for ti, tau in enumerate((1, 2, 3, 0)):
            for n in (nsteps - 2, nsteps - 1):
                for ft in range(5):
                    mf(n, tau, ft)
                    k = (n - nsteps + 2) * 5 + ft
                    if k % 2 == 1 and pend: pend.pop(0)()
                    hook((nsteps - 2 + (ti >> 1), 2 * (ti & 1) + (n - nsteps + 2), ft))
            if tau: pend += [(lambda tau=tau, ft=ft: A.ds_write_b128(vRDw[tau], acc[tau][ft], mods=f'offset:{ft*1024}')) for ft in range(5)]
        for f in pend: f()
        return acc
    def reduce_epilogue(acc, final, xconst, stconst, flagconst, evname, gate):
        A.wait_lg(); A.s_barrier()
        rt = {}
        for ft in range(5):
            for k in range(3): rt[ft] = A.ds_read_b128(acc[k + 1][ft], vRDr, mods=f'offset:{k*5120 + ft*1024}')
        for ft in range(5):
            for e in range(0, 4, 2): A.v_pk_add_f32(RES[4 * ft + e: 4 * ft + e + 2], RES[4 * ft + e: 4 * ft + e + 2], acc[0][ft][e:e + 2])
        XP = ACC[0:10]; S2, Q2 = ACC[10:12], ACC[12:14]
        if not final: A.s_add_u32(t_s[2], sXst, xconst)
        for ft in range(5):
            A.wait_lg(rt[ft])
            for e in range(0, 4, 2):
                R2 = RES[4 * ft + e: 4 * ft + e + 2]
                A.v_pk_add_f32(acc[1][ft][e:e + 2], acc[1][ft][e:e + 2], acc[2][ft][e:e + 2])
                A.v_pk_add_f32(R2, R2, acc[3][ft][e:e + 2])
            for e in range(0, 4, 2):
                R2 = RES[4 * ft + e: 4 * ft + e + 2]
                A.v_pk_add_f32(R2, R2, acc[1][ft][e:e + 2])
            for e in range(0, 4, 2): A.v_cvt_pk_bf16_f32(XP[2 * ft + (e >> 1)], RES[4 * ft + e], RES[4 * ft + e + 1])
            if final:
                if ft == 1: A.buffer_store_dwordx4(XP[0:4], vOUT0, OUT, 0, mods='offen')
                if ft == 3: A.buffer_store_dwordx4(XP[4:8], vOUT0, OUT, 0, mods='offen offset:64')
                if ft == 4: A.buffer_store_dwordx2(XP[8:10], vOUT2, OUT, 0, mods='offen')
                continue
            if ft == 1: A.buffer_store_dwordx4(XP[0:4], vXst0, WS, t_s[2], mods='offen')
            if ft == 3: A.buffer_store_dwordx4(XP[4:8], vXst0, WS, t_s[2], mods='offen offset:2048')
            if ft == 4:
                A.buffer_store_dwordx2(XP[8:10], vXst2, WS, t_s[2], mods='offen', k='st')
                A.s_barrier(); Q.gate(gate)
            R0, R1 = RES[4 * ft: 4 * ft + 2], RES[4 * ft + 2: 4 * ft + 4]
            if ft == 0:
                A.v_pk_add_f32(S2, R0, R1); A.v_pk_mul_f32(Q2, R0, R0)
            else:
                A.v_pk_add_f32(S2, S2, R0); A.v_pk_fma_f32(Q2, R0, R0, Q2); A.v_pk_add_f32(S2, S2, R1)
            A.v_pk_fma_f32(Q2, R1, R1, Q2)
        if final: return
        A.v_add_f32(S2[0], S2[0], S2[1]); A.v_add_f32(Q2[0], Q2[0], Q2[1])
        A.s_add_u32(t_s[2], sSTst, stconst)
        A.v_permlane32_swap_b32(S2[0], Q2[0]); A.v_add_f32(S2[0], S2[0], Q2[0]); A.v_mov_b32(S2[1], S2[0])
        A.v_permlane16_swap_b32(S2[0], S2[1]); A.v_add_f32(S2[0], S2[0], S2[1])
        last = A.buffer_store_dword(S2[0], vSTst, WS, t_s[2], mods='offen', k='st')
        Q.mark(evname)
        stamp()
        sync(last, sFlW2, flagconst, vFlB)
    def slots(n0, n1, fts):
        return [(n, tau, ft) for n in range(n0, n1) for tau in range(4) for ft in fts]
    def put(sched, items, sl):
        assert len(items) <= len(sl), (len(items), len(sl))
        for k, f in enumerate(items): sched[sl[(k * len(sl)) // len(items)]].append(f)

    def p2(l):
        A.cmt(f'======== P2 layer {l}')
        atag = {}
        def aload(n, tau):
            A.s_add_u32(so, sOld[tau], B.o(l) + (n >> 2) * 4096)
            atag[n, tau] = A.buffer_load_dwordx4(OF[4 * n + tau], L16, WS, so, mods=f'offen offset:{(n & 3)*1024} sc1')
        for n in range(2):
            for tau in range(4): aload(n, tau)
        Q.gate(f'p2s{l}'); Q.quiet_for(f'XBst{l}')
        sched = defaultdict(list)
        put(sched, [(lambda n=n, tau=tau: aload(n, tau)) for n in range(2, 5) for tau in range(4)], slots(0, 2, (0, 2, 4))[:16])
        acc = ksplit_gemm(5, lambda n, ft: W2F[5 * n + ft], lambda n, ft: None, lambda n, tau: OF[4 * n + tau], atag, sched, 2, 0)
        Q.gate(f'p2g{l}')
        stamp()
        reduce_epilogue(acc, False, B.xb(l), B.stb(l), flg(l, K_XB), f'XBst{l}', f'RD2_{l}')
        stamp()

    def p34(l):
        A.cmt(f'======== P3 layer {l}')
        acc = [[ACC[32 * u + 16 * gu: 32 * u + 16 * gu + 16] for gu in range(2)] for u in range(2)]
        LA = cfg.LA1
        xl, xt = xloads(B.xb(l))
        for k in range(LA): xl[k]()
        ST = v(136, 8)
        ldst, sttag = st_loads(ST, B.stb(l))
        pre, post = defaultdict(list), defaultdict(list)
        for s_ in range(LA, 40): post[2 * (s_ - LA)].append(xl[s_])
        e0 = 2 * (40 - LA)
        post[e0].append(ldst)
        def onbar(idx):
            for c in range(10, 15):
                if idx >= 16 * (c - 10 + 1): Q.gate(f'p3f{l}_{c}')
        Z = Stream(f'W3_{l}_', 15, w3slot, w3tag, -1, onbar)
        def mf(idx):
            p, rem = divmod(idx, 80); s_, gu = rem >> 1, rem & 1
            if idx < 80 and gu == 0: A.wait_vm(xt[s_])
            ac = acc[p & 1][gu]
            A.v_mfma_f32_32x32x16_bf16(ac, RING[idx % 4], XF[s_], ac if s_ else 0)
        for k in range(3): Z.rd(k, 0)
        pre[84].append(lambda: Z.barrier(84))
        pre[186].append(lambda: Q.gate(f'xfree{l}'))
        spread(post, [lambda: A.wait_vm(sttag[0])] + rstd_stream(ST, 'sq'), 74, 80)
        HP = [v(144, 4), v(148, 4)]
        htag = {}
        def epi(p):
            G, U = acc[p & 1]; o = []
            for c in range(2):
                for k in range(8 * c, 8 * c + 8, 2):
                    o += [V('v_max_f32', G[k], 0, G[k]), V('v_max_f32', G[k + 1], 0, G[k + 1]), V('v_mul_f32', U[k], vrs, U[k]), V('v_mul_f32', U[k + 1], vrs, U[k + 1]),
                          V('v_mul_f32', G[k], G[k], U[k]), V('v_mul_f32', G[k + 1], G[k + 1], U[k + 1]), V('v_cvt_pk_bf16_f32', HP[c][(k & 7) >> 1], G[k], G[k + 1])]
                def st(c=c):
                    A.s_add_u32(so, sHst, B.h(l))
                    htag[p] = A.buffer_store_dwordx4(HP[c], vHst, WS, so, mods=f'offen offset:{p*1024 + c*512}')
                o.append(st)
            return o
        spread(post, epi(0), 82, 112)
        spread(post, epi(1), 162, 178)
        chk = {}
        post[204].append(lambda: publish(htag[1], sFlW1, flg(l, K_H), 2))
        post[226].append(lambda: chk.__setitem__(2, check_issue(vFlA, sFl, flg(l, K_H))))
        stamp('p3')
        for idx in (20, 40, 60, 80, 100, 120, 140, 160, 180, 200, 220): pre[idx].insert(0, lambda: stamp('p3'))
        Z.run(0, 240, mf, pre, post, 240, cfg.mix3, e0)
        stamp('p3')
        stamp()
        atag = {}
        def aload(n, tau):
            ms = p4order[n]
            A.s_add_u32(so, sHld[tau], B.h(l) + (ms >> 2) * 4096)
            atag[n, tau] = A.buffer_load_dwordx4(HF[(4 * n + tau) % 28], L16, WS, so, mods=f'offen offset:{(ms & 3)*1024} sc1')
        LAst = cfg.LA4
        def grp(n):
            Q.flush(f'W4_{l}_{n}')
        sched = defaultdict(list)
        check_wait(chk[2], vFlA, sFl, flg(l, K_H), 2)
        e2 = epi(2); first = [(n, tau) for n in range(LAst) for tau in range(4)]
        for k, f in enumerate(e2):
            if k % 4 == 0 and first:
                x = first.pop(0)
                if x[1] == 0: grp(x[0])
                aload(*x)
            f()
        for x in first:
            if x[1] == 0: grp(x[0])
            aload(*x)
        stamp()
        sched[(2, 1, 2)].append(lambda: publish(htag[2], sFlW1, flg(l, K_H), 3))
        sched[(3, 3, 2)].append(lambda: chk.__setitem__(3, check_issue(vFlA, sFl, flg(l, K_H))))
        sched[(7 - LAst, 3, 4)].append(lambda: check_wait(chk[3], vFlA, sFl, flg(l, K_H), 3))
        for n in range(LAst, 12):
            sched[(n - LAst, 0, 0)].append(lambda n=n: grp(n))
            for tau in range(4): sched[(n - LAst, tau, 0)].append(lambda n=n, tau=tau: aload(n, tau))
        if l == 0:
            A.s_barrier(); Q.gate('p4s'); sched[(6, 0, 1)].append(lambda: Q.gate('p4m'))
            Q.quiet_for('XAst')
        acc = ksplit_gemm(12, lambda n, ft: W4F[5 * n + ft], lambda n, ft: A.wait_vm(wt['w4'][5 * n + ft]), lambda n, tau: HF[(4 * n + tau) % 28], atag, sched, 12 - LAst, cfg.mix4)
        stamp()
        reduce_epilogue(acc, l == 1, B.xa(l + 1), B.sta(l + 1), flg(l + 1, K_XA) if l == 0 else None, 'XAst', 'RD4')
        stamp()
    for l in range(2):
        p1(l); p2(l); p34(l)
    assert not Q.items, [x[0] for x in Q.items]
    ev['end'] = A.t
    if cfg.diag:
        A.I('s_waitcnt', 'vmcnt(0)'); stamp('always')
        A.s_memrealtime(s(98, 2)); A.wait_lg()
        n = nstamp[0]
        A.s_lshl_b32(t_s[0], b, 10); A.s_lshl_b32(t_s[1], w, 8); A.s_add_u32(t_s[0], t_s[0], t_s[1]); A.s_add_u32(t_s[0], t_s[0], DBG_OFF)
        for k, sr in enumerate(STAMPS[:n] + [s(96), s(98), sfast]):
            A.v_mov_b32(MISC[0], sr)
            A.buffer_store_dword(MISC[0], vZ, WS, t_s[0], mods=f'offen offset:{4*(k if k < n else 40 + k - n)}')
    A.label('M_end')
    A.s_endpgm()
    k = 0
    evs = dict(ev); evs['trace'] = list(A.trace)
    while k < len(tail):
        A.vm = []; A.lg = []; tail[k](); k += 1
    nn = A.finalize()
    return A, nn, nstamp[0], evs
def gen_iter(cfg):
    ev = None
    class ND(cfg): diag = False
    for it in range(4): _, _, _, ev = gen_main(ND, ev)
    A, nn, ns, ev2 = gen_main(cfg, ev)
    return A, nn, ns, ev
```

```python
from asmlib import *
from layout import *

N_W1, N_W3, N_X, N_W24 = 48, 96, 64, 46
B_W3 = N_W1; B_X = B_W3 + N_W3; B_W24 = B_X + N_X; B_END = B_W24 + N_W24; PRE_GRID = 256
PRE_LDS = 81920 + 4096
PHI_LDS = 61440

def srd(A, d, ptr, size):
    A.s_mov_b32(d[0], ptr[0]); A.s_mov_b32(d[1], ptr[1]); A.s_mov_b32(d[2], size); A.s_mov_b32(d[3], 0x20000)

def sel_frag(A, dst, idx, t0, t1):
    A.v_and_b32(t0, 1, idx); A.v_lshlrev_b32(t0, 4, t0); A.v_mov_b32(t1, 0x3f80); A.v_lshlrev_b32(t0, t0, t1)
    A.v_ashrrev_i32(t1, 1, idx)
    for n in range(4):
        A.v_cmp_eq_u32('vcc', n, t1)
        A.v_cndmask_b32(dst[n], 0, t0, 'vcc')

def emit_prep(A, fill, after_karg, SC=' sc1', pstamp=lambda k: None, HELP=1):
    diag = False
    def end():
        A.s_branch('PP_done'); A.vm = []; A.lg = []
    def stamp(): pstamp(1)
    P = s(40, 16); PX, PQKV, PPHI, PWO, PWG, PWU, PWD = P[0:2], P[2:4], P[4:6], P[6:8], P[10:12], P[12:14], P[14:16]
    PWS = s(62, 2)
    WS, SRC, PHI = s(8, 4), s(12, 4), s(16, 4)
    b, w = s(2), s(20)
    A.s_load_dwordx16(P, s(0, 2), 0); A.s_load_dwordx4(s(56, 4), s(0, 2), 64); A.s_load_dwordx2(PWS, s(0, 2), 80)
    tid, lane, l16, m, hf, g, h, r, pm = v(0), v(1), v(2), v(3), v(4), v(5), v(6), v(7), v(8)
    t0, t1, t2, t3 = v(9), v(10), v(11), v(12)
    A.v_and_b32(lane, 63, tid); A.v_lshlrev_b32(l16, 4, lane)
    A.v_lshrrev_b32(t0, 6, tid); A.v_and_b32(m, 31, tid); A.v_readfirstlane_b32(w, t0)
    A.v_lshrrev_b32(hf, 5, lane); A.v_lshrrev_b32(g, 3, m); A.v_bfe_u32(h, m, 2, 1); A.v_and_b32(r, 3, m)
    A.v_and_b32(pm, 0x13, m); A.v_lshl_or_b32(pm, h, 3, pm); A.v_bfe_u32(t0, m, 3, 1); A.v_lshl_or_b32(pm, t0, 2, pm)
    A.wait_lg()
    srd(A, WS, PWS, WS_USED)
    after_karg()
    sj, st, so, sb, sstr, sm0 = s(21), s(22), s(23), s(24), s(25), s(30)
    def helper(rank_base, bbase):
        if not HELP: return
        srd(A, PHI, PQKV, D * 3 * D * 2)
        A.s_sub_u32(s(26), b, bbase); A.s_lshr_b32(s(26), s(26), 3); A.s_add_u32(s(26), s(26), rank_base); A.s_lshl_b32(s(26), s(26), 8)
        A.v_add_u32(t0, s(26), tid); A.v_mul_u32_u24(t1, 10923, t0); A.v_lshrrev_b32(t1, 16, t1)
        A.v_mul_u32_u24(t2, 6, t1); A.v_sub_u32(t2, t0, t2); A.v_lshrrev_b32(t3, 1, t2); A.v_mul_u32_u24(t3, 1280, t3)
        A.v_and_b32(t2, 1, t2); A.v_lshl_add_u32(t3, t2, 7, t3); A.v_mad_u32_u24(t3, t1, A_const(A, s(27), 3840), t3)
        A.s_and_b32(s(26), b, 7); A.s_mul_i32(s(26), s(26), 160); A.s_andn2_b32(s(26), s(26), 127)
        A.buffer_load_dword(v(254), t3, PHI, s(26), mods='offen')
    A.s_cmp_ge_u32(b, B_END); A.s_cbranch_scc1('PP_fillonly')
    A.s_cmp_ge_u32(b, B_W24); A.s_cbranch_scc1('PP_w24')
    A.s_cmp_ge_u32(b, B_X); A.s_cbranch_scc1('PP_x')
    A.s_cmp_ge_u32(b, B_W3); A.s_cbranch_scc1('PP_w3')
    acc = [v(32 + 16 * k, 16) for k in range(10)]
    AF = [v(192 + 4 * k, 4) for k in range(6)]
    T = [v(216 + 4 * k, 4) for k in range(6)]
    vA = [v(13 + k) for k in range(5)]
    def center_store(nct, voff, vstr):
        neg = []
        for ct in range(nct):
            sm = v(240 + 2 * ct, 2)
            base = 32 + 80 * ct
            A.v_pk_add_f32(sm, v(base, 2), v(base + 2, 2))
            for k in range(2, 40): A.v_pk_add_f32(sm, sm, v(base + 2 * k, 2))
            A.v_add_f32(sm[0], sm[0], sm[1]); A.v_mov_b32(sm[1], sm[0])
            A.v_permlane32_swap_b32(sm[0], sm[1]); A.v_add_f32(sm[0], sm[0], sm[1])
        A.s_lshl_b32(s(26), w, 7); A.s_add_u32(s(26), s(26), 65536); A.v_lshl_add_u32(t2, m, 2, s(26))
        for ct in range(nct): A.ds_write_b32(t2, v(240 + 2 * ct), mods=f'offset:{512*ct}')
        A.wait_lg(); A.s_barrier()
        pstamp(2)
        A.v_lshlrev_b32(t2, 2, m); A.v_add_u32(t2, 65536, t2)
        for ct in range(nct):
            for k in range(4): A.ds_read_b32(v(244 + 4 * ct + k), t2, mods=f'offset:{512*ct + k*128}')
        A.wait_lg()
        for ct in range(nct):
            sm = v(240 + 2 * ct, 2); q = v(244 + 4 * ct, 4)
            A.v_add_f32(t0, q[0], q[1]); A.v_add_f32(t1, q[2], q[3]); A.v_add_f32(t0, t0, t1)
            A.v_mul_f32(sm[0], 0xbacccccd, t0); A.v_mov_b32(sm[1], sm[0])
        n = 0
        for ct in range(nct):
            sm = v(240 + 2 * ct, 2)
            for bb in range(5):
                for hh in range(2):
                    o = AF[n % 6]; n += 1
                    ac = acc[ct * 5 + bb]
                    for k in range(4):
                        pr = ac[8 * hh + 2 * k: 8 * hh + 2 * k + 2]
                        A.v_pk_add_f32(pr, pr, sm)
                    for k in range(4): A.v_cvt_pk_bf16_f32(o[k], ac[8 * hh + 2 * k], ac[8 * hh + 2 * k + 1])
                    A.buffer_store_dwordx4(o, voff[ct], WS, 0, mods='offen' + SC)
                    A.v_add_u32(voff[ct], vstr[ct], voff[ct])
    srd(A, SRC, PQKV, D * 3 * D * 2); srd(A, PHI, PPHI, H * DH * DH * 2)
    ssec = st
    A.s_and_b32(sj, b, 7); A.s_lshl_b32(sj, sj, 1); A.s_bfe_u32(s(26), b, (1 << 16) | 3); A.s_add_u32(sj, sj, s(26)); A.s_lshr_b32(ssec, b, 4)
    A.s_add_u32(s(26), ssec, 1); A.s_mul_i32(s(26), s(26), 1280); A.s_cmp_eq_u32(ssec, 2); A.s_cselect_b32(s(26), 0, s(26))
    A.s_mul_i32(s(27), sj, 80); A.s_add_u32(so, s(26), s(27)); A.s_mul_i32(s(27), w, 160 * 3840); A.s_add_u32(so, so, s(27))
    A.s_mul_i32(sm0, w, 13312)
    for n in range(13):
        if n < 5:
            A.v_add_u32(t0, 64 * n, lane); A.v_mul_u32_u24(t1, 205, t0); A.v_lshrrev_b32(t1, 10, t1)
            A.v_mul_u32_u24(t2, 5, t1); A.v_sub_u32(t2, t0, t2); A.v_mul_u32_u24(t1, 3840, t1); A.v_lshl_add_u32(vA[n], t2, 4, t1)
        A.s_mov_b32('m0', sm0)
        A.buffer_load_dwordx4(vA[n % 5], SRC, so, mods='offen lds')
        A.s_add_u32(sm0, sm0, 1024)
        if n % 5 == 4: A.s_add_u32(so, so, 64 * 3840)
    lastA = A.vm[-1]
    A.s_mul_i32(s(27), sj, 1600)
    A.v_mov_b32(t3, OOB)
    A.s_mov_b32('m0', PHI_LDS)
    A.v_cmp_gt_u32('vcc', 50, lane); A.v_cndmask_b32(t0, t3, l16, 'vcc')
    A.buffer_load_dwordx4(t0, PHI, s(27), mods='offen lds')
    A.s_mov_b32('m0', PHI_LDS + 1024)
    A.v_subrev_u32(t1, 96, l16); A.v_cmp_lt_u32('vcc', 55, lane); A.v_cndmask_b32(t0, t3, t1, 'vcc')
    A.buffer_load_dwordx4(t0, PHI, s(27), mods='offen lds')
    A.s_mov_b32('m0', PHI_LDS + 2048)
    A.v_add_u32(t1, 58 * 16, l16); A.v_cmp_gt_u32('vcc', 42, lane); A.v_cndmask_b32(t0, t3, t1, 'vcc')
    A.buffer_load_dwordx4(t0, PHI, s(27), mods='offen lds')
    lastP = A.vm[-1]
    fill()
    dl0 = v(18); fv = [v(19), v(20)]
    A.v_mul_u32_u24(t0, 20, h); A.v_lshlrev_b32(dl0, 3, hf); A.v_sub_u32(dl0, dl0, t0)
    A.v_lshl_add_u32(fv[0], g, 2, r); A.v_add_u32(fv[1], 16, fv[0])
    A.s_cmp_eq_u32(ssec, 1); A.s_cbranch_scc1('PP_w1_v')
    vm_save = list(A.vm)
    A.wait_vm(lastP)
    US = [v(32 + k) for k in range(48)]
    B0 = v(21)
    A.v_mul_u32_u24(B0, 1920, h); A.v_lshl_add_u32(B0, fv[0], 1, B0)
    A.v_mul_i32_i24(t0, 40, dl0); A.v_add3_u32(B0, B0, t0, A_const(A, s(26), PHI_LDS))
    for ct in range(2):
        for c in list(range(0, 8)) + list(range(16, 24)) + list(range(32, 40)):
            k = (c >> 4) * 8 + (c & 7)
            A.ds_read_u16(US[24 * ct + k], B0, mods=f'offset:{c*40 + 32*ct}')
            if len(A.lg) > 14: A.wait_lg(A.lg[-8])
    A.wait_lg()
    for k in range(24): A.v_lshl_or_b32(T[k >> 2][k & 3], US[2 * k + 1], 16, US[2 * k])
    A.s_branch('PP_w1_go')
    A.label('PP_w1_v')
    A.vm = vm_save
    for ct in range(2):
        A.v_cmp_gt_u32('vcc', 20, fv[ct]); A.v_sub_u32(t0, fv[ct], dl0); A.v_mov_b32(t1, -1000 & 0xffffffff); A.v_cndmask_b32(v(21), t1, t0, 'vcc')
        for u in range(3):
            if u: A.v_subrev_u32(v(21), 16, v(21))
            sel_frag(A, T[3 * ct + u], v(21), t0, t1)
    A.wait_vm(lastP)
    A.label('PP_w1_go')
    stamp()
    A.s_mul_i32(s(26), w, 13312); A.v_mul_u32_u24(t0, 80, pm); A.v_lshl_add_u32(t0, hf, 4, t0); A.v_add_u32(v(21), s(26), t0)
    tg = {}
    def rdA(i):
        bb, u = divmod(i, 3); tg[i] = A.ds_read_b128(AF[i % 6], v(21), mods=f'offset:{bb*2560 + u*32}')
    for i in range(4): rdA(i)
    for i in range(15):
        bb, u = divmod(i, 3)
        if i + 4 < 15: rdA(i + 4)
        A.wait_lg(tg[i])
        for ct in range(2): A.v_mfma_f32_32x32x16_bf16(acc[ct * 5 + bb], AF[i % 6], T[3 * ct + u], acc[ct * 5 + bb] if u else 0)
    voff = [v(22), v(23)]; vstr = [v(24), v(25)]
    A.s_mul_i32(s(26), ssec, 5); A.s_mul_i32(s(27), sj, W1_J); A.s_add_u32(s(27), s(27), W1_OFF); A.s_mul_i32(s(28), w, 10)
    A.s_cmp_eq_u32(ssec, 2); A.s_cselect_b32(s(29), 2, 1)
    for ct in range(2):
        A.v_add_u32(t0, s(26), g)
        if ct: A.v_add_u32(t0, 4, t0)
        A.v_lshrrev_b32(t1, 2, t0); A.v_and_b32(t0, 3, t0)
        A.v_cmp_gt_u32('vcc', 2, t1); A.v_mov_b32(t2, 2048); A.v_mov_b32(t3, 1024); A.v_cndmask_b32(vstr[ct], t3, t2, 'vcc')
        A.v_mul_u32_u24(t2, 40, t1); A.v_cndmask_b32(t1, t2, t1, 'vcc'); A.v_lshlrev_b32(t1, 10, t1)
        A.v_mad_u32_u24(t1, vstr[ct], s(28), t1)
        A.v_and_b32(t2, 7, m); A.v_lshl_add_u32(t2, t0, 3, t2); A.v_lshl_add_u32(t2, hf, 5, t2)
        A.v_lshl_add_u32(t1, t2, 4, t1); A.v_add_u32(voff[ct], s(27), t1)
        if ct:
            A.v_cmp_gt_u32('vcc', s(29), g); A.v_mov_b32(t2, OOB); A.v_cndmask_b32(voff[ct], t2, voff[ct], 'vcc')
    center_store(2, voff, vstr)
    end()
    A.label('PP_w3'); A.cmt('role W3')
    helper(0, B_W3)
    A.s_sub_u32(s(26), b, B_W3); A.s_lshr_b32(s(27), s(26), 4); A.s_lshl_b32(s(27), s(27), 3); A.s_and_b32(s(28), s(26), 7); A.s_add_u32(s(27), s(27), s(28))
    A.s_cmp_ge_u32(s(27), 24); A.s_cselect_b32(SRC[0], PWU[0], PWG[0]); A.s_cselect_b32(SRC[1], PWU[1], PWG[1]); A.s_cselect_b32(s(28), 1, 0); A.s_cselect_b32(s(29), 24, 0)
    A.s_mov_b32(SRC[2], D * F * 2); A.s_mov_b32(SRC[3], 0x20000)
    A.s_sub_u32(s(27), s(27), s(29)); A.s_lshl_b32(s(27), s(27), 1); A.s_bfe_u32(s(26), s(26), (1 << 16) | 3); A.s_add_u32(s(27), s(27), s(26))
    A.s_mul_i32(sj, s(27), 43); A.s_lshr_b32(sj, sj, 7); A.s_mul_i32(s(26), sj, 3); A.s_sub_u32(st, s(27), s(26))
    A.s_lshl_b32(so, s(27), 6); A.s_mul_i32(s(26), w, 160 * 3072); A.s_add_u32(so, so, s(26))
    A.v_lshrrev_b32(t0, 2, lane); A.v_mul_u32_u24(t0, 3072, t0); A.v_lshrrev_b32(t1, 4, lane); A.v_xor_b32(t1, t1, lane); A.v_and_b32(t1, 3, t1)
    A.v_lshl_add_u32(vA[0], t1, 4, t0)
    A.s_mul_i32(sm0, w, 10240)
    tags = []
    for n in range(10):
        A.s_mov_b32('m0', sm0)
        tags.append(A.buffer_load_dwordx4(vA[0], SRC, so, mods='offen lds'))
        A.s_add_u32(sm0, sm0, 1024); A.s_add_u32(so, so, 16 * 3072)
    fill()
    A.v_lshlrev_b32(t2, 3, hf); A.v_sub_u32(v(18), pm, t2)
    for u in range(2):
        if u: A.v_subrev_u32(v(18), 16, v(18))
        sel_frag(A, T[u], v(18), t0, t1)
    A.s_mul_i32(s(26), w, 10240)
    A.v_bfe_u32(t0, pm, 2, 2); A.v_xor_b32(t0, t0, hf); A.v_lshlrev_b32(t0, 4, t0); A.v_lshl_add_u32(t0, pm, 6, t0); A.v_add_u32(v(19), s(26), t0)
    A.v_xor_b32(v(20), 32, v(19))
    for bb in range(5):
        A.wait_vm(tags[2 * bb + 1])
        if bb == 0: stamp()
        tg = [A.ds_read_b128(AF[(2 * bb + u) % 6], v(19 + u), mods=f'offset:{bb*2048}') for u in range(2)]
        for u in range(2):
            A.wait_lg(tg[u]); A.v_mfma_f32_32x32x16_bf16(acc[bb], AF[(2 * bb + u) % 6], T[u], acc[bb] if u else 0)
    A.s_mul_i32(sb, st, 80); A.s_add_u32(sb, sb, s(28)); A.s_mul_i32(s(26), w, 20); A.s_add_u32(sb, sb, s(26)); A.s_lshl_b32(sb, sb, 10)
    A.s_mul_i32(s(26), sj, W3_J); A.s_add_u32(sb, sb, s(26)); A.s_add_u32(sb, sb, W3_OFF)
    A.v_add_u32(v(22), sb, l16)
    center_store(1, [v(22)], [2048])
    end()
    A.label('PP_w24'); A.cmt('role W2/W4')
    helper(12, B_W24)
    su = s(21)
    rowi = [v(32 + k) for k in range(5)]; chk = [v(37 + k) for k in range(5)]
    for n in range(5):
        A.v_add_u32(t0, 64 * n, lane); A.v_mul_u32_u24(t1, 205, t0); A.v_lshrrev_b32(rowi[n], 11, t1)
        A.v_mul_u32_u24(t2, 10, rowi[n]); A.v_sub_u32(t2, t0, t2); A.v_lshlrev_b32(chk[n], 4, t2)
    A.s_sub_u32(su, b, B_W24); A.s_mul_i32(su, su, 12); A.s_add_u32(su, su, w)
    A.s_mul_i32(sm0, w, 15360)
    dst = [s(33), s(34), s(35)]
    last = []
    SR2 = s(36, 4)
    for it in range(3):
        L2, LG = A.newlabel('PP_w2'), A.newlabel('PP_go')
        A.s_cmp_ge_u32(su, 384); A.s_cbranch_scc1(L2)
        srd(A, SR2, PWD, F * D * 2)
        A.s_lshr_b32(s(26), su, 3); A.s_and_b32(s(27), su, 7)
        A.s_mul_i32(dst[it], s(27), 48); A.s_add_u32(dst[it], dst[it], s(26)); A.s_mul_i32(dst[it], dst[it], 5120); A.s_add_u32(dst[it], dst[it], W4_OFF)
        A.s_lshl_b32(s(26), s(26), 5)
        for n in range(5): A.v_add_u32(vA[n], s(26), rowi[n])
        A.s_branch(LG)
        A.label(L2)
        srd(A, SR2, PWO, D * D * 2)
        A.s_sub_u32(s(28), su, 384); A.s_lshr_b32(s(26), s(28), 3); A.s_and_b32(s(27), s(28), 7)
        A.s_mul_i32(dst[it], s(27), 20); A.s_add_u32(dst[it], dst[it], s(26)); A.s_mul_i32(dst[it], dst[it], 5120); A.s_add_u32(dst[it], dst[it], W2_OFF)
        A.s_cmp_ge_u32(su, 544); A.s_cselect_b32(dst[it], OOB, dst[it])
        A.s_lshl_b32(s(26), s(26), 5)
        for n in range(5):
            kp = vA[n]
            A.v_add_u32(kp, s(26), rowi[n])
            A.v_mul_u32_u24(t0, 1639, kp); A.v_lshrrev_b32(t0, 16, t0); A.v_mul_u32_u24(t0, 40, t0)
            A.v_sub_u32(t1, kp, t0)
            A.v_lshrrev_b32(t2, 4, t1); A.v_mul_u32_u24(t2, 20, t2); A.v_and_b32(t3, 15, t1); A.v_add_u32(t2, t2, t3)
            A.v_bfe_u32(t3, t1, 2, 1); A.v_mul_u32_u24(t3, 20, t3); A.v_and_b32(kp, 3, t1); A.v_add3_u32(t3, t3, kp, 16)
            A.v_cmp_gt_u32('vcc', 32, t1); A.v_cndmask_b32(t2, t3, t2, 'vcc')
            A.v_add_u32(kp, t0, t2)
        A.label(LG)
        A.s_mul_i32(so, s(27), 160)
        for n in range(5):
            A.v_mad_u32_u24(vA[n], vA[n], A_const(A, s(29), 1280), chk[n])
            A.s_mov_b32('m0', sm0)
            tgl = A.buffer_load_dwordx4(vA[n], SR2, so, mods='offen lds')
            A.s_add_u32(sm0, sm0, 1024)
        last.append(tgl)
        A.s_add_u32(su, su, 4)
    fill()
    row, qp, Q = v(14), v(15), v(16)
    A.v_bfe_u32(qp, lane, 2, 2); A.v_lshrrev_b32(Q, 4, lane)
    A.v_lshl_add_u32(row, qp, 3, r)
    SE = [T[0], T[1], T[2]]
    A.v_lshlrev_b32(t2, 3, Q)
    A.v_sub_u32(v(19), row, t2); sel_frag(A, SE[0], v(19), t0, t1)
    A.v_add_u32(v(19), 4, v(19)); sel_frag(A, SE[1], v(19), t0, t1)
    A.v_and_b32(v(19), 15, lane); A.v_sub_u32(v(19), v(19), t2); sel_frag(A, SE[2], v(19), t0, t1)
    A.s_mul_i32(s(26), w, 15360)
    A.v_mul_u32_u24(t0, 160, row); A.v_add_u32(t0, s(26), t0)
    A.v_lshl_add_u32(v(19), Q, 4, t0)
    A.v_and_b32(t1, 1, Q); A.v_lshl_add_u32(v(20), t1, 4, t0)
    for it in range(3):
        A.wait_vm(last[it])
        if it == 0: stamp()
        tg = {}
        for cg in range(3):
            for aa in range(2):
                tg[cg, aa] = A.ds_read_b128(AF[cg * 2 + aa], v(19) if cg < 2 else v(20), mods=f'offset:{it*5120 + aa*640 + cg*64}')
        for ft in range(5):
            cg = ft >> 1
            A.wait_lg(tg[cg, 1])
            for aa in range(2):
                A.v_mfma_f32_16x16x32_bf16(v(48 + ft * 8 + aa * 4, 4), AF[cg * 2 + aa], SE[ft & 1 if ft < 4 else 2], 0)
        for ft in range(5):
            o = v(96 + 20 * it + 4 * ft, 4)
            for k in range(4): A.v_cvt_pk_bf16_f32(o[k], v(48 + ft * 8 + 2 * k), v(48 + ft * 8 + 2 * k + 1))
            if ft == 4: A.s_add_u32(dst[it], dst[it], 4096)
            A.buffer_store_dwordx4(o, l16, WS, dst[it], mods=f'offen offset:{(ft & 3) * 1024}' + SC)
    end()
    A.label('PP_x'); A.cmt('role X')
    srd(A, SRC, PX, X_SZ)
    A.s_sub_u32(su, b, B_X)
    tk, cp = v(14), v(15)
    A.v_lshrrev_b32(tk, 3, lane); A.s_lshl_b32(s(26), w, 3); A.v_add_u32(tk, s(26), tk)
    A.v_and_b32(cp, 7, lane)
    A.v_mul_u32_u24(t0, 1280, tk); A.v_lshl_add_u32(vA[0], cp, 4, t0)
    A.s_mul_i32(so, su, 40960)
    XF = [v(32 + 4 * k, 4) for k in range(10)]
    tags = [A.buffer_load_dwordx4(XF[k], vA[0], SRC, so, mods=f'offen offset:{k*128}') for k in range(10)]
    fill()
    A.v_lshrrev_b32(t0, 1, cp); A.v_lshlrev_b32(t0, 10, t0); A.v_and_b32(t1, 1, cp); A.v_lshl_add_u32(t1, t1, 5, tk); A.v_lshl_add_u32(v(16), t1, 4, t0)
    A.s_add_u32(so, so, XA_OFF)
    A.v_lshrrev_b32(t0, 4, tk); A.v_lshlrev_b32(t0, 10, t0); A.v_lshl_add_u32(t0, cp, 7, t0); A.v_and_b32(t1, 15, tk); A.v_lshl_add_u32(v(17), t1, 3, t0)
    A.s_lshl_b32(s(26), su, 11); A.s_add_u32(s(26), s(26), STA_OFF)
    A.v_mov_b32(v(18), 0x3f803f80)
    S_, Q_ = v(20), v(21)
    A.v_mov_b32(S_, 0); A.v_mov_b32(Q_, 0)
    for k in range(10):
        A.wait_vm(tags[k])
        if k == 0: stamp()
        A.buffer_store_dwordx4(XF[k], v(16), WS, so, mods='offen' + SC)
        A.s_add_u32(so, so, 4096)
        for n in range(4):
            A.v_dot2_f32_bf16(S_, XF[k][n], v(18), S_); A.v_dot2_f32_bf16(Q_, XF[k][n], XF[k][n], Q_)
    A.s_nop(2)
    A.buffer_store_dwordx2(v(20, 2), v(17), WS, s(26), mods='offen' + SC)
    end()
    A.label('PP_fillonly')
    fill()
    end()
def A_const(A, sreg, val):
    A.s_mov_b32(sreg, val); return sreg
```

```python
import sys
from asmlib import *
from layout import *
import prepass, main
NAME = 'interleave_layers__linear_kernel_hedgehog__glu_gated_reglu__prompt'
def build(path, cfg=main.Cfg, extra_empty=0):
    M, nn, ns, ev = main.gen_iter(cfg)
    st = ev['stamps']; print('  model:', ' '.join(str(b - a) for a, b in zip(st, st[1:])), 'total', ev['end'])
    if getattr(cfg, 'trace', 0):
        last = None; t0 = None; prevdone = 0
        for t, d, n in ev['trace'] + [(0, 0, None)]:
            if n != last:
                if last is not None: print(f'    {last:14s} x{cnt:<3d} issue {t0}..{t1}  done {d1}  gap_before {gap}')
                last, t0, cnt, gap = n, t, 0, max(0, t - prevdone)
            cnt += 1; t1 = t; d1 = d; prevdone = d
        import itertools
        print('   stamps abs', st)
    hdr = open('cdna_kernels/' + NAME + '.s.ref').read().split('; Override')[0]
    hdr += f'; @launch grid=(256,1,1) block=(256,1,1) lds={main.MAIN_LDS}\n'
    txt = hdr + '.amdgcn_target "amdgcn-amd-amdhsa--gfx950"\n' + kernel_text(NAME + '_kernel', M, 512, 256)
    desc = descriptor(NAME + '_kernel', 512, 256)
    if extra_empty:
        E = Asm(); E.s_endpgm(); txt += kernel_text('empty_kernel', E, 8, 8); desc += descriptor('empty_kernel', 8, 8)
    open(path, 'w').write(txt + desc)
    print(path, 'main:', dict(M.count()), 'nops inserted', nn, 'stamps', ns)
if __name__ == '__main__':
    class C(main.Cfg): pass
    extra = 0
    for kv in sys.argv[2:]:
        k, x = kv.split('=')
        if k == 'empty': extra = int(x)
        else: setattr(C, k, int(x) if x.lstrip('-').isdigit() else x)
    build(sys.argv[1], C, extra)
```

```python
from asmlib import *
from layout import *
from prepass import srd, sel_frag, emit_prep, B_W3, B_X, B_W24, B_END
from collections import defaultdict

LOG2E = 0x3fb8aa3b
SLOT = 16384
TR = 0
KVB = 6 * SLOT
RD = 6 * SLOT + 4096
MAIN_LDS = 163840
SPIN = 1 << 17

class Cfg:
    diag = False
    fine = None
    alias = 1
    touch = 1
    early = 1
    LA1 = 10
    nt1 = 0; nt2 = 0; nt3 = 0; nt4 = 0
    cpf = 1; pnt = 14; help = 1; psc1 = 1; pfat = 72; LK = 40; backlog = 800; win = 4; mix1 = 0; mix3 = 0; mix4 = 0; alt = 0; qslack = 0; kvdelay = 900; LA4 = 3
    kvld_at = 146

def gen_main(cfg=Cfg, ev_in=None):
    A = Asm()
    B = Bufs(cfg.alias)
    ev = {}; ev_in = ev_in or {}
    tail = []
    WS, OUT, XIN = s(8, 4), s(12, 4), s(16, 4)
    b, w, si, sj, sth, sfs, sfast = s(2), s(20), s(21), s(22), s(23), s(24), s(25)
    t_s = [s(26), s(27), s(28), s(29)]
    sW1, sW3, sW2, sW4, sXu, sSTu, sKVw, sKVr, sFl = (s(30 + k) for k in range(9))
    sM0w, sXst, sSTst, sOst, sHst, sFlW1, sFlW2, sxcc, sspin = (s(39 + k) for k in range(9))
    sOld = [s(48 + k) for k in range(4)]; sHld = [s(52 + k) for k in range(4)]
    so, so2 = s(88), s(89)
    POUT, PDBG, PX, PWS = s(56, 2), s(58, 2), s(60, 2), s(62, 2)
    DBG = s(84, 4); sNonce = s(90)
    nstamp = [0]; STAMPS = [s(64 + k) for k in range(20)] + [s(91), s(92), s(95), s(100), s(101), s(3), s(4), s(5), s(6), s(7), s(0), s(1)]
    def stamp(tag=None):
        if tag in (None, 'always'): ev.setdefault('stamps', []).append(A.t)
        if cfg.diag and (tag == cfg.fine or tag == 'always'):
            A.wait_lg(); A.s_memtime(s(98, 2)); A.wait_lg(); A.s_mov_b32(STAMPS[nstamp[0]], s(98)); nstamp[0] += 1
    tid = v(0); L16, L16b, L16c = v(1), v(2), v(3)
    (vXst0, vXst2, vSTst, vSTld, vOst0, vOst1, vOst2, vHst, vOUT0, vOUT2, vFlA, vFlB, vZ, vKVst0, vKVst1, vKVld,
     vTRw, vTRa, vTRb, vKBw, vKBr0, vKBr1, vRDr, vT) = (v(4 + k) for k in range(24))
    vRDw = [None, v(28), v(29), v(30)]
    vrs = v(31)
    SEL = v(32, 4)
    RES = v(36, 20); DUMMY = tid
    sBk = s(94)
    RING = [v(56 + 4 * k, 4) for k in range(4)]
    ACC = v(72, 80)
    TB = v(152, 32); PR = v(184, 64); MISC = v(248, 8)
    def lds_addr(off):
        return ((L16, L16b, L16c)[off >> 16], off & 0xffff)

    A.s_cmp_ge_u32(b, 256); A.s_cbranch_scc1('M_end')
    def after_karg():
        A.s_mov_b32(PX[0], s(40)); A.s_mov_b32(PX[1], s(41))
        srd(A, DBG, PDBG, 256)
        if cfg.diag: A.s_memrealtime(s(96, 2))
        stamp('always')
        L = A.newlabel('nononce')
        A.s_cmp_lg_u32(b, 0); A.s_cbranch_scc1(L)
        A.s_memrealtime(s(98, 2)); A.v_lshlrev_b32(v(10), 8, v(0)); A.wait_lg()
        A.s_or_b32(s(98), s(98), 1); A.v_mov_b32(v(9), s(98))
        A.buffer_store_dword(v(9), v(10), DBG, 0, mods='offen sc1')
        A.label(L)
    def fill():
        t0, t1, F4, Z4 = v(9), v(10), v(28, 4), v(24, 4)
        a0, a1, a2 = s(31), s(32), s(95)
        A.s_and_b32(a0, b, 7); A.s_lshl_b32(a0, a0, 1); A.s_lshr_b32(a1, b, 7); A.s_add_u32(a0, a0, a1)
        A.s_bfe_u32(a1, b, (4 << 16) | 3)
        for k in range(4): A.v_mov_b32(F4[k], -1); A.v_mov_b32(Z4[k], 0)
        A.s_lshl_b32(a2, a1, 4); A.s_add_u32(a2, a2, a0); A.s_mul_i32(a2, a2, KV_SLOT); A.s_add_u32(a2, a2, KVP_OFF)
        A.v_lshlrev_b32(t0, 4, v(0)); A.v_cmp_gt_u32('vcc', KV_SLOT // 16, v(0)); A.v_mov_b32(t1, OOB); A.v_cndmask_b32(t0, t1, t0, 'vcc')
        A.buffer_store_dwordx4(F4, t0, WS, a2, mods='offen sc1')
        A.s_add_u32(a2, a2, KV_SZ)
        A.buffer_store_dwordx4(F4, t0, WS, a2, mods='offen sc1')
        A.v_cmp_gt_u32('vcc', 16, v(0)); A.v_cndmask_b32(t0, t1, t0, 'vcc')
        A.s_lshl_b32(a0, a0, 8); A.s_lshl_b32(a2, a1, 12); A.s_add_u32(a2, a2, a0); A.s_add_u32(a2, a2, FLG_OFF)
        A.s_cmp_lt_u32(a1, 8); A.s_cselect_b32(a2, a2, OOB)
        A.buffer_store_dwordx4(Z4, t0, WS, a2, mods='offen sc1')
        A.buffer_load_dword(v(255), Z4[0], DBG, 0, mods='offen sc1')
        if cfg.cpf:
            Lp = A.newlabel('pc')
            A.s_getpc_b64(s(98, 2)); A.label(Lp)
            A.s_lshr_b32(a0, b, 3); A.s_lshl_b32(a0, a0, 11)
            A.v_and_b32(t0, 15, v(0)); A.v_lshl_add_u32(t0, t0, 7, a0)
            A.raw(f'\tv_add_u32 {t0}, PP_done-{Lp}, {t0}'); A.raw(f'\tv_min_u32 {t0}, M_codeend-{Lp}-4, {t0}')
            A.v_mov_b32(v(253), s(99)); A.v_add_co_u32(v(252), 'vcc', s(98), t0); A.v_addc_co_u32(v(253), 'vcc', 0, v(253), 'vcc')
            A.global_load_dword(v(254), v(252, 2), 'off')
    def pstamp(k):
        if cfg.diag and cfg.fine == 'pp':
            A.wait_lg(); A.s_memtime(s(98, 2)); A.wait_lg(); A.s_mov_b32(STAMPS[k], s(98))
    if cfg.diag and cfg.fine == 'pp': A.s_mov_b32(STAMPS[1], 0); A.s_mov_b32(STAMPS[2], 0)
    emit_prep(A, fill, after_karg, ' sc1' if cfg.psc1 else '', pstamp, cfg.help, cfg.pnt)
    if cfg.diag and cfg.fine == 'pp': nstamp[0] = 3
    A.label('PP_done')
    A.t = 0; A.mfree = A.port = A.link = A.prev = A.ldsfree = 0; A.fly = []; A.trace = []
    stamp(); stamp('pp')
    lane, t0, t1, t2, t3, hf, l15, q = (v(152 + k) for k in range(8))
    m, g, h, r = (v(160 + k) for k in range(4))
    vN = v(255); vPF0, vPF1 = RES[0], RES[1]; PFD = RES[2:4]
    Ln = A.newlabel('nonce'); Lo = A.newlabel('nonceok')
    A.s_getreg_b32(sxcc, 'hwreg(HW_REG_XCC_ID, 0, 4)')
    A.v_mov_b32(t3, OOB); A.v_cmp_eq_u32('vcc', 0, tid); A.v_cndmask_b32(t1, t3, tid, 'vcc'); A.v_mov_b32(t0, 0)
    A.s_mov_b32(sspin, 0)
    A.I('s_waitcnt', 'vmcnt(0)')
    stamp('pp')
    A.label(Ln)
    A.v_readfirstlane_b32(sNonce, vN); A.s_cmp_lg_u32(sNonce, 0); A.s_cbranch_scc1(Lo)
    A.s_add_u32(sspin, sspin, 1); A.s_cmp_gt_u32(sspin, SPIN); A.s_cbranch_scc1(Lo)
    A.buffer_load_dword(vN, t0, DBG, 0, mods='offen sc1'); A.wait_vm()
    A.s_branch(Ln)
    A.label(Lo)
    A.s_not_b32(t_s[0], sNonce); A.s_andn2_b32(t_s[0], t_s[0], 15); A.s_or_b32(sxcc, sxcc, t_s[0])
    A.v_mov_b32(PFD[0], sNonce); A.v_mov_b32(PFD[1], sxcc)
    A.s_lshl_b32(t_s[0], b, 7); A.s_add_u32(t_s[0], t_s[0], PF_OFF)
    A.s_barrier()
    A.buffer_store_dwordx2(PFD, t1, WS, t_s[0], mods='offen sc1')
    A.s_mov_b32(sfast, 0)
    stamp(); stamp('pp')
    A.v_and_b32(lane, 63, tid)
    A.v_lshlrev_b32(L16, 4, lane)
    A.s_and_b32(t_s[0], b, 7); A.s_lshr_b32(t_s[1], b, 3); A.s_and_b32(sj, t_s[1], 15); A.s_lshr_b32(t_s[1], t_s[1], 4)
    A.s_lshl_b32(si, t_s[0], 1); A.s_add_u32(si, si, t_s[1])
    A.s_lshr_b32(sth, sj, 3); A.s_and_b32(sfs, sj, 7)
    A.s_lshl_b32(sM0w, w, 12)
    A.s_mul_i32(sW1, sj, W1_J); A.s_add_u32(sW1, sW1, sM0w)
    if W1_OFF: A.s_add_u32(sW1, sW1, W1_OFF)
    A.s_lshl_b32(t_s[0], si, 2); A.s_add_u32(t_s[0], t_s[0], w); A.s_mul_i32(sXu, t_s[0], 40960); A.s_lshl_b32(sSTu, t_s[0], 11)

    def dma_chunk(base, c, slot, nt=0):
        res = {}
        def mk(k):
            def f():
                if k == 0:
                    A.s_add_u32(so2, base, c * SLOT); A.s_add_u32('m0', sM0w, slot * SLOT)
                res['tag'] = A.buffer_load_dwordx4(L16, WS, so2, mods=f'offen offset:{k*1024} lds', k='m2')
            return f
        return [mk(k) for k in range(4)], res
    w1tag = {}
    def issue_w1(cs):
        out = []
        for c in cs:
            fl, res = dma_chunk(sW1, c, c, cfg.nt1); w1tag[c] = res; out += fl
        return out
    XF = [a(4 * k, 4) for k in range(40)]
    def xloads(base_const):
        tags = {}
        def mk(k):
            def f():
                if k % 4 == 0:
                    if k == 0: A.s_add_u32(so, sXu, base_const)
                    else: A.s_add_u32(so, so, 4096)
                tags[k] = A.buffer_load_dwordx4(XF[k], L16, WS, so, mods=f'offen offset:{(k & 3)*1024} sc1')
            return f
        return [mk(k) for k in range(40)], tags
    srd(A, OUT, POUT, X_SZ); srd(A, XIN, PX, X_SZ)
    A.v_add_u32(L16b, 0x10000, L16); A.v_add_u32(L16c, 0x20000, L16)
    A.v_lshrrev_b32(hf, 5, lane); A.v_and_b32(l15, 15, lane); A.v_lshrrev_b32(q, 4, lane)
    A.v_and_b32(m, 31, lane); A.v_lshrrev_b32(g, 3, m); A.v_bfe_u32(h, m, 2, 1); A.v_and_b32(r, 3, m)
    A.s_mul_i32(sW3, sj, W3_J); A.s_add_u32(sW3, sW3, sM0w); A.s_add_u32(sW3, sW3, W3_OFF)
    A.s_mul_i32(t_s[0], sfs, 20); A.s_mul_i32(t_s[1], w, 5); A.s_add_u32(t_s[0], t_s[0], t_s[1]); A.s_mul_i32(sW2, t_s[0], 5120); A.s_add_u32(sW2, sW2, W2_OFF)
    A.s_mul_i32(t_s[0], sfs, 48); A.s_mul_i32(t_s[1], w, 12); A.s_add_u32(t_s[0], t_s[0], t_s[1]); A.s_mul_i32(sW4, t_s[0], 5120); A.s_add_u32(sW4, sW4, W4_OFF)
    A.s_mul_i32(sKVr, sj, 16 * KV_SLOT); A.s_mul_i32(t_s[0], si, KV_SLOT); A.s_add_u32(sKVw, sKVr, t_s[0])
    A.s_lshl_b32(sFl, si, 8)
    A.s_lshl_b32(t_s[0], w, 4); A.s_add_u32(t_s[0], t_s[0], sj); A.s_lshl_b32(t_s[0], t_s[0], 2); A.s_add_u32(sFlW1, sFl, t_s[0])
    A.s_lshl_b32(t_s[0], sth, 2); A.s_add_u32(t_s[0], t_s[0], w); A.s_lshl_b32(t_s[0], t_s[0], 3); A.s_add_u32(t_s[0], t_s[0], sfs)
    A.s_lshl_b32(t_s[0], t_s[0], 2); A.s_add_u32(sFlW2, sFl, t_s[0])
    A.s_lshl_b32(t_s[0], si, 2); A.s_lshl_b32(t_s[1], sth, 1); A.s_add_u32(t_s[0], t_s[0], t_s[1]); A.s_lshr_b32(t_s[1], w, 1); A.s_add_u32(t_s[0], t_s[0], t_s[1])
    A.s_mul_i32(sXst, t_s[0], 40960); A.s_mul_i32(t_s[1], sfs, 5120); A.s_add_u32(sXst, sXst, t_s[1])
    A.s_lshl_b32(sSTst, t_s[0], 11); A.s_and_b32(t_s[1], w, 1); A.s_lshl_b32(t_s[1], t_s[1], 10); A.s_add_u32(sSTst, sSTst, t_s[1])
    A.s_lshl_b32(t_s[1], sfs, 7); A.s_add_u32(sSTst, sSTst, t_s[1])
    A.s_mul_i32(sOst, si, 8 * B.o_tile)
    A.s_mul_i32(sHst, si, 393216); A.s_mul_i32(t_s[1], sj, 3072); A.s_add_u32(sHst, sHst, t_s[1])
    for tau in range(4):
        A.s_add_u32(t_s[0], w, tau); A.s_and_b32(t_s[0], t_s[0], 3)
        if tau:
            A.s_mul_i32(t_s[1], t_s[0], 15360); A.s_add_u32(t_s[1], t_s[1], RD + (3 - tau) * 5120); A.v_add_u32(vRDw[tau], t_s[1], L16)
        A.s_lshl_b32(t_s[1], sth, 2); A.s_add_u32(t_s[0], t_s[0], t_s[1])
        A.s_mul_i32(t_s[1], t_s[0], B.o_tile); A.s_add_u32(sOld[tau], t_s[1], sOst); A.s_mul_i32(t_s[1], w, 5120); A.s_add_u32(sOld[tau], sOld[tau], t_s[1])
        A.s_mul_i32(t_s[1], t_s[0], 49152); A.s_mul_i32(t_s[2], si, 393216); A.s_add_u32(sHld[tau], t_s[1], t_s[2]); A.s_mul_i32(t_s[1], w, 12288); A.s_add_u32(sHld[tau], sHld[tau], t_s[1])
    A.s_mul_i32(t_s[1], w, 15360); A.s_add_u32(t_s[1], t_s[1], RD); A.v_add_u32(vRDr, t_s[1], L16)
    A.s_and_b32(t_s[0], w, 1); A.s_lshl_b32(t_s[0], t_s[0], 4); A.v_add_u32(t3, t_s[0], l15)
    A.v_lshrrev_b32(t0, 1, q); A.v_and_b32(t1, 1, q)
    A.v_lshl_add_u32(t2, t1, 5, t3); A.v_lshlrev_b32(t2, 4, t2); A.v_lshl_add_u32(vXst0, t0, 10, t2)
    A.v_lshl_add_u32(t2, t0, 5, t3); A.v_lshlrev_b32(t2, 4, t2); A.v_lshl_add_u32(t2, t1, 3, t2); A.v_add_u32(vXst2, 4096, t2)
    A.v_lshlrev_b32(t2, 3, l15); A.v_lshl_add_u32(vSTst, hf, 2, t2)
    A.v_lshrrev_b32(t0, 4, m); A.v_lshl_add_u32(t2, t0, 10, t2); A.v_lshl_add_u32(vSTld, hf, 9, t2)
    A.s_lshl_b32(t_s[0], w, 1); A.v_lshrrev_b32(t0, 4, m); A.v_add_u32(t0, t_s[0], t0)
    A.s_mov_b32(t_s[1], 49152); A.v_mul_lo_u32(t1, t0, t_s[1]); A.v_lshl_add_u32(t1, l15, 4, t1); A.v_lshl_add_u32(vHst, hf, 8, t1)
    A.v_mul_u32_u24(t0, B.o_tile, t0); A.v_lshl_add_u32(t0, l15, 4, t0)
    A.s_mul_i32(t_s[0], sj, 5)
    for dst_, add in ((vOst0, 0), (vOst1, 1)):
        A.v_lshl_add_u32(t1, hf, 1, t_s[0])
        if add: A.v_add_u32(t1, 1, t1)
        A.v_lshl_add_u32(dst_, t1, 8, t0)
    A.s_add_u32(t_s[0], t_s[0], 4); A.s_lshl_b32(t_s[0], t_s[0], 8); A.v_add_u32(t1, t_s[0], t0); A.v_lshl_add_u32(vOst2, hf, 3, t1)
    A.s_lshl_b32(t_s[0], si, 7); A.s_lshl_b32(t_s[1], sth, 6); A.s_add_u32(t_s[0], t_s[0], t_s[1]); A.s_lshl_b32(t_s[1], w, 4); A.s_add_u32(t_s[0], t_s[0], t_s[1])
    A.v_add_u32(t0, t_s[0], l15); A.v_mul_u32_u24(t0, 1280, t0); A.s_mul_i32(t_s[0], sfs, 160); A.v_add_u32(t0, t_s[0], t0)
    A.v_lshl_add_u32(vOUT0, q, 4, t0); A.v_lshl_add_u32(t0, q, 3, t0); A.v_add_u32(vOUT2, 128, t0)
    A.v_bfe_u32(t0, lane, 2, 1); A.s_lshl_b32(t_s[0], sth, 1); A.v_add_u32(t0, t_s[0], t0); A.v_lshlrev_b32(t0, 4, t0)
    A.s_lshl_b32(t_s[0], w, 2); A.v_add3_u32(t0, t0, r, t_s[0]); A.v_lshlrev_b32(vFlA, 2, t0)
    A.s_lshl_b32(t_s[0], w, 4); A.v_add_u32(t0, t_s[0], l15); A.v_lshlrev_b32(vFlB, 2, t0)
    A.v_mov_b32(t3, OOB)
    A.v_cmp_eq_u32('vcc', 0, lane); A.v_cndmask_b32(vZ, t3, lane, 'vcc')
    A.s_and_b32(t_s[0], w, 1); A.s_lshl_b32(t_s[0], t_s[0], 4); A.v_add_u32(t0, t_s[0], l15)
    A.s_lshr_b32(t_s[1], w, 1); A.s_mul_i32(t_s[2], t_s[1], 21); A.v_add_u32(t1, t_s[2], t0); A.v_mul_u32_u24(t1, 80, t1)
    A.v_cmp_gt_u32('vcc', 21, t0); A.v_cndmask_b32(t1, t3, t1, 'vcc')
    A.v_lshl_add_u32(vKVst0, q, 4, t1)
    A.v_lshl_add_u32(t1, q, 3, t1); A.v_add_u32(t1, 64, t1); A.v_cmp_gt_u32('vcc', 2, q); A.v_cndmask_b32(vKVst1, t3, t1, 'vcc')
    A.v_lshlrev_b32(t0, 4, tid); A.v_add_u32(vKBw, KVB, t0); A.v_cmp_gt_u32('vcc', 210, tid); A.v_cndmask_b32(vKVld, t3, t0, 'vcc')
    A.s_lshl_b32(t_s[0], w, 5); A.v_lshl_add_u32(t0, hf, 7, m); A.v_add_u32(t0, t_s[0], t0); A.v_mul_u32_u24(vTRw, 160, t0)
    A.s_lshl_b32(t_s[0], t_s[1], 7); A.v_lshrrev_b32(t0, 2, lane); A.v_add_u32(t0, t_s[0], t0)
    A.v_mul_u32_u24(t0, 160, t0); A.v_lshl_add_u32(vTRa, r, 3, t0)
    A.s_and_b32(t_s[0], w, 1); A.s_lshl_b32(t_s[0], t_s[0], 5); A.s_add_u32(t_s[0], t_s[0], 80); A.v_add_u32(vTRb, t_s[0], vTRa)
    A.v_lshl_add_u32(t0, g, 2, r); A.v_mul_u32_u24(t1, 21, hf); A.v_add_u32(t1, t1, t0); A.v_mul_u32_u24(t1, 80, t1); A.v_add_u32(t1, KVB, t1)
    A.v_mov_b32(t2, KVB + 3360)
    A.v_cmp_eq_u32('vcc', h, hf); A.v_cndmask_b32(vKBr0, t2, t1, 'vcc')
    A.v_add_u32(t1, 1280, t1); A.v_cndmask_b32(t1, t2, t1, 'vcc'); A.v_cmp_gt_u32('vcc', 5, t0); A.v_cndmask_b32(vKBr1, t2, t1, 'vcc')
    A.v_mov_b32(t2, -100 & 0xffffffff); A.v_cmp_eq_u32('vcc', h, hf); A.v_cndmask_b32(t0, t2, t0, 'vcc')
    sel_frag(A, SEL, t0, t1, t2)
    A.s_lshr_b32(t_s[0], sj, 1); A.s_and_b32(t_s[1], sj, 1); A.s_lshl_b32(t_s[1], t_s[1], 3); A.s_add_u32(t_s[0], t_s[0], t_s[1])
    A.v_and_b32(t0, 7, lane); A.v_min_u32(t1, 2, t0); A.v_lshl_add_u32(t1, t1, 4, t_s[0])
    A.s_lshl_b32(t_s[0], si, 2); A.s_add_u32(t_s[0], t_s[0], B_X); A.v_and_b32(t2, 3, t0); A.v_add_u32(t2, t_s[0], t2)
    A.v_cmp_gt_u32('vcc', 4, t0); A.v_cndmask_b32(t1, t2, t1, 'vcc'); A.v_lshlrev_b32(vPF0, 7, t1)
    A.s_bfe_u32(t_s[0], b, (1 << 16) | 7); A.s_lshl_b32(t_s[0], t_s[0], 7); A.s_and_b32(t_s[1], b, 7); A.s_add_u32(t_s[0], t_s[0], t_s[1])
    A.v_lshl_add_u32(t0, l15, 3, t_s[0])
    A.v_and_b32(t1, 7, lane); A.v_bfe_u32(t2, lane, 3, 1); A.v_lshl_add_u32(t1, t2, 7, t1); A.s_lshl_b32(t_s[0], sj, 3); A.v_add_u32(t1, t_s[0], t1)
    A.v_mov_b32(t2, B_W24); A.v_add3_u32(t2, t2, lane, -16); A.v_min_u32(t2, B_END - 1, t2)
    A.s_mul_i32(t_s[0], sj, 3); A.v_min_u32(vN2 := v(165), 2, r); A.v_add_u32(vN2, t_s[0], vN2)
    A.v_lshrrev_b32(v(166), 1, vN2); A.v_mad_u32_u24(v(166), h, 24, v(166))
    A.v_and_b32(vN2, 1, vN2); A.v_lshlrev_b32(vN2, 3, vN2); A.v_and_b32(v(167), 7, v(166)); A.v_add_u32(vN2, vN2, v(167))
    A.v_lshrrev_b32(v(166), 3, v(166)); A.v_lshl_add_u32(vN2, v(166), 4, vN2); A.v_add_u32(vN2, B_W3, vN2)
    A.s_cmp_eq_u32(w, 0); A.s_cselect_b64('vcc', -1, 0); A.v_cndmask_b32(t2, t2, t1, 'vcc')
    A.s_cmp_eq_u32(w, 3); A.s_cselect_b64('vcc', -1, 0); A.v_cndmask_b32(t2, t2, vN2, 'vcc')
    A.v_cmp_gt_u32('vcc', 16, lane); A.v_cndmask_b32(t2, t2, t0, 'vcc'); A.v_lshlrev_b32(vPF1, 7, t2)
    def pf_bad():
        A.v_xor_b32(MISC[5], sxcc, PFD[1]); A.v_lshrrev_b32(MISC[5], 4, MISC[5]); A.v_xor_b32(MISC[6], sNonce, PFD[0]); A.v_or_b32(MISC[5], MISC[5], MISC[6])
        A.v_cmp_ne_u32('vcc', 0, MISC[5])
    def pf_poll(va):
        L = A.newlabel('pfpoll'); Lx = A.newlabel('pfx')
        A.s_mov_b32(t_s[3], PF_OFF); A.s_mov_b32(sspin, 0)
        A.label(L)
        A.buffer_load_dwordx2(PFD, va, WS, t_s[3], mods='offen sc1')
        A.s_add_u32(sspin, sspin, 1); A.s_cmp_gt_u32(sspin, SPIN); A.s_cbranch_scc1(Lx)
        A.wait_vm(); pf_bad(); A.s_cbranch_vccnz(L)
        A.label(Lx); A.I('s_waitcnt', 'vmcnt(0)')
    stamp('pp')
    pf_poll(vPF0)
    stamp(); stamp('pp')
    x0, x0tags = xloads(B.xa(0))
    for c in range(2):
        for f in issue_w1([c]): f()
        for k in range(5 * c, 5 * c + 5): x0[k]()

    class Bulk:
        def __init__(q): q.items = []; q.open = set(); q.cur = None; q.quiet = None; q.altc = 0
        def add(q, name, fs, gate, kind, dma=False):
            for f in fs: q.items.append((name, f, gate, kind, dma))
        def gate(q, g): q.open.add(g)
        def predict(q, kind):
            pc, lc, lat = A.COST[kind]
            d = max(A.port, A.t) + lat
            if lc: d = max(d, max(A.link, A.t) + lat)
            return max(d, A.prev)
        def pick(q, prefer=None):
            first = None
            for k, it in enumerate(q.items):
                if it[2] is not None and it[2] not in q.open: continue
                if it[4] and q.cur is not None and it[0] != q.cur: continue
                if first is None: first = k
                if prefer is None or it[3] == prefer: return k
            return first
        def emit(q, k):
            it = q.items.pop(k); A.label_ = it[0]; it[1](); A.label_ = None
            if it[4]: q.cur = it[0] if any(x[0] == it[0] for x in q.items) else None
        def pump(q, force=0, limit=None):
            n = 0
            while True:
                k0 = q.pick()
                kv = k0 is not None and q.items[k0][3] == 'kv'
                if force <= n and ((A.prev - A.t >= (limit or cfg.backlog) and not kv) or A.inflight() >= A.NCAP - 1): return
                if force <= n and n >= 1: return
                pref = None
                if cfg.alt and q.altc % cfg.alt == cfg.alt - 1: pref = 'm4'
                k = q.pick(pref)
                if k is None: return
                if kv: k = k0
                elif q.quiet is not None and q.predict(q.items[k][3]) > q.quiet: return
                q.altc += 1
                q.emit(k); n += 1
        def flush(q, name):
            while any(x[0] == name for x in q.items):
                if q.cur is not None and q.cur != name: k = next(i for i, x in enumerate(q.items) if x[0] == q.cur)
                else: k = next(i for i, x in enumerate(q.items) if x[0] == name)
                it = q.items[k]; assert it[2] is None or it[2] in q.open, ('gate closed', it[0], it[2])
                q.emit(k)
        def quiet_for(q, name):
            q.quiet = ev_in.get(name, 1 << 60) + cfg.qslack
        def mark(q, name):
            ev[name] = A.t; q.quiet = None
    Q = Bulk()
    sTt = s(93)
    def poll(vaddr, sbase, const, need, dst=None):
        dst = dst or MISC[7]
        L = A.newlabel('poll'); Lx = A.newlabel('pollx')
        A.s_add_u32(t_s[3], sbase, const); A.s_mov_b32(sspin, 0)
        A.label(L)
        A.buffer_load_dword(dst, vaddr, WS, t_s[3], mods='offen sc1')
        A.s_add_u32(sspin, sspin, 1); A.s_cmp_gt_u32(sspin, SPIN); A.s_cbranch_scc1(Lx)
        A.wait_vm()
        A.v_cmp_gt_u32('vcc', need, dst)
        A.s_cbranch_vccnz(L)
        A.label(Lx)
        A.I('s_waitcnt', 'vmcnt(0)')
        A.t += 300
    def check_issue(vaddr, sbase, const):
        A.s_add_u32(t_s[3], sbase, const)
        return A.buffer_load_dword(MISC[7], vaddr, WS, t_s[3], mods='offen sc1')
    def check_wait(tag, vaddr, sbase, const, need):
        Lp = A.newlabel('chkpoll'); Lb = A.newlabel('chkok')
        A.wait_vm(tag)
        A.v_cmp_gt_u32('vcc', need, MISC[7]); A.s_cbranch_vccnz(Lp)
        A.label(Lb)
        def slow():
            A.label(Lp); poll(vaddr, sbase, const, need); A.s_branch(Lb)
        tail.append(slow)
    def publish(tag, sidx, const, value):
        Ls = A.newlabel('slow'); Lb = A.newlabel('back')
        A.v_mov_b32(MISC[6], value); A.s_add_u32(t_s[3], sidx, const)
        A.wait_vm(tag)
        A.s_cmp_eq_u32(sfast, 0); A.s_cbranch_scc1(Ls)
        A.buffer_store_dword(MISC[6], vZ, WS, t_s[3], mods='offen')
        A.label(Lb)
        def slow():
            A.label(Ls)
            A.I('buffer_wbl2', mods='sc1'); A.I('s_waitcnt', 'vmcnt(0)')
            A.buffer_store_dword(MISC[6], vZ, WS, t_s[3], mods='offen sc1')
            A.s_branch(Lb)
        tail.append(slow)
    def sync(tag, sidx, const, vpoll):
        Q.pump(force=cfg.win)
        publish(tag, sidx, const, 1)
        poll(vpoll, sFl, const, 1)
    def touch(vaddr, sbase, const, imm=0):
        def f():
            A.s_add_u32(sTt, sbase, const)
            A.buffer_load_dword(DUMMY, vaddr, WS, sTt, mods=f'offen offset:{imm} sc1', k='touch')
        return f
    def t_O(l): return [touch(x, sOst, B.o(l)) for x in (vOst0, vOst1, vOst2)] if cfg.touch else []
    def t_X(xc, stc): return [touch(vXst0, sXst, xc), touch(vXst0, sXst, xc, 2048), touch(vXst2, sXst, xc), touch(vSTst, sSTst, stc)] if cfg.touch else []
    def t_H(l, p): return [touch(vHst, sHst, B.h(l), p * 1024 + c * 512) for c in range(2)] if cfg.touch else []
    def t_F(va, l, kind): return [touch(va, sFl, flg(l, kind))] if cfg.touch else []
    def spread(sched, items, start, end=None, per=None):
        n = len(items)
        for k, f in enumerate(items):
            idx = start + (k // per if per else (k * (end - start)) // n)
            sched[idx].append(f)
    def V(op, *ops, **kw): return lambda: A.I(op, *ops, **kw)
    def run_valu(fs, every=5):
        for k, f in enumerate(fs):
            f()
            if k % every == every - 1: Q.pump()
    def st_loads(ST, const):
        tag = {}
        def f():
            A.s_add_u32(t_s[2], sSTu, const)
            for k in range(4): tag[0] = A.buffer_load_dwordx2(ST[2 * k: 2 * k + 2], vSTld, WS, t_s[2], mods=f'offen offset:{128*k} sc1', k='touch')
        return f, tag
    def rstd_stream(ST, mode):
        S_, Q_, S2, Q2 = ST[0], ST[1], ST[2], ST[3]
        o = [V('v_add_f32', S_, ST[0], ST[2]), V('v_add_f32', Q_, ST[1], ST[3]), V('v_add_f32', ST[4], ST[4], ST[6]), V('v_add_f32', ST[5], ST[5], ST[7]),
             V('v_add_f32', S_, S_, ST[4]), V('v_add_f32', Q_, Q_, ST[5]), V('v_mov_b32', S2, S_), V('v_mov_b32', Q2, Q_),
             V('v_permlane32_swap_b32', S_, S2), V('v_permlane32_swap_b32', Q_, Q2), V('v_add_f32', S_, S_, S2), V('v_add_f32', Q_, Q_, Q2),
             V('v_mul_f32', S_, 0x3acccccd, S_), V('v_mul_f32', Q_, 0x3acccccd, Q_), V('v_fma_f32', Q_, Neg(S_), S_, Q_),
             V('v_max_f32', Q_, 0, Q_), V('v_add_f32', Q_, 0x3727c5ac, Q_)]
        if mode == 'k': o += [V('v_rsq_f32', vrs, Q_), V('v_mul_f32', MISC[0], LOG2E, vrs)]
        else: o += [V('v_rcp_f32', vrs, Q_)]
        return o
    def softmax_stream(P, T, dest):
        sc, mx, mn, sp, sn = MISC[0], MISC[1], MISC[2], MISC[3], MISC[4]
        o = [V('v_max3_f32', mx, P[0], P[1], P[2]), V('v_min3_f32', mn, P[0], P[1], P[2])]
        for k in range(3, 19, 2): o += [V('v_max3_f32', mx, mx, P[k], P[k + 1]), V('v_min3_f32', mn, mn, P[k], P[k + 1])]
        o += [V('v_max_f32', mx, mx, P[19]), V('v_min_f32', mn, mn, P[19]), V('v_mul_f32', mx, sc, mx), V('v_mul_f32', mn, sc, mn)]
        for k in range(20):
            o += [V('v_fma_f32', T[k], P[k], sc, Neg(mx)), V('v_fma_f32', P[k], Neg(P[k]), sc, mn)]
            if k >= 1: o += [V('v_exp_f32', T[k - 1], T[k - 1]), V('v_exp_f32', P[k - 1], P[k - 1])]
            if k == 3: o += [V('v_add_f32', sp, T[0], T[1]), V('v_add_f32', sn, P[0], P[1])]
            if k > 3: o += [V('v_add_f32', sp, sp, T[k - 2]), V('v_add_f32', sn, sn, P[k - 2])]
        o += [V('v_exp_f32', T[19], T[19]), V('v_exp_f32', P[19], P[19]), V('v_add_f32', sp, sp, T[18]), V('v_add_f32', sn, sn, P[18]),
              V('v_add_f32', sp, sp, T[19]), V('v_add_f32', sn, sn, P[19]), V('v_rcp_f32', sp, sp), V('v_rcp_f32', sn, sn)]
        for src, rc, base in ((T, sp, 0), (P, sn, 20)):
            for k in range(0, 20, 2):
                o += [V('v_mul_f32', src[k], rc, src[k]), V('v_mul_f32', src[k + 1], rc, src[k + 1]), V('v_cvt_pk_bf16_f32', dest(base + k), src[k], src[k + 1])]
        return o

    class Stream:
        def __init__(z, name, nchunk, slot, tagd, covered, onbar):
            z.name, z.nchunk, z.slot, z.tagd, z.cov, z.onbar = name, nchunk, slot, tagd, covered, onbar
            z.tags = {}
        def off(z, k): return z.slot[k >> 4] * SLOT + (k & 15) * 1024
        def barrier(z, idx, need=None):
            if need is not None: Q.flush(f'{z.name}{need}')
            c = z.cov if need is None else max(z.cov, need)
            while c + 1 < z.nchunk and 'tag' in z.tagd.get(c + 1, {}) and not any(x[0] == f'{z.name}{c+1}' for x in Q.items) \
                    and A.done[z.tagd[c + 1]['tag']] <= A.t + 100: c += 1
            if c > z.cov: A.wait_vm(z.tagd[c]['tag'])
            z.cov = c
            A.s_barrier(); z.onbar(idx)
        def rd(z, k, idx):
            if (k >> 4) > z.cov: z.barrier(idx, k >> 4)
            ad, off = lds_addr(z.off(k)); z.tags[k] = A.ds_read_b128(RING[k % 4], ad, mods=f'offset:{off}')
        def due(z, idx):
            for c in range(min(z.nchunk - 1, (idx + cfg.LK) >> 4) + 1):
                for k, it in enumerate(Q.items):
                    if it[0] == f'{z.name}{c}':
                        if it[2] not in Q.open: return False
                        if Q.cur is not None and Q.cur != it[0]: k = next(i for i, x in enumerate(Q.items) if x[0] == Q.cur)
                        Q.emit(k); return True
            return False
        def run(z, lo, hi, mk, pre, post, total, mix=0, mix_end=0):
            for idx in range(lo, hi):
                for f in pre.get(idx, []): f()
                if idx + 3 < total and (idx + 3) not in z.tags: z.rd(idx + 3, idx)
                A.wait_lg(z.tags[idx])
                mk(idx)
                for f in post.get(idx, []): f()
                if idx % 2 == 1 and z.due(idx): continue
                if idx < mix_end:
                    if mix and idx % mix == mix - 1: Q.pump(force=1)
                else: Q.pump()

    W2F = [a(160 + 4 * k, 4) for k in range(24)] + [a(80, 4)]
    OF = [a(4 * k, 4) for k in range(20)]
    W4F = [v(152 + 4 * k, 4) for k in range(24)] + [a(160 + 4 * k, 4) for k in range(24)] + [a(4 * k, 4) for k in range(12)]
    HF = [a(48 + 4 * k, 4) for k in range(28)]
    p4order = [3 * jj + p for p in range(3) for jj in range(4)]
    w3slot = {0: 3, 1: 4, 2: 5, 3: 0, 4: 1, 5: 2, 6: 6, 7: 7, 8: 8, 9: 9, 10: 3, 11: 4, 12: 5, 13: 0, 14: 1}
    w1slot = {c: c for c in range(10)}
    w3tag = {}; bk = {'cur': None}; w1tags = {0: w1tag, 1: {}}
    def q_w3(l, c, gate):
        fl, res = dma_chunk(sW3, c, w3slot[c]); w3tag[c] = res; Q.add(f'W3_{l}_{c}', fl, gate, 'm2', True)
    def q_w1(l, c, gate):
        fl, res = dma_chunk(sW1, c, c); w1tags[l][c] = res; Q.add(f'W1_{l}_{c}', fl, gate, 'm2', True)
    def wloads(frags, sbase, order):
        tags = {}
        def mk(ri, mi):
            def f():
                key = (str(sbase), mi >> 2)
                if bk['cur'] != key:
                    A.s_add_u32(sBk, sbase, (mi >> 2) * 4096); bk['cur'] = key
                tags[ri] = A.buffer_load_dwordx4(frags[ri], L16, WS, sBk, mods=f'offen offset:{(mi & 3)*1024}', k='m4')
            return f
        return [mk(ri, mi) for ri, mi in order], tags
    wt = {}
    def enqueue(l):
        for c in (range(2, 10) if l == 0 else (8, 9)): q_w1(l, c, f'p1s{l}')
        Q.add(f'tO{l}', t_O(l), f'p1s{l}', 'touch')
        w2l, wt['w2'] = wloads(W2F, sW2, [(k, k) for k in range(25)])
        Q.add(f'W2_{l}', w2l[:24], f'p1s{l}' if l else 'prep', 'm4'); Q.add(f'W2_{l}', w2l[24:], f't3done{l}', 'm4')
        if l == 0: Q.add('tH0', t_H(0, 0) + t_H(0, 1) + t_H(0, 2), 'B2_0', 'touch')
        Q.add(f'tX{l}', t_X(B.xb(l), B.stb(l)) + t_F(vFlA, l, K_O), f't3done{l}', 'touch')
        for c in (0, 1): q_w3(l, c, f'B1_{l}')
        q_w3(l, 2, f'B2_{l}')
        for c in (3, 4, 5): q_w3(l, c, f'B3_{l}')
        Q.add(f'tH{l}a', t_H(l, 0) + t_F(vFlB, l, K_XB), f'p2s{l}', 'touch')
        for c in (6, 7, 8, 9): q_w3(l, c, f'RD2_{l}')
        Q.add(f'tH{l}b', t_H(l, 1) + t_H(l, 2) + t_F(vFlA, l, K_H), f'p3f{l}_14', 'touch')
        for c in range(10, 15): q_w3(l, c, f'p3f{l}_{c}')
        order = [(5 * n + ft, 5 * p4order[n] + ft) for n in range(12) for ft in range(5)]
        w4l, wt['w4'] = wloads(W4F, sW4, order)
        for k, f in enumerate(w4l): Q.add(f'W4_{l}_{k // 5}', [f], f'Ost{l}' if k < 24 else f'p2g{l}' if k < 48 else f'xfree{l}', 'm4')
        if l == 0:
            Q.add('tX1', t_X(B.xa(1), B.sta(1)) + t_F(vFlB, 1, K_XA), 'p4m', 'touch')
            for c in range(8): q_w1(1, c, 'p4s' if c < 6 else 'RD4')

    def p1(l):
        A.cmt(f'======== P1 layer {l}')
        acc = [ACC[16 * t: 16 * t + 16] for t in range(4)]
        LA = cfg.LA1
        if l == 0: xl, xt = x0, x0tags
        else:
            xl, xt = xloads(B.xa(l))
            for k in range(LA): xl[k]()
        enqueue(l)
        ST = PR[0:8]
        ldst, sttag = st_loads(ST, B.sta(l))
        pre, post = defaultdict(list), defaultdict(list)
        for s_ in range(LA, 40): post[2 * (s_ - LA)].append(xl[s_])
        e0 = 2 * (40 - LA)
        post[e0].append(ldst)
        xid = {}
        def onbar(idx):
            Q.gate(f'p1s{l}')
            if idx >= 80: Q.gate(f'B1_{l}')
        Z = Stream(f'W1_{l}_', 10, w1slot, w1tags[l], -1, onbar)
        def mf(idx):
            if idx < 80: t, s_ = idx & 1, idx >> 1
            else: t, s_ = divmod(idx - 80, 40); t += 2
            if idx < 80 and t == 0: A.wait_vm(xt[s_])
            A.v_mfma_f32_32x32x16_bf16(acc[t], RING[idx % 4], XF[s_], acc[t] if s_ else 0)
        for k in range(3): Z.rd(k, 0)
        if l == 0:
            def pf_issue():
                A.s_mov_b32(t_s[3], PF_OFF); xid['tag'] = A.buffer_load_dwordx2(PFD, vPF1, WS, t_s[3], mods='offen sc1', k='touch')
            def pf_check():
                Lp = A.newlabel('pf1poll'); Lb = A.newlabel('pf1ok')
                A.wait_vm(xid['tag']); pf_bad(); A.s_cbranch_vccnz(Lp); A.label(Lb)
                def slow(): A.label(Lp); pf_poll(vPF1); A.s_branch(Lb)
                tail.append(slow)
                A.v_cmp_ne_u32('vcc', sxcc, PFD[1]); A.s_and_b32(t_s[3], 'vcc_lo', 0xffff); A.s_cmp_eq_u32(t_s[3], 0); A.s_cselect_b32(sfast, 1, 0)
            post[cfg.pfat - 24].append(pf_issue)
            pre[cfg.pfat].append(lambda: (pf_check(), Z.barrier(cfg.pfat), Q.gate('prep')))
        pre[84].append(lambda: Z.barrier(84))
        Pk = [acc[0][k] for k in range(16)] + [acc[1][k] for k in range(4)]
        Tk = [PR[8 + k] for k in range(20)]
        spread(post, [lambda: A.wait_vm(sttag[0])] + rstd_stream(ST, 'k'), 74, 80)
        sm = softmax_stream(Pk, Tk, lambda f: TB[f >> 1])
        Vv = [acc[1][4 + k] for k in range(12)] + [acc[2][k] for k in range(8)]
        def vpack(k0, k1):
            o = []
            for k in range(k0, k1, 2):
                o += [V('v_mul_f32', Vv[k], vrs, Vv[k]), V('v_mul_f32', Vv[k + 1], vrs, Vv[k + 1]), V('v_cvt_pk_bf16_f32', TB[20 + (k >> 1)], Vv[k], Vv[k + 1])]
            return o
        def trw(k): return lambda: A.ds_write_b128(vTRw, TB[4 * k: 4 * k + 4], mods=f'offset:{TR + 16*k}')
        extra = vpack(0, 12) + [V('v_mov_b32', TB[30], 0x3f80), V('v_mov_b32', TB[31], 0)]
        nsh = 150
        spread(post, sm[:nsh], 81, 120)
        Z.run(0, 120, mf, pre, post, 120, cfg.mix1, e0)
        rem = sm[nsh:]; seq = []
        n_after = {len(rem) - 48: 0, len(rem) - 36: 1, len(rem) - 24: 2, len(rem) - 12: 3}
        for k, f in enumerate(rem):
            if k in n_after: seq.append(trw(n_after[k]))
            seq.append(f)
        seq += [trw(4)] + extra + [trw(5)] + vpack(12, 20) + [trw(6), trw(7)]
        run_valu(seq)
        A.wait_lg(); Z.barrier(120, 7); Q.gate(f'B2_{l}')
        stamp()
        kacc = [acc[0][4 * ft: 4 * ft + 4] for ft in range(3)]
        KB = [PR[0:16], PR[16:32], PR[32:48], PR[48:64]]
        ktag = {}
        for ks in range(4):
            for u in range(2): A.ds_read_b64_tr_b16(KB[ks][12 + 2 * u: 14 + 2 * u], vTRb, mods=f'offset:{TR + 5120*ks + 2560*u}')
            for ft in range(3):
                for u in range(2): ktag[ks, ft] = A.ds_read_b64_tr_b16(KB[ks][4 * ft + 2 * u: 4 * ft + 2 * u + 2], vTRa, mods=f'offset:{TR + 5120*ks + 2560*u + 32*ft}')
            if ks >= 1:
                for ft in range(3):
                    A.wait_lg(ktag[ks - 1, ft]); A.v_mfma_f32_16x16x32_bf16(kacc[ft], KB[ks - 1][4 * ft: 4 * ft + 4], KB[ks - 1][12:16], kacc[ft] if ks > 1 else 0)
            Q.pump()
        for ft in range(3):
            A.wait_lg(ktag[3, ft]); A.v_mfma_f32_16x16x32_bf16(kacc[ft], KB[3][4 * ft: 4 * ft + 4], KB[3][12:16], kacc[ft])
        for k in range(120, 123): Z.rd(k, 120)
        KP = acc[1][0:6]
        for k in range(6): A.v_cvt_pk_bf16_f32(KP[k], acc[0][2 * k], acc[0][2 * k + 1])
        for k in range(6): A.v_min_u32(KP[k], 0xfffffffe, KP[k])
        A.s_add_u32(t_s[2], sKVw, KVP_OFF + l * KV_SZ)
        A.buffer_store_dwordx4(KP[0:4], vKVst0, WS, t_s[2], mods='offen sc1')
        A.buffer_store_dwordx2(KP[4:6], vKVst1, WS, t_s[2], mods='offen sc1')
        stamp()
        pre, post = defaultdict(list), defaultdict(list)
        PRF = [PR[4 * k: 4 * k + 4] for k in range(16)]; ptag = {}
        def pld(k):
            def f():
                if k == 0: A.s_add_u32(so, sKVr, KVP_OFF + l * KV_SZ); Q.mark(f'kvld{l}')
                else: A.s_add_u32(so, so, KV_SLOT)
                ptag[k] = A.buffer_load_dwordx4(PRF[k], vKVld, WS, so, mods='offen sc1', k='kv')
            return f
        pl = [pld(k) for k in range(16)]
        Q.quiet_for(f'kvld{l}'); Q.quiet += 500
        Q.items = [(f'KV{l}', f, f'kvgo{l}', 'kv', False) for f in pl] + Q.items
        def kvgo(): Q.gate(f'kvgo{l}'); Q.quiet = None
        pre[cfg.kvld_at].append(kvgo)
        Z.run(120, 160, mf, pre, post, 160)
        Q.gate(f't3done{l}')
        if l == 0:
            A.buffer_load_dwordx4(RES[10:14], vOUT0, XIN, 0, mods='offen', k='slow'); A.buffer_load_dwordx4(RES[14:18], vOUT0, XIN, 0, mods='offen offset:64', k='slow')
            rtag = A.buffer_load_dwordx2(RES[18:20], vOUT2, XIN, 0, mods='offen', k='slow')
        Q.quiet_for(f'Ost{l}')
        Pq = [acc[2][8 + k] for k in range(8)] + [acc[3][k] for k in range(12)]
        Tq = [acc[1][k] for k in range(16)] + [acc[0][k] for k in range(4)]
        def qdest(f): return TB[4 * ((f & 15) >> 2) + 2 * (f >> 4) + ((f & 3) >> 1)] if f < 32 else TB[16 + ((f - 32) >> 1)]
        for k, f in enumerate(softmax_stream(Pq, Tq, qdest)):
            f()
            if k % 5 == 4: Q.pump(limit=cfg.backlog + 1400)
        Q.flush(f'KV{l}')
        stamp()
        Lre = A.newlabel('kvre'); Lrt = A.newlabel('kvretry')
        RACC = v(136, 16); mxu = MISC[5]
        A.s_mov_b32(sspin, 0)
        A.label(Lre)
        for k in range(16):
            A.wait_vm(ptag[k])
            A.v_mfma_f32_32x32x16_bf16(RACC, SEL, PRF[k], RACC if k else 0)
            if k == 0: A.v_max_u32(mxu, PRF[0][0], PRF[0][1])
            else: A.v_max3_u32(mxu, mxu, PRF[k][0], PRF[k][1])
            A.v_max3_u32(mxu, mxu, PRF[k][2], PRF[k][3])
        A.v_cmp_eq_u32('vcc', -1, mxu)
        A.s_cbranch_vccnz(Lrt)
        Lok = A.newlabel('kvok'); A.label(Lok)
        def retry():
            A.label(Lrt)
            A.s_add_u32(sspin, sspin, 1); A.s_cmp_gt_u32(sspin, SPIN >> 2); A.s_cbranch_scc1(Lok)
            A.s_nop(7)
            for f in pl: f()
            A.I('s_waitcnt', 'vmcnt(0)')
            A.s_branch(Lre)
        tail.append(retry)
        for k in range(4): A.v_cvt_pk_bf16_f32(MISC[k], RACC[2 * k], RACC[2 * k + 1])
        A.ds_write_b128(vKBw, MISC[0:4])
        Q.pump()
        A.wait_lg(); A.s_barrier(); Q.gate(f'B3_{l}')
        stamp()
        otag = {}
        for T_ in (1, 0):
            for s_ in range(5): otag[T_, s_] = A.ds_read_b128(PRF[5 * T_ + s_], (vKBr0, vKBr1)[T_], mods=f'offset:{16*s_}')
        oacc = [acc[0], acc[1]]
        for T_ in (1, 0):
            for s_ in range(5):
                A.wait_lg(otag[T_, s_])
                A.v_mfma_f32_32x32x16_bf16(oacc[T_], PRF[5 * T_ + s_], TB[4 * s_: 4 * s_ + 4], oacc[T_] if s_ else 0)
                Q.pump()
        den = MISC[1]
        A.v_add_f32(den, 0x358637bd, oacc[1][4]); A.v_rcp_f32(den, den)
        Ov = [oacc[0][k] for k in range(16)] + [oacc[1][k] for k in range(4)]
        OP = v(136, 10)
        A.s_add_u32(t_s[2], sOst, B.o(l))
        for k in list(range(16, 20, 2)) + list(range(0, 16, 2)):
            A.v_mul_f32(Ov[k], den, Ov[k]); A.v_mul_f32(Ov[k + 1], den, Ov[k + 1]); A.v_cvt_pk_bf16_f32(OP[k >> 1], Ov[k], Ov[k + 1])
            if k == 18: A.buffer_store_dwordx2(OP[8:10], vOst2, WS, t_s[2], mods='offen', k='st')
            if k == 6: A.buffer_store_dwordx4(OP[0:4], vOst0, WS, t_s[2], mods='offen')
            if k == 14: last = A.buffer_store_dwordx4(OP[4:8], vOst1, WS, t_s[2], mods='offen')
        Q.mark(f'Ost{l}'); Q.gate(f'Ost{l}')
        Q.flush(f'W2_{l}')
        if l == 0:
            A.wait_vm(rtag)
            for k in range(10):
                A.v_lshlrev_b32(RES[2 * k], 16, RES[10 + k]); A.v_and_b32(RES[2 * k + 1], 0xffff0000, RES[10 + k])
        stamp()
        sync(last, sFlW1, flg(l, K_O), vFlA)
        stamp()

    def ksplit_gemm(nsteps, WF, wneed, AF, atag, sched, pump_from, mix):
        acc = [[ACC[20 * tau + 4 * ft: 20 * tau + 4 * ft + 4] for ft in range(5)] for tau in range(4)]
        def mf(n, tau, ft):
            if ft == 0: A.wait_vm(atag[n, tau])
            wneed(n, ft)
            A.v_mfma_f32_16x16x32_bf16(acc[tau][ft], WF(n, ft), AF(n, tau), acc[tau][ft] if n else 0)
        def hook(key):
            for f in sched.get(key, []): f()
            if key[2] in (1, 4):
                if key[0] >= pump_from: Q.pump()
                elif mix and key[2] == 1 and key[1] % mix == 0: Q.pump(force=1)
        for n in range(nsteps - 2):
            for tau in range(4):
                for ft in range(5):
                    mf(n, tau, ft); hook((n, tau, ft))
        pend = []
        for ti, tau in enumerate((1, 2, 3, 0)):
            for n in (nsteps - 2, nsteps - 1):
                for ft in range(5):
                    mf(n, tau, ft)
                    k = (n - nsteps + 2) * 5 + ft
                    if k % 2 == 1 and pend: pend.pop(0)()
                    hook((nsteps - 2 + (ti >> 1), 2 * (ti & 1) + (n - nsteps + 2), ft))
            if tau: pend += [(lambda tau=tau, ft=ft: A.ds_write_b128(vRDw[tau], acc[tau][ft], mods=f'offset:{ft*1024}')) for ft in range(5)]
        for f in pend: f()
        return acc
    def reduce_epilogue(acc, final, xconst, stconst, flagconst, evname, gate):
        A.wait_lg(); A.s_barrier()
        rt = {}
        for ft in range(5):
            for k in range(3): rt[ft] = A.ds_read_b128(acc[k + 1][ft], vRDr, mods=f'offset:{k*5120 + ft*1024}')
        for ft in range(5):
            for e in range(0, 4, 2): A.v_pk_add_f32(RES[4 * ft + e: 4 * ft + e + 2], RES[4 * ft + e: 4 * ft + e + 2], acc[0][ft][e:e + 2])
        XP = ACC[0:10]; S2, Q2 = ACC[10:12], ACC[12:14]
        if not final: A.s_add_u32(t_s[2], sXst, xconst)
        for ft in range(5):
            A.wait_lg(rt[ft])
            for e in range(0, 4, 2):
                R2 = RES[4 * ft + e: 4 * ft + e + 2]
                A.v_pk_add_f32(acc[1][ft][e:e + 2], acc[1][ft][e:e + 2], acc[2][ft][e:e + 2])
                A.v_pk_add_f32(R2, R2, acc[3][ft][e:e + 2])
            for e in range(0, 4, 2):
                R2 = RES[4 * ft + e: 4 * ft + e + 2]
                A.v_pk_add_f32(R2, R2, acc[1][ft][e:e + 2])
            for e in range(0, 4, 2): A.v_cvt_pk_bf16_f32(XP[2 * ft + (e >> 1)], RES[4 * ft + e], RES[4 * ft + e + 1])
            if final:
                if ft == 1: A.buffer_store_dwordx4(XP[0:4], vOUT0, OUT, 0, mods='offen')
                if ft == 3: A.buffer_store_dwordx4(XP[4:8], vOUT0, OUT, 0, mods='offen offset:64')
                if ft == 4: A.buffer_store_dwordx2(XP[8:10], vOUT2, OUT, 0, mods='offen')
                continue
            if ft == 1: A.buffer_store_dwordx4(XP[0:4], vXst0, WS, t_s[2], mods='offen')
            if ft == 3: A.buffer_store_dwordx4(XP[4:8], vXst0, WS, t_s[2], mods='offen offset:2048')
            if ft == 4:
                A.buffer_store_dwordx2(XP[8:10], vXst2, WS, t_s[2], mods='offen', k='st')
                A.s_barrier(); Q.gate(gate)
            R0, R1 = RES[4 * ft: 4 * ft + 2], RES[4 * ft + 2: 4 * ft + 4]
            if ft == 0:
                A.v_pk_add_f32(S2, R0, R1); A.v_pk_mul_f32(Q2, R0, R0)
            else:
                A.v_pk_add_f32(S2, S2, R0); A.v_pk_fma_f32(Q2, R0, R0, Q2); A.v_pk_add_f32(S2, S2, R1)
            A.v_pk_fma_f32(Q2, R1, R1, Q2)
        if final: return
        A.v_add_f32(S2[0], S2[0], S2[1]); A.v_add_f32(Q2[0], Q2[0], Q2[1])
        A.s_add_u32(t_s[2], sSTst, stconst)
        A.v_permlane32_swap_b32(S2[0], Q2[0]); A.v_add_f32(S2[0], S2[0], Q2[0]); A.v_mov_b32(S2[1], S2[0])
        A.v_permlane16_swap_b32(S2[0], S2[1]); A.v_add_f32(S2[0], S2[0], S2[1])
        last = A.buffer_store_dword(S2[0], vSTst, WS, t_s[2], mods='offen', k='st')
        Q.mark(evname)
        stamp()
        sync(last, sFlW2, flagconst, vFlB)
    def slots(n0, n1, fts):
        return [(n, tau, ft) for n in range(n0, n1) for tau in range(4) for ft in fts]
    def put(sched, items, sl):
        assert len(items) <= len(sl), (len(items), len(sl))
        for k, f in enumerate(items): sched[sl[(k * len(sl)) // len(items)]].append(f)

    def p2(l):
        A.cmt(f'======== P2 layer {l}')
        atag = {}
        def aload(n, tau):
            A.s_add_u32(so, sOld[tau], B.o(l) + (n >> 2) * 4096)
            atag[n, tau] = A.buffer_load_dwordx4(OF[4 * n + tau], L16, WS, so, mods=f'offen offset:{(n & 3)*1024} sc1')
        for n in range(2):
            for tau in range(4): aload(n, tau)
        Q.gate(f'p2s{l}'); Q.quiet_for(f'XBst{l}')
        sched = defaultdict(list)
        put(sched, [(lambda n=n, tau=tau: aload(n, tau)) for n in range(2, 5) for tau in range(4)], slots(0, 2, (0, 2, 4))[:16])
        acc = ksplit_gemm(5, lambda n, ft: W2F[5 * n + ft], lambda n, ft: None, lambda n, tau: OF[4 * n + tau], atag, sched, 2, 0)
        Q.gate(f'p2g{l}')
        stamp()
        reduce_epilogue(acc, False, B.xb(l), B.stb(l), flg(l, K_XB), f'XBst{l}', f'RD2_{l}')
        stamp()

    def p34(l):
        A.cmt(f'======== P3 layer {l}')
        acc = [[ACC[32 * u + 16 * gu: 32 * u + 16 * gu + 16] for gu in range(2)] for u in range(2)]
        LA = cfg.LA1
        xl, xt = xloads(B.xb(l))
        for k in range(LA): xl[k]()
        ST = v(136, 8)
        ldst, sttag = st_loads(ST, B.stb(l))
        pre, post = defaultdict(list), defaultdict(list)
        for s_ in range(LA, 40): post[2 * (s_ - LA)].append(xl[s_])
        e0 = 2 * (40 - LA)
        post[e0].append(ldst)
        def onbar(idx):
            for c in range(10, 15):
                if idx >= 16 * (c - 10 + 1): Q.gate(f'p3f{l}_{c}')
        Z = Stream(f'W3_{l}_', 15, w3slot, w3tag, -1, onbar)
        def mf(idx):
            p, rem = divmod(idx, 80); s_, gu = rem >> 1, rem & 1
            if idx < 80 and gu == 0: A.wait_vm(xt[s_])
            ac = acc[p & 1][gu]
            A.v_mfma_f32_32x32x16_bf16(ac, RING[idx % 4], XF[s_], ac if s_ else 0)
        for k in range(3): Z.rd(k, 0)
        pre[84].append(lambda: Z.barrier(84))
        pre[186].append(lambda: Q.gate(f'xfree{l}'))
        spread(post, [lambda: A.wait_vm(sttag[0])] + rstd_stream(ST, 'sq'), 74, 80)
        HP = [v(144, 4), v(148, 4)]
        htag = {}
        def epi(p):
            G, U = acc[p & 1]; o = []
            for c in range(2):
                for k in range(8 * c, 8 * c + 8, 2):
                    o += [V('v_max_f32', G[k], 0, G[k]), V('v_max_f32', G[k + 1], 0, G[k + 1]), V('v_mul_f32', U[k], vrs, U[k]), V('v_mul_f32', U[k + 1], vrs, U[k + 1]),
                          V('v_mul_f32', G[k], G[k], U[k]), V('v_mul_f32', G[k + 1], G[k + 1], U[k + 1]), V('v_cvt_pk_bf16_f32', HP[c][(k & 7) >> 1], G[k], G[k + 1])]
                def st(c=c):
                    A.s_add_u32(so, sHst, B.h(l))
                    htag[p] = A.buffer_store_dwordx4(HP[c], vHst, WS, so, mods=f'offen offset:{p*1024 + c*512}')
                o.append(st)
            return o
        spread(post, epi(0), 82, 112)
        spread(post, epi(1), 162, 178)
        chk = {}
        post[204].append(lambda: publish(htag[1], sFlW1, flg(l, K_H), 2))
        post[226].append(lambda: chk.__setitem__(2, check_issue(vFlA, sFl, flg(l, K_H))))
        stamp('p3')
        for idx in (20, 40, 60, 80, 100, 120, 140, 160, 180, 200, 220): pre[idx].insert(0, lambda: stamp('p3'))
        Z.run(0, 240, mf, pre, post, 240, cfg.mix3, e0)
        stamp('p3')
        stamp()
        atag = {}
        def aload(n, tau):
            ms = p4order[n]
            A.s_add_u32(so, sHld[tau], B.h(l) + (ms >> 2) * 4096)
            atag[n, tau] = A.buffer_load_dwordx4(HF[(4 * n + tau) % 28], L16, WS, so, mods=f'offen offset:{(ms & 3)*1024} sc1')
        LAst = cfg.LA4
        def grp(n):
            Q.flush(f'W4_{l}_{n}')
        sched = defaultdict(list)
        check_wait(chk[2], vFlA, sFl, flg(l, K_H), 2)
        e2 = epi(2); first = [(n, tau) for n in range(LAst) for tau in range(4)]
        for k, f in enumerate(e2):
            if k % 4 == 0 and first:
                x = first.pop(0)
                if x[1] == 0: grp(x[0])
                aload(*x)
            f()
        for x in first:
            if x[1] == 0: grp(x[0])
            aload(*x)
        stamp()
        sched[(2, 1, 2)].append(lambda: publish(htag[2], sFlW1, flg(l, K_H), 3))
        sched[(3, 3, 2)].append(lambda: chk.__setitem__(3, check_issue(vFlA, sFl, flg(l, K_H))))
        sched[(7 - LAst, 3, 4)].append(lambda: check_wait(chk[3], vFlA, sFl, flg(l, K_H), 3))
        for n in range(LAst, 12):
            sched[(n - LAst, 0, 0)].append(lambda n=n: grp(n))
            for tau in range(4): sched[(n - LAst, tau, 0)].append(lambda n=n, tau=tau: aload(n, tau))
        if l == 0:
            A.s_barrier(); Q.gate('p4s'); sched[(6, 0, 1)].append(lambda: Q.gate('p4m'))
            Q.quiet_for('XAst')
        acc = ksplit_gemm(12, lambda n, ft: W4F[5 * n + ft], lambda n, ft: A.wait_vm(wt['w4'][5 * n + ft]), lambda n, tau: HF[(4 * n + tau) % 28], atag, sched, 12 - LAst, cfg.mix4)
        stamp()
        reduce_epilogue(acc, l == 1, B.xa(l + 1), B.sta(l + 1), flg(l + 1, K_XA) if l == 0 else None, 'XAst', 'RD4')
        stamp()
    for l in range(2):
        p1(l); p2(l); p34(l)
    assert not Q.items, [x[0] for x in Q.items]
    ev['end'] = A.t
    if cfg.diag:
        A.I('s_waitcnt', 'vmcnt(0)'); stamp('always')
        A.s_memrealtime(s(98, 2)); A.wait_lg()
        n = nstamp[0]
        A.s_lshl_b32(t_s[0], b, 10); A.s_lshl_b32(t_s[1], w, 8); A.s_add_u32(t_s[0], t_s[0], t_s[1]); A.s_add_u32(t_s[0], t_s[0], DBG_OFF)
        for k, sr in enumerate(STAMPS[:n] + [s(96), s(98), sfast]):
            A.v_mov_b32(MISC[0], sr)
            A.buffer_store_dword(MISC[0], vZ, WS, t_s[0], mods=f'offen offset:{4*(k if k < n else 40 + k - n)}')
    A.label('M_end')
    A.s_endpgm()
    k = 0
    evs = dict(ev); evs['trace'] = list(A.trace)
    while k < len(tail):
        A.vm = []; A.lg = []; tail[k](); k += 1
    A.label('M_codeend'); A.s_endpgm()
    nn = A.finalize()
    return A, nn, nstamp[0], evs
def gen_iter(cfg):
    ev = None
    class ND(cfg): diag = False
    for it in range(4): _, _, _, ev = gen_main(ND, ev)
    A, nn, ns, ev2 = gen_main(cfg, ev)
    return A, nn, ns, ev
```

```python
from asmlib import *
from layout import *

N_W1, N_W3, N_X, N_W24 = 48, 96, 64, 46
B_W3 = N_W1; B_X = B_W3 + N_W3; B_W24 = B_X + N_X; B_END = B_W24 + N_W24; PRE_GRID = 256
PRE_LDS = 81920 + 4096
PHI_LDS = 61440

def srd(A, d, ptr, size):
    A.s_mov_b32(d[0], ptr[0]); A.s_mov_b32(d[1], ptr[1]); A.s_mov_b32(d[2], size); A.s_mov_b32(d[3], 0x20000)

def sel_frag(A, dst, idx, t0, t1):
    A.v_and_b32(t0, 1, idx); A.v_lshlrev_b32(t0, 4, t0); A.v_mov_b32(t1, 0x3f80); A.v_lshlrev_b32(t0, t0, t1)
    A.v_ashrrev_i32(t1, 1, idx)
    for n in range(4):
        A.v_cmp_eq_u32('vcc', n, t1)
        A.v_cndmask_b32(dst[n], 0, t0, 'vcc')

def emit_prep(A, fill, after_karg, SC=' sc1', pstamp=lambda k: None, HELP=1, NT=0):
    nt = lambda bit: ' nt' if NT >> bit & 1 else ''
    diag = False
    def end():
        A.s_branch('PP_done'); A.vm = []; A.lg = []
    def stamp(): pstamp(1)
    P = s(40, 16); PX, PQKV, PPHI, PWO, PWG, PWU, PWD = P[0:2], P[2:4], P[4:6], P[6:8], P[10:12], P[12:14], P[14:16]
    PWS = s(62, 2)
    WS, SRC, PHI = s(8, 4), s(12, 4), s(16, 4)
    b, w = s(2), s(20)
    A.s_load_dwordx16(P, s(0, 2), 0); A.s_load_dwordx4(s(56, 4), s(0, 2), 64); A.s_load_dwordx2(PWS, s(0, 2), 80)
    tid, lane, l16, m, hf, g, h, r, pm = v(0), v(1), v(2), v(3), v(4), v(5), v(6), v(7), v(8)
    t0, t1, t2, t3 = v(9), v(10), v(11), v(12)
    A.v_and_b32(lane, 63, tid); A.v_lshlrev_b32(l16, 4, lane)
    A.v_lshrrev_b32(t0, 6, tid); A.v_and_b32(m, 31, tid); A.v_readfirstlane_b32(w, t0)
    A.v_lshrrev_b32(hf, 5, lane); A.v_lshrrev_b32(g, 3, m); A.v_bfe_u32(h, m, 2, 1); A.v_and_b32(r, 3, m)
    A.v_and_b32(pm, 0x13, m); A.v_lshl_or_b32(pm, h, 3, pm); A.v_bfe_u32(t0, m, 3, 1); A.v_lshl_or_b32(pm, t0, 2, pm)
    A.wait_lg()
    srd(A, WS, PWS, WS_USED)
    after_karg()
    sj, st, so, sb, sstr, sm0 = s(21), s(22), s(23), s(24), s(25), s(30)
    def helper(rank_base, bbase):
        if not HELP: return
        srd(A, PHI, PQKV, D * 3 * D * 2)
        A.s_sub_u32(s(26), b, bbase); A.s_lshr_b32(s(26), s(26), 3); A.s_add_u32(s(26), s(26), rank_base); A.s_lshl_b32(s(26), s(26), 8)
        A.v_add_u32(t0, s(26), tid); A.v_mul_u32_u24(t1, 10923, t0); A.v_lshrrev_b32(t1, 16, t1)
        A.v_mul_u32_u24(t2, 6, t1); A.v_sub_u32(t2, t0, t2); A.v_lshrrev_b32(t3, 1, t2); A.v_mul_u32_u24(t3, 1280, t3)
        A.v_and_b32(t2, 1, t2); A.v_lshl_add_u32(t3, t2, 7, t3); A.v_mad_u32_u24(t3, t1, A_const(A, s(27), 3840), t3)
        A.s_and_b32(s(26), b, 7); A.s_mul_i32(s(26), s(26), 160); A.s_andn2_b32(s(26), s(26), 127)
        A.buffer_load_dword(v(254), t3, PHI, s(26), mods='offen' + nt(4))
    A.s_cmp_ge_u32(b, B_END); A.s_cbranch_scc1('PP_fillonly')
    A.s_cmp_ge_u32(b, B_W24); A.s_cbranch_scc1('PP_w24')
    A.s_cmp_ge_u32(b, B_X); A.s_cbranch_scc1('PP_x')
    A.s_cmp_ge_u32(b, B_W3); A.s_cbranch_scc1('PP_w3')
    acc = [v(32 + 16 * k, 16) for k in range(10)]
    AF = [v(192 + 4 * k, 4) for k in range(6)]
    T = [v(216 + 4 * k, 4) for k in range(6)]
    vA = [v(13 + k) for k in range(5)]
    def center_store(nct, voff, vstr):
        neg = []
        for ct in range(nct):
            sm = v(240 + 2 * ct, 2)
            base = 32 + 80 * ct
            A.v_pk_add_f32(sm, v(base, 2), v(base + 2, 2))
            for k in range(2, 40): A.v_pk_add_f32(sm, sm, v(base + 2 * k, 2))
            A.v_add_f32(sm[0], sm[0], sm[1]); A.v_mov_b32(sm[1], sm[0])
            A.v_permlane32_swap_b32(sm[0], sm[1]); A.v_add_f32(sm[0], sm[0], sm[1])
        A.s_lshl_b32(s(26), w, 7); A.s_add_u32(s(26), s(26), 65536); A.v_lshl_add_u32(t2, m, 2, s(26))
        for ct in range(nct): A.ds_write_b32(t2, v(240 + 2 * ct), mods=f'offset:{512*ct}')
        A.wait_lg(); A.s_barrier()
        pstamp(2)
        A.v_lshlrev_b32(t2, 2, m); A.v_add_u32(t2, 65536, t2)
        for ct in range(nct):
            for k in range(4): A.ds_read_b32(v(244 + 4 * ct + k), t2, mods=f'offset:{512*ct + k*128}')
        A.wait_lg()
        for ct in range(nct):
            sm = v(240 + 2 * ct, 2); q = v(244 + 4 * ct, 4)
            A.v_add_f32(t0, q[0], q[1]); A.v_add_f32(t1, q[2], q[3]); A.v_add_f32(t0, t0, t1)
            A.v_mul_f32(sm[0], 0xbacccccd, t0); A.v_mov_b32(sm[1], sm[0])
        n = 0
        for ct in range(nct):
            sm = v(240 + 2 * ct, 2)
            for bb in range(5):
                for hh in range(2):
                    o = AF[n % 6]; n += 1
                    ac = acc[ct * 5 + bb]
                    for k in range(4):
                        pr = ac[8 * hh + 2 * k: 8 * hh + 2 * k + 2]
                        A.v_pk_add_f32(pr, pr, sm)
                    for k in range(4): A.v_cvt_pk_bf16_f32(o[k], ac[8 * hh + 2 * k], ac[8 * hh + 2 * k + 1])
                    A.buffer_store_dwordx4(o, voff[ct], WS, 0, mods='offen' + SC)
                    A.v_add_u32(voff[ct], vstr[ct], voff[ct])
    srd(A, SRC, PQKV, D * 3 * D * 2); srd(A, PHI, PPHI, H * DH * DH * 2)
    ssec = st
    A.s_and_b32(sj, b, 7); A.s_lshl_b32(sj, sj, 1); A.s_bfe_u32(s(26), b, (1 << 16) | 3); A.s_add_u32(sj, sj, s(26)); A.s_lshr_b32(ssec, b, 4)
    A.s_add_u32(s(26), ssec, 1); A.s_mul_i32(s(26), s(26), 1280); A.s_cmp_eq_u32(ssec, 2); A.s_cselect_b32(s(26), 0, s(26))
    A.s_mul_i32(s(27), sj, 80); A.s_add_u32(so, s(26), s(27)); A.s_mul_i32(s(27), w, 160 * 3840); A.s_add_u32(so, so, s(27))
    A.s_mul_i32(sm0, w, 13312)
    for n in range(13):
        if n < 5:
            A.v_add_u32(t0, 64 * n, lane); A.v_mul_u32_u24(t1, 205, t0); A.v_lshrrev_b32(t1, 10, t1)
            A.v_mul_u32_u24(t2, 5, t1); A.v_sub_u32(t2, t0, t2); A.v_mul_u32_u24(t1, 3840, t1); A.v_lshl_add_u32(vA[n], t2, 4, t1)
        A.s_mov_b32('m0', sm0)
        A.buffer_load_dwordx4(vA[n % 5], SRC, so, mods='offen' + nt(0) + ' lds')
        A.s_add_u32(sm0, sm0, 1024)
        if n % 5 == 4: A.s_add_u32(so, so, 64 * 3840)
    lastA = A.vm[-1]
    A.s_mul_i32(s(27), sj, 1600)
    A.v_mov_b32(t3, OOB)
    A.s_mov_b32('m0', PHI_LDS)
    A.v_cmp_gt_u32('vcc', 50, lane); A.v_cndmask_b32(t0, t3, l16, 'vcc')
    A.buffer_load_dwordx4(t0, PHI, s(27), mods='offen lds')
    A.s_mov_b32('m0', PHI_LDS + 1024)
    A.v_subrev_u32(t1, 96, l16); A.v_cmp_lt_u32('vcc', 55, lane); A.v_cndmask_b32(t0, t3, t1, 'vcc')
    A.buffer_load_dwordx4(t0, PHI, s(27), mods='offen lds')
    A.s_mov_b32('m0', PHI_LDS + 2048)
    A.v_add_u32(t1, 58 * 16, l16); A.v_cmp_gt_u32('vcc', 42, lane); A.v_cndmask_b32(t0, t3, t1, 'vcc')
    A.buffer_load_dwordx4(t0, PHI, s(27), mods='offen lds')
    lastP = A.vm[-1]
    fill()
    dl0 = v(18); fv = [v(19), v(20)]
    A.v_mul_u32_u24(t0, 20, h); A.v_lshlrev_b32(dl0, 3, hf); A.v_sub_u32(dl0, dl0, t0)
    A.v_lshl_add_u32(fv[0], g, 2, r); A.v_add_u32(fv[1], 16, fv[0])
    A.s_cmp_eq_u32(ssec, 1); A.s_cbranch_scc1('PP_w1_v')
    vm_save = list(A.vm)
    A.wait_vm(lastP)
    US = [v(32 + k) for k in range(48)]
    B0 = v(21)
    A.v_mul_u32_u24(B0, 1920, h); A.v_lshl_add_u32(B0, fv[0], 1, B0)
    A.v_mul_i32_i24(t0, 40, dl0); A.v_add3_u32(B0, B0, t0, A_const(A, s(26), PHI_LDS))
    for ct in range(2):
        for c in list(range(0, 8)) + list(range(16, 24)) + list(range(32, 40)):
            k = (c >> 4) * 8 + (c & 7)
            A.ds_read_u16(US[24 * ct + k], B0, mods=f'offset:{c*40 + 32*ct}')
            if len(A.lg) > 14: A.wait_lg(A.lg[-8])
    A.wait_lg()
    for k in range(24): A.v_lshl_or_b32(T[k >> 2][k & 3], US[2 * k + 1], 16, US[2 * k])
    A.s_branch('PP_w1_go')
    A.label('PP_w1_v')
    A.vm = vm_save
    for ct in range(2):
        A.v_cmp_gt_u32('vcc', 20, fv[ct]); A.v_sub_u32(t0, fv[ct], dl0); A.v_mov_b32(t1, -1000 & 0xffffffff); A.v_cndmask_b32(v(21), t1, t0, 'vcc')
        for u in range(3):
            if u: A.v_subrev_u32(v(21), 16, v(21))
            sel_frag(A, T[3 * ct + u], v(21), t0, t1)
    A.wait_vm(lastP)
    A.label('PP_w1_go')
    stamp()
    A.s_mul_i32(s(26), w, 13312); A.v_mul_u32_u24(t0, 80, pm); A.v_lshl_add_u32(t0, hf, 4, t0); A.v_add_u32(v(21), s(26), t0)
    tg = {}
    def rdA(i):
        bb, u = divmod(i, 3); tg[i] = A.ds_read_b128(AF[i % 6], v(21), mods=f'offset:{bb*2560 + u*32}')
    for i in range(4): rdA(i)
    for i in range(15):
        bb, u = divmod(i, 3)
        if i + 4 < 15: rdA(i + 4)
        A.wait_lg(tg[i])
        for ct in range(2): A.v_mfma_f32_32x32x16_bf16(acc[ct * 5 + bb], AF[i % 6], T[3 * ct + u], acc[ct * 5 + bb] if u else 0)
    voff = [v(22), v(23)]; vstr = [v(24), v(25)]
    A.s_mul_i32(s(26), ssec, 5); A.s_mul_i32(s(27), sj, W1_J); A.s_add_u32(s(27), s(27), W1_OFF); A.s_mul_i32(s(28), w, 10)
    A.s_cmp_eq_u32(ssec, 2); A.s_cselect_b32(s(29), 2, 1)
    for ct in range(2):
        A.v_add_u32(t0, s(26), g)
        if ct: A.v_add_u32(t0, 4, t0)
        A.v_lshrrev_b32(t1, 2, t0); A.v_and_b32(t0, 3, t0)
        A.v_cmp_gt_u32('vcc', 2, t1); A.v_mov_b32(t2, 2048); A.v_mov_b32(t3, 1024); A.v_cndmask_b32(vstr[ct], t3, t2, 'vcc')
        A.v_mul_u32_u24(t2, 40, t1); A.v_cndmask_b32(t1, t2, t1, 'vcc'); A.v_lshlrev_b32(t1, 10, t1)
        A.v_mad_u32_u24(t1, vstr[ct], s(28), t1)
        A.v_and_b32(t2, 7, m); A.v_lshl_add_u32(t2, t0, 3, t2); A.v_lshl_add_u32(t2, hf, 5, t2)
        A.v_lshl_add_u32(t1, t2, 4, t1); A.v_add_u32(voff[ct], s(27), t1)
        if ct:
            A.v_cmp_gt_u32('vcc', s(29), g); A.v_mov_b32(t2, OOB); A.v_cndmask_b32(voff[ct], t2, voff[ct], 'vcc')
    center_store(2, voff, vstr)
    end()
    A.label('PP_w3'); A.cmt('role W3')
    helper(0, B_W3)
    A.s_sub_u32(s(26), b, B_W3); A.s_lshr_b32(s(27), s(26), 4); A.s_lshl_b32(s(27), s(27), 3); A.s_and_b32(s(28), s(26), 7); A.s_add_u32(s(27), s(27), s(28))
    A.s_cmp_ge_u32(s(27), 24); A.s_cselect_b32(SRC[0], PWU[0], PWG[0]); A.s_cselect_b32(SRC[1], PWU[1], PWG[1]); A.s_cselect_b32(s(28), 1, 0); A.s_cselect_b32(s(29), 24, 0)
    A.s_mov_b32(SRC[2], D * F * 2); A.s_mov_b32(SRC[3], 0x20000)
    A.s_sub_u32(s(27), s(27), s(29)); A.s_lshl_b32(s(27), s(27), 1); A.s_bfe_u32(s(26), s(26), (1 << 16) | 3); A.s_add_u32(s(27), s(27), s(26))
    A.s_mul_i32(sj, s(27), 43); A.s_lshr_b32(sj, sj, 7); A.s_mul_i32(s(26), sj, 3); A.s_sub_u32(st, s(27), s(26))
    A.s_lshl_b32(so, s(27), 6); A.s_mul_i32(s(26), w, 160 * 3072); A.s_add_u32(so, so, s(26))
    A.v_lshrrev_b32(t0, 2, lane); A.v_mul_u32_u24(t0, 3072, t0); A.v_lshrrev_b32(t1, 4, lane); A.v_xor_b32(t1, t1, lane); A.v_and_b32(t1, 3, t1)
    A.v_lshl_add_u32(vA[0], t1, 4, t0)
    A.s_mul_i32(sm0, w, 10240)
    tags = []
    for n in range(10):
        A.s_mov_b32('m0', sm0)
        tags.append(A.buffer_load_dwordx4(vA[0], SRC, so, mods='offen' + nt(1) + ' lds'))
        A.s_add_u32(sm0, sm0, 1024); A.s_add_u32(so, so, 16 * 3072)
    fill()
    A.v_lshlrev_b32(t2, 3, hf); A.v_sub_u32(v(18), pm, t2)
    for u in range(2):
        if u: A.v_subrev_u32(v(18), 16, v(18))
        sel_frag(A, T[u], v(18), t0, t1)
    A.s_mul_i32(s(26), w, 10240)
    A.v_bfe_u32(t0, pm, 2, 2); A.v_xor_b32(t0, t0, hf); A.v_lshlrev_b32(t0, 4, t0); A.v_lshl_add_u32(t0, pm, 6, t0); A.v_add_u32(v(19), s(26), t0)
    A.v_xor_b32(v(20), 32, v(19))
    for bb in range(5):
        A.wait_vm(tags[2 * bb + 1])
        if bb == 0: stamp()
        tg = [A.ds_read_b128(AF[(2 * bb + u) % 6], v(19 + u), mods=f'offset:{bb*2048}') for u in range(2)]
        for u in range(2):
            A.wait_lg(tg[u]); A.v_mfma_f32_32x32x16_bf16(acc[bb], AF[(2 * bb + u) % 6], T[u], acc[bb] if u else 0)
    A.s_mul_i32(sb, st, 80); A.s_add_u32(sb, sb, s(28)); A.s_mul_i32(s(26), w, 20); A.s_add_u32(sb, sb, s(26)); A.s_lshl_b32(sb, sb, 10)
    A.s_mul_i32(s(26), sj, W3_J); A.s_add_u32(sb, sb, s(26)); A.s_add_u32(sb, sb, W3_OFF)
    A.v_add_u32(v(22), sb, l16)
    center_store(1, [v(22)], [2048])
    end()
    A.label('PP_w24'); A.cmt('role W2/W4')
    helper(12, B_W24)
    su = s(21)
    rowi = [v(32 + k) for k in range(5)]; chk = [v(37 + k) for k in range(5)]
    for n in range(5):
        A.v_add_u32(t0, 64 * n, lane); A.v_mul_u32_u24(t1, 205, t0); A.v_lshrrev_b32(rowi[n], 11, t1)
        A.v_mul_u32_u24(t2, 10, rowi[n]); A.v_sub_u32(t2, t0, t2); A.v_lshlrev_b32(chk[n], 4, t2)
    A.s_sub_u32(su, b, B_W24); A.s_mul_i32(su, su, 12); A.s_add_u32(su, su, w)
    A.s_mul_i32(sm0, w, 15360)
    dst = [s(33), s(34), s(35)]
    last = []
    SR2 = s(36, 4)
    for it in range(3):
        L2, LG = A.newlabel('PP_w2'), A.newlabel('PP_go')
        A.s_cmp_ge_u32(su, 384); A.s_cbranch_scc1(L2)
        srd(A, SR2, PWD, F * D * 2)
        A.s_lshr_b32(s(26), su, 3); A.s_and_b32(s(27), su, 7)
        A.s_mul_i32(dst[it], s(27), 48); A.s_add_u32(dst[it], dst[it], s(26)); A.s_mul_i32(dst[it], dst[it], 5120); A.s_add_u32(dst[it], dst[it], W4_OFF)
        A.s_lshl_b32(s(26), s(26), 5)
        for n in range(5): A.v_add_u32(vA[n], s(26), rowi[n])
        A.s_branch(LG)
        A.label(L2)
        srd(A, SR2, PWO, D * D * 2)
        A.s_sub_u32(s(28), su, 384); A.s_lshr_b32(s(26), s(28), 3); A.s_and_b32(s(27), s(28), 7)
        A.s_mul_i32(dst[it], s(27), 20); A.s_add_u32(dst[it], dst[it], s(26)); A.s_mul_i32(dst[it], dst[it], 5120); A.s_add_u32(dst[it], dst[it], W2_OFF)
        A.s_cmp_ge_u32(su, 544); A.s_cselect_b32(dst[it], OOB, dst[it])
        A.s_lshl_b32(s(26), s(26), 5)
        for n in range(5):
            kp = vA[n]
            A.v_add_u32(kp, s(26), rowi[n])
            A.v_mul_u32_u24(t0, 1639, kp); A.v_lshrrev_b32(t0, 16, t0); A.v_mul_u32_u24(t0, 40, t0)
            A.v_sub_u32(t1, kp, t0)
            A.v_lshrrev_b32(t2, 4, t1); A.v_mul_u32_u24(t2, 20, t2); A.v_and_b32(t3, 15, t1); A.v_add_u32(t2, t2, t3)
            A.v_bfe_u32(t3, t1, 2, 1); A.v_mul_u32_u24(t3, 20, t3); A.v_and_b32(kp, 3, t1); A.v_add3_u32(t3, t3, kp, 16)
            A.v_cmp_gt_u32('vcc', 32, t1); A.v_cndmask_b32(t2, t3, t2, 'vcc')
            A.v_add_u32(kp, t0, t2)
        A.label(LG)
        A.s_mul_i32(so, s(27), 160)
        for n in range(5):
            A.v_mad_u32_u24(vA[n], vA[n], A_const(A, s(29), 1280), chk[n])
            A.s_mov_b32('m0', sm0)
            tgl = A.buffer_load_dwordx4(vA[n], SR2, so, mods='offen' + nt(2) + ' lds')
            A.s_add_u32(sm0, sm0, 1024)
        last.append(tgl)
        A.s_add_u32(su, su, 4)
    fill()
    row, qp, Q = v(14), v(15), v(16)
    A.v_bfe_u32(qp, lane, 2, 2); A.v_lshrrev_b32(Q, 4, lane)
    A.v_lshl_add_u32(row, qp, 3, r)
    SE = [T[0], T[1], T[2]]
    A.v_lshlrev_b32(t2, 3, Q)
    A.v_sub_u32(v(19), row, t2); sel_frag(A, SE[0], v(19), t0, t1)
    A.v_add_u32(v(19), 4, v(19)); sel_frag(A, SE[1], v(19), t0, t1)
    A.v_and_b32(v(19), 15, lane); A.v_sub_u32(v(19), v(19), t2); sel_frag(A, SE[2], v(19), t0, t1)
    A.s_mul_i32(s(26), w, 15360)
    A.v_mul_u32_u24(t0, 160, row); A.v_add_u32(t0, s(26), t0)
    A.v_lshl_add_u32(v(19), Q, 4, t0)
    A.v_and_b32(t1, 1, Q); A.v_lshl_add_u32(v(20), t1, 4, t0)
    for it in range(3):
        A.wait_vm(last[it])
        if it == 0: stamp()
        tg = {}
        for cg in range(3):
            for aa in range(2):
                tg[cg, aa] = A.ds_read_b128(AF[cg * 2 + aa], v(19) if cg < 2 else v(20), mods=f'offset:{it*5120 + aa*640 + cg*64}')
        for ft in range(5):
            cg = ft >> 1
            A.wait_lg(tg[cg, 1])
            for aa in range(2):
                A.v_mfma_f32_16x16x32_bf16(v(48 + ft * 8 + aa * 4, 4), AF[cg * 2 + aa], SE[ft & 1 if ft < 4 else 2], 0)
        for ft in range(5):
            o = v(96 + 20 * it + 4 * ft, 4)
            for k in range(4): A.v_cvt_pk_bf16_f32(o[k], v(48 + ft * 8 + 2 * k), v(48 + ft * 8 + 2 * k + 1))
            if ft == 4: A.s_add_u32(dst[it], dst[it], 4096)
            A.buffer_store_dwordx4(o, l16, WS, dst[it], mods=f'offen offset:{(ft & 3) * 1024}' + SC)
    end()
    A.label('PP_x'); A.cmt('role X')
    srd(A, SRC, PX, X_SZ)
    A.s_sub_u32(su, b, B_X)
    tk, cp = v(14), v(15)
    A.v_lshrrev_b32(tk, 3, lane); A.s_lshl_b32(s(26), w, 3); A.v_add_u32(tk, s(26), tk)
    A.v_and_b32(cp, 7, lane)
    A.v_mul_u32_u24(t0, 1280, tk); A.v_lshl_add_u32(vA[0], cp, 4, t0)
    A.s_mul_i32(so, su, 40960)
    XF = [v(32 + 4 * k, 4) for k in range(10)]
    tags = [A.buffer_load_dwordx4(XF[k], vA[0], SRC, so, mods=f'offen offset:{k*128}' + nt(3)) for k in range(10)]
    fill()
    A.v_lshrrev_b32(t0, 1, cp); A.v_lshlrev_b32(t0, 10, t0); A.v_and_b32(t1, 1, cp); A.v_lshl_add_u32(t1, t1, 5, tk); A.v_lshl_add_u32(v(16), t1, 4, t0)
    A.s_add_u32(so, so, XA_OFF)
    A.v_lshrrev_b32(t0, 4, tk); A.v_lshlrev_b32(t0, 10, t0); A.v_lshl_add_u32(t0, cp, 7, t0); A.v_and_b32(t1, 15, tk); A.v_lshl_add_u32(v(17), t1, 3, t0)
    A.s_lshl_b32(s(26), su, 11); A.s_add_u32(s(26), s(26), STA_OFF)
    A.v_mov_b32(v(18), 0x3f803f80)
    S_, Q_ = v(20), v(21)
    A.v_mov_b32(S_, 0); A.v_mov_b32(Q_, 0)
    for k in range(10):
        A.wait_vm(tags[k])
        if k == 0: stamp()
        A.buffer_store_dwordx4(XF[k], v(16), WS, so, mods='offen' + SC)
        A.s_add_u32(so, so, 4096)
        for n in range(4):
            A.v_dot2_f32_bf16(S_, XF[k][n], v(18), S_); A.v_dot2_f32_bf16(Q_, XF[k][n], XF[k][n], Q_)
    A.s_nop(2)
    A.buffer_store_dwordx2(v(20, 2), v(17), WS, s(26), mods='offen' + SC)
    end()
    A.label('PP_fillonly')
    fill()
    end()
def A_const(A, sreg, val):
    A.s_mov_b32(sreg, val); return sreg
```

```python
from asmlib import *
from layout import *
from prepass import srd, sel_frag, emit_prep, B_W3, B_X, B_W24, B_END
from collections import defaultdict

LOG2E = 0x3fb8aa3b
SLOT = 16384
TR = 0
KVB = 6 * SLOT
RD = 6 * SLOT + 4096
MAIN_LDS = 163840
SPIN = 1 << 17

class Cfg:
    diag = False
    fine = None
    alias = 1
    touch = 1
    early = 1
    LA1 = 10
    nt1 = 0; nt2 = 0; nt3 = 0; nt4 = 0
    hdbg = 0; cpf = 1; pnt = 14; help = 1; psc1 = 1; pfat = 72; LK = 40; backlog = 800; win = 4; mix1 = 0; mix3 = 0; mix4 = 0; alt = 0; qslack = 0; kvdelay = 900; LA4 = 3
    kvld_at = 146

def gen_main(cfg=Cfg, ev_in=None):
    A = Asm()
    B = Bufs(cfg.alias)
    ev = {}; ev_in = ev_in or {}
    tail = []
    WS, OUT, XIN = s(8, 4), s(12, 4), s(16, 4)
    b, w, si, sj, sth, sfs, sfast = s(2), s(20), s(21), s(22), s(23), s(24), s(25)
    t_s = [s(26), s(27), s(28), s(29)]
    sW1, sW3, sW2, sW4, sXu, sSTu, sKVw, sKVr, sFl = (s(30 + k) for k in range(9))
    sM0w, sXst, sSTst, sOst, sHst, sFlW1, sFlW2, sxcc, sspin = (s(39 + k) for k in range(9))
    sOld = [s(48 + k) for k in range(4)]; sHld = [s(52 + k) for k in range(4)]
    so, so2 = s(88), s(89)
    POUT, PDBG, PX, PWS = s(56, 2), s(58, 2), s(60, 2), s(62, 2)
    DBG = s(84, 4); sNonce = s(90)
    nstamp = [0]; STAMPS = [s(64 + k) for k in range(20)] + [s(91), s(92), s(95), s(100), s(101), s(3), s(4), s(5), s(6), s(7), s(0), s(1)]
    def stamp(tag=None):
        if tag in (None, 'always'): ev.setdefault('stamps', []).append(A.t)
        if cfg.diag and (tag == cfg.fine or tag == 'always'):
            A.wait_lg(); A.s_memtime(s(98, 2)); A.wait_lg(); A.s_mov_b32(STAMPS[nstamp[0]], s(98)); nstamp[0] += 1
    tid = v(0); L16, L16b, L16c = v(1), v(2), v(3)
    (vXst0, vXst2, vSTst, vSTld, vOst0, vOst1, vOst2, vHst, vOUT0, vOUT2, vFlA, vFlB, vZ, vKVst0, vKVst1, vKVld,
     vTRw, vTRa, vTRb, vKBw, vKBr0, vKBr1, vRDr, vT) = (v(4 + k) for k in range(24))
    vRDw = [None, v(28), v(29), v(30)]
    vrs = v(31)
    SEL = v(32, 4)
    RES = v(36, 20); DUMMY = tid
    sBk = s(94)
    RING = [v(56 + 4 * k, 4) for k in range(4)]
    ACC = v(72, 80)
    TB = v(152, 32); PR = v(184, 64); MISC = v(248, 8)
    def lds_addr(off):
        return ((L16, L16b, L16c)[off >> 16], off & 0xffff)

    A.s_cmp_ge_u32(b, 256); A.s_cbranch_scc1('M_end')
    def after_karg():
        A.s_mov_b32(PX[0], s(40)); A.s_mov_b32(PX[1], s(41))
        srd(A, DBG, PDBG, 256)
        if cfg.diag: A.s_memrealtime(s(96, 2))
        stamp('always')
        L = A.newlabel('nononce')
        A.s_cmp_lg_u32(b, 0); A.s_cbranch_scc1(L)
        A.s_memrealtime(s(98, 2)); A.v_lshlrev_b32(v(10), 8, v(0)); A.wait_lg()
        A.s_or_b32(s(98), s(98), 1); A.v_mov_b32(v(9), s(98))
        A.buffer_store_dword(v(9), v(10), DBG, 0, mods='offen sc1')
        A.label(L)
    def fill():
        t0, t1, F4, Z4 = v(9), v(10), v(28, 4), v(24, 4)
        a0, a1, a2 = s(31), s(32), s(95)
        A.s_and_b32(a0, b, 7); A.s_lshl_b32(a0, a0, 1); A.s_lshr_b32(a1, b, 7); A.s_add_u32(a0, a0, a1)
        A.s_bfe_u32(a1, b, (4 << 16) | 3)
        for k in range(4): A.v_mov_b32(F4[k], -1); A.v_mov_b32(Z4[k], 0)
        A.s_lshl_b32(a2, a1, 4); A.s_add_u32(a2, a2, a0); A.s_mul_i32(a2, a2, KV_SLOT); A.s_add_u32(a2, a2, KVP_OFF)
        A.v_lshlrev_b32(t0, 4, v(0)); A.v_cmp_gt_u32('vcc', KV_SLOT // 16, v(0)); A.v_mov_b32(t1, OOB); A.v_cndmask_b32(t0, t1, t0, 'vcc')
        A.buffer_store_dwordx4(F4, t0, WS, a2, mods='offen sc1')
        A.s_add_u32(a2, a2, KV_SZ)
        A.buffer_store_dwordx4(F4, t0, WS, a2, mods='offen sc1')
        A.v_cmp_gt_u32('vcc', 16, v(0)); A.v_cndmask_b32(t0, t1, t0, 'vcc')
        A.s_lshl_b32(a0, a0, 8); A.s_lshl_b32(a2, a1, 12); A.s_add_u32(a2, a2, a0); A.s_add_u32(a2, a2, FLG_OFF)
        A.s_cmp_lt_u32(a1, 8); A.s_cselect_b32(a2, a2, OOB)
        A.buffer_store_dwordx4(Z4, t0, WS, a2, mods='offen sc1')
        A.buffer_load_dword(v(255), Z4[0], DBG, 0, mods='offen sc1')
        if cfg.cpf:
            Lp = A.newlabel('pc')
            A.s_getpc_b64(s(98, 2)); A.label(Lp)
            A.s_lshr_b32(a0, b, 3); A.s_lshl_b32(a0, a0, 11)
            A.v_and_b32(t0, 15, v(0)); A.v_lshl_add_u32(t0, t0, 7, a0)
            A.raw(f'\tv_add_u32 {t0}, PP_done-{Lp}, {t0}'); A.raw(f'\tv_min_u32 {t0}, M_codeend-{Lp}-4, {t0}')
            A.v_mov_b32(v(253), s(99)); A.v_add_co_u32(v(252), 'vcc', s(98), t0); A.v_addc_co_u32(v(253), 'vcc', 0, v(253), 'vcc')
            A.global_load_dword(v(254), v(252, 2), 'off')
    def pstamp(k):
        if cfg.diag and cfg.fine == 'pp':
            A.wait_lg(); A.s_memtime(s(98, 2)); A.wait_lg(); A.s_mov_b32(STAMPS[k], s(98))
    if cfg.diag and cfg.fine == 'pp': A.s_mov_b32(STAMPS[1], 0); A.s_mov_b32(STAMPS[2], 0)
    emit_prep(A, fill, after_karg, ' sc1' if cfg.psc1 else '', pstamp, cfg.help, cfg.pnt)
    if cfg.diag and cfg.fine == 'pp': nstamp[0] = 3
    A.label('PP_done')
    A.t = 0; A.mfree = A.port = A.link = A.prev = A.ldsfree = 0; A.fly = []; A.trace = []
    stamp(); stamp('pp')
    lane, t0, t1, t2, t3, hf, l15, q = (v(152 + k) for k in range(8))
    m, g, h, r = (v(160 + k) for k in range(4))
    vN = v(255); vPF0, vPF1 = RES[0], RES[1]; PFD = RES[2:4]
    Ln = A.newlabel('nonce'); Lo = A.newlabel('nonceok')
    A.s_getreg_b32(sxcc, 'hwreg(HW_REG_XCC_ID, 0, 4)')
    A.v_mov_b32(t3, OOB); A.v_cmp_eq_u32('vcc', 0, tid); A.v_cndmask_b32(t1, t3, tid, 'vcc'); A.v_mov_b32(t0, 0)
    A.s_mov_b32(sspin, 0)
    A.I('s_waitcnt', 'vmcnt(0)')
    stamp('pp')
    A.label(Ln)
    A.v_readfirstlane_b32(sNonce, vN); A.s_cmp_lg_u32(sNonce, 0); A.s_cbranch_scc1(Lo)
    A.s_add_u32(sspin, sspin, 1); A.s_cmp_gt_u32(sspin, SPIN); A.s_cbranch_scc1(Lo)
    A.buffer_load_dword(vN, t0, DBG, 0, mods='offen sc1'); A.wait_vm()
    A.s_branch(Ln)
    A.label(Lo)
    A.s_not_b32(t_s[0], sNonce); A.s_andn2_b32(t_s[0], t_s[0], 15); A.s_or_b32(sxcc, sxcc, t_s[0])
    A.v_mov_b32(PFD[0], sNonce); A.v_mov_b32(PFD[1], sxcc)
    A.s_lshl_b32(t_s[0], b, 7); A.s_add_u32(t_s[0], t_s[0], PF_OFF)
    A.s_barrier()
    A.buffer_store_dwordx2(PFD, t1, WS, t_s[0], mods='offen sc1')
    A.s_mov_b32(sfast, 0)
    stamp(); stamp('pp')
    A.v_and_b32(lane, 63, tid)
    A.v_lshlrev_b32(L16, 4, lane)
    A.s_and_b32(t_s[0], b, 7); A.s_lshr_b32(t_s[1], b, 3); A.s_and_b32(sj, t_s[1], 15); A.s_lshr_b32(t_s[1], t_s[1], 4)
    A.s_lshl_b32(si, t_s[0], 1); A.s_add_u32(si, si, t_s[1])
    A.s_lshr_b32(sth, sj, 3); A.s_and_b32(sfs, sj, 7)
    A.s_lshl_b32(sM0w, w, 12)
    A.s_mul_i32(sW1, sj, W1_J); A.s_add_u32(sW1, sW1, sM0w)
    if W1_OFF: A.s_add_u32(sW1, sW1, W1_OFF)
    A.s_lshl_b32(t_s[0], si, 2); A.s_add_u32(t_s[0], t_s[0], w); A.s_mul_i32(sXu, t_s[0], 40960); A.s_lshl_b32(sSTu, t_s[0], 11)

    def dma_chunk(base, c, slot, nt=0):
        res = {}
        def mk(k):
            def f():
                if k == 0:
                    A.s_add_u32(so2, base, c * SLOT); A.s_add_u32('m0', sM0w, slot * SLOT)
                res['tag'] = A.buffer_load_dwordx4(L16, WS, so2, mods=f'offen offset:{k*1024} lds', k='m2')
            return f
        return [mk(k) for k in range(4)], res
    w1tag = {}
    def issue_w1(cs):
        out = []
        for c in cs:
            fl, res = dma_chunk(sW1, c, c, cfg.nt1); w1tag[c] = res; out += fl
        return out
    XF = [a(4 * k, 4) for k in range(40)]
    def xloads(base_const):
        tags = {}
        def mk(k):
            def f():
                if k % 4 == 0:
                    if k == 0: A.s_add_u32(so, sXu, base_const)
                    else: A.s_add_u32(so, so, 4096)
                tags[k] = A.buffer_load_dwordx4(XF[k], L16, WS, so, mods=f'offen offset:{(k & 3)*1024} sc1')
            return f
        return [mk(k) for k in range(40)], tags
    srd(A, OUT, POUT, X_SZ); srd(A, XIN, PX, X_SZ)
    A.v_add_u32(L16b, 0x10000, L16); A.v_add_u32(L16c, 0x20000, L16)
    A.v_lshrrev_b32(hf, 5, lane); A.v_and_b32(l15, 15, lane); A.v_lshrrev_b32(q, 4, lane)
    A.v_and_b32(m, 31, lane); A.v_lshrrev_b32(g, 3, m); A.v_bfe_u32(h, m, 2, 1); A.v_and_b32(r, 3, m)
    A.s_mul_i32(sW3, sj, W3_J); A.s_add_u32(sW3, sW3, sM0w); A.s_add_u32(sW3, sW3, W3_OFF)
    A.s_mul_i32(t_s[0], sfs, 20); A.s_mul_i32(t_s[1], w, 5); A.s_add_u32(t_s[0], t_s[0], t_s[1]); A.s_mul_i32(sW2, t_s[0], 5120); A.s_add_u32(sW2, sW2, W2_OFF)
    A.s_mul_i32(t_s[0], sfs, 48); A.s_mul_i32(t_s[1], w, 12); A.s_add_u32(t_s[0], t_s[0], t_s[1]); A.s_mul_i32(sW4, t_s[0], 5120); A.s_add_u32(sW4, sW4, W4_OFF)
    A.s_mul_i32(sKVr, sj, 16 * KV_SLOT); A.s_mul_i32(t_s[0], si, KV_SLOT); A.s_add_u32(sKVw, sKVr, t_s[0])
    A.s_lshl_b32(sFl, si, 8)
    A.s_lshl_b32(t_s[0], w, 4); A.s_add_u32(t_s[0], t_s[0], sj); A.s_lshl_b32(t_s[0], t_s[0], 2); A.s_add_u32(sFlW1, sFl, t_s[0])
    A.s_lshl_b32(t_s[0], sth, 2); A.s_add_u32(t_s[0], t_s[0], w); A.s_lshl_b32(t_s[0], t_s[0], 3); A.s_add_u32(t_s[0], t_s[0], sfs)
    A.s_lshl_b32(t_s[0], t_s[0], 2); A.s_add_u32(sFlW2, sFl, t_s[0])
    A.s_lshl_b32(t_s[0], si, 2); A.s_lshl_b32(t_s[1], sth, 1); A.s_add_u32(t_s[0], t_s[0], t_s[1]); A.s_lshr_b32(t_s[1], w, 1); A.s_add_u32(t_s[0], t_s[0], t_s[1])
    A.s_mul_i32(sXst, t_s[0], 40960); A.s_mul_i32(t_s[1], sfs, 5120); A.s_add_u32(sXst, sXst, t_s[1])
    A.s_lshl_b32(sSTst, t_s[0], 11); A.s_and_b32(t_s[1], w, 1); A.s_lshl_b32(t_s[1], t_s[1], 10); A.s_add_u32(sSTst, sSTst, t_s[1])
    A.s_lshl_b32(t_s[1], sfs, 7); A.s_add_u32(sSTst, sSTst, t_s[1])
    A.s_mul_i32(sOst, si, 8 * B.o_tile)
    A.s_mul_i32(sHst, si, 393216); A.s_mul_i32(t_s[1], sj, 3072); A.s_add_u32(sHst, sHst, t_s[1])
    for tau in range(4):
        A.s_add_u32(t_s[0], w, tau); A.s_and_b32(t_s[0], t_s[0], 3)
        if tau:
            A.s_mul_i32(t_s[1], t_s[0], 15360); A.s_add_u32(t_s[1], t_s[1], RD + (3 - tau) * 5120); A.v_add_u32(vRDw[tau], t_s[1], L16)
        A.s_lshl_b32(t_s[1], sth, 2); A.s_add_u32(t_s[0], t_s[0], t_s[1])
        A.s_mul_i32(t_s[1], t_s[0], B.o_tile); A.s_add_u32(sOld[tau], t_s[1], sOst); A.s_mul_i32(t_s[1], w, 5120); A.s_add_u32(sOld[tau], sOld[tau], t_s[1])
        A.s_mul_i32(t_s[1], t_s[0], 49152); A.s_mul_i32(t_s[2], si, 393216); A.s_add_u32(sHld[tau], t_s[1], t_s[2]); A.s_mul_i32(t_s[1], w, 12288); A.s_add_u32(sHld[tau], sHld[tau], t_s[1])
    A.s_mul_i32(t_s[1], w, 15360); A.s_add_u32(t_s[1], t_s[1], RD); A.v_add_u32(vRDr, t_s[1], L16)
    A.s_and_b32(t_s[0], w, 1); A.s_lshl_b32(t_s[0], t_s[0], 4); A.v_add_u32(t3, t_s[0], l15)
    A.v_lshrrev_b32(t0, 1, q); A.v_and_b32(t1, 1, q)
    A.v_lshl_add_u32(t2, t1, 5, t3); A.v_lshlrev_b32(t2, 4, t2); A.v_lshl_add_u32(vXst0, t0, 10, t2)
    A.v_lshl_add_u32(t2, t0, 5, t3); A.v_lshlrev_b32(t2, 4, t2); A.v_lshl_add_u32(t2, t1, 3, t2); A.v_add_u32(vXst2, 4096, t2)
    A.v_lshlrev_b32(t2, 3, l15); A.v_lshl_add_u32(vSTst, hf, 2, t2)
    A.v_lshrrev_b32(t0, 4, m); A.v_lshl_add_u32(t2, t0, 10, t2); A.v_lshl_add_u32(vSTld, hf, 9, t2)
    A.s_lshl_b32(t_s[0], w, 1); A.v_lshrrev_b32(t0, 4, m); A.v_add_u32(t0, t_s[0], t0)
    A.s_mov_b32(t_s[1], 49152); A.v_mul_lo_u32(t1, t0, t_s[1]); A.v_lshl_add_u32(t1, l15, 4, t1); A.v_lshl_add_u32(vHst, hf, 8, t1)
    A.v_mul_u32_u24(t0, B.o_tile, t0); A.v_lshl_add_u32(t0, l15, 4, t0)
    A.s_mul_i32(t_s[0], sj, 5)
    for dst_, add in ((vOst0, 0), (vOst1, 1)):
        A.v_lshl_add_u32(t1, hf, 1, t_s[0])
        if add: A.v_add_u32(t1, 1, t1)
        A.v_lshl_add_u32(dst_, t1, 8, t0)
    A.s_add_u32(t_s[0], t_s[0], 4); A.s_lshl_b32(t_s[0], t_s[0], 8); A.v_add_u32(t1, t_s[0], t0); A.v_lshl_add_u32(vOst2, hf, 3, t1)
    A.s_lshl_b32(t_s[0], si, 7); A.s_lshl_b32(t_s[1], sth, 6); A.s_add_u32(t_s[0], t_s[0], t_s[1]); A.s_lshl_b32(t_s[1], w, 4); A.s_add_u32(t_s[0], t_s[0], t_s[1])
    A.v_add_u32(t0, t_s[0], l15); A.v_mul_u32_u24(t0, 1280, t0); A.s_mul_i32(t_s[0], sfs, 160); A.v_add_u32(t0, t_s[0], t0)
    A.v_lshl_add_u32(vOUT0, q, 4, t0); A.v_lshl_add_u32(t0, q, 3, t0); A.v_add_u32(vOUT2, 128, t0)
    A.v_bfe_u32(t0, lane, 2, 1); A.s_lshl_b32(t_s[0], sth, 1); A.v_add_u32(t0, t_s[0], t0); A.v_lshlrev_b32(t0, 4, t0)
    A.s_lshl_b32(t_s[0], w, 2); A.v_add3_u32(t0, t0, r, t_s[0]); A.v_lshlrev_b32(vFlA, 2, t0)
    A.s_lshl_b32(t_s[0], w, 4); A.v_add_u32(t0, t_s[0], l15); A.v_lshlrev_b32(vFlB, 2, t0)
    A.v_mov_b32(t3, OOB)
    A.v_cmp_eq_u32('vcc', 0, lane); A.v_cndmask_b32(vZ, t3, lane, 'vcc')
    A.s_and_b32(t_s[0], w, 1); A.s_lshl_b32(t_s[0], t_s[0], 4); A.v_add_u32(t0, t_s[0], l15)
    A.s_lshr_b32(t_s[1], w, 1); A.s_mul_i32(t_s[2], t_s[1], 21); A.v_add_u32(t1, t_s[2], t0); A.v_mul_u32_u24(t1, 80, t1)
    A.v_cmp_gt_u32('vcc', 21, t0); A.v_cndmask_b32(t1, t3, t1, 'vcc')
    A.v_lshl_add_u32(vKVst0, q, 4, t1)
    A.v_lshl_add_u32(t1, q, 3, t1); A.v_add_u32(t1, 64, t1); A.v_cmp_gt_u32('vcc', 2, q); A.v_cndmask_b32(vKVst1, t3, t1, 'vcc')
    A.v_lshlrev_b32(t0, 4, tid); A.v_add_u32(vKBw, KVB, t0); A.v_cmp_gt_u32('vcc', 210, tid); A.v_cndmask_b32(vKVld, t3, t0, 'vcc')
    A.s_lshl_b32(t_s[0], w, 5); A.v_lshl_add_u32(t0, hf, 7, m); A.v_add_u32(t0, t_s[0], t0); A.v_mul_u32_u24(vTRw, 160, t0)
    A.s_lshl_b32(t_s[0], t_s[1], 7); A.v_lshrrev_b32(t0, 2, lane); A.v_add_u32(t0, t_s[0], t0)
    A.v_mul_u32_u24(t0, 160, t0); A.v_lshl_add_u32(vTRa, r, 3, t0)
    A.s_and_b32(t_s[0], w, 1); A.s_lshl_b32(t_s[0], t_s[0], 5); A.s_add_u32(t_s[0], t_s[0], 80); A.v_add_u32(vTRb, t_s[0], vTRa)
    A.v_lshl_add_u32(t0, g, 2, r); A.v_mul_u32_u24(t1, 21, hf); A.v_add_u32(t1, t1, t0); A.v_mul_u32_u24(t1, 80, t1); A.v_add_u32(t1, KVB, t1)
    A.v_mov_b32(t2, KVB + 3360)
    A.v_cmp_eq_u32('vcc', h, hf); A.v_cndmask_b32(vKBr0, t2, t1, 'vcc')
    A.v_add_u32(t1, 1280, t1); A.v_cndmask_b32(t1, t2, t1, 'vcc'); A.v_cmp_gt_u32('vcc', 5, t0); A.v_cndmask_b32(vKBr1, t2, t1, 'vcc')
    A.v_mov_b32(t2, -100 & 0xffffffff); A.v_cmp_eq_u32('vcc', h, hf); A.v_cndmask_b32(t0, t2, t0, 'vcc')
    sel_frag(A, SEL, t0, t1, t2)
    A.s_lshr_b32(t_s[0], sj, 1); A.s_and_b32(t_s[1], sj, 1); A.s_lshl_b32(t_s[1], t_s[1], 3); A.s_add_u32(t_s[0], t_s[0], t_s[1])
    A.v_and_b32(t0, 7, lane); A.v_min_u32(t1, 2, t0); A.v_lshl_add_u32(t1, t1, 4, t_s[0])
    A.s_lshl_b32(t_s[0], si, 2); A.s_add_u32(t_s[0], t_s[0], B_X); A.v_and_b32(t2, 3, t0); A.v_add_u32(t2, t_s[0], t2)
    A.v_cmp_gt_u32('vcc', 4, t0); A.v_cndmask_b32(t1, t2, t1, 'vcc'); A.v_lshlrev_b32(vPF0, 7, t1)
    A.s_bfe_u32(t_s[0], b, (1 << 16) | 7); A.s_lshl_b32(t_s[0], t_s[0], 7); A.s_and_b32(t_s[1], b, 7); A.s_add_u32(t_s[0], t_s[0], t_s[1])
    A.v_lshl_add_u32(t0, l15, 3, t_s[0])
    A.v_and_b32(t1, 7, lane); A.v_bfe_u32(t2, lane, 3, 1); A.v_lshl_add_u32(t1, t2, 7, t1); A.s_lshl_b32(t_s[0], sj, 3); A.v_add_u32(t1, t_s[0], t1)
    A.v_mov_b32(t2, B_W24); A.v_add3_u32(t2, t2, lane, -16); A.v_min_u32(t2, B_END - 1, t2)
    A.s_mul_i32(t_s[0], sj, 3); A.v_min_u32(vN2 := v(165), 2, r); A.v_add_u32(vN2, t_s[0], vN2)
    A.v_lshrrev_b32(v(166), 1, vN2); A.v_mad_u32_u24(v(166), h, 24, v(166))
    A.v_and_b32(vN2, 1, vN2); A.v_lshlrev_b32(vN2, 3, vN2); A.v_and_b32(v(167), 7, v(166)); A.v_add_u32(vN2, vN2, v(167))
    A.v_lshrrev_b32(v(166), 3, v(166)); A.v_lshl_add_u32(vN2, v(166), 4, vN2); A.v_add_u32(vN2, B_W3, vN2)
    A.s_cmp_eq_u32(w, 0); A.s_cselect_b64('vcc', -1, 0); A.v_cndmask_b32(t2, t2, t1, 'vcc')
    A.s_cmp_eq_u32(w, 3); A.s_cselect_b64('vcc', -1, 0); A.v_cndmask_b32(t2, t2, vN2, 'vcc')
    A.v_cmp_gt_u32('vcc', 16, lane); A.v_cndmask_b32(t2, t2, t0, 'vcc'); A.v_lshlrev_b32(vPF1, 7, t2)
    def pf_bad():
        A.v_xor_b32(MISC[5], sxcc, PFD[1]); A.v_lshrrev_b32(MISC[5], 4, MISC[5]); A.v_xor_b32(MISC[6], sNonce, PFD[0]); A.v_or_b32(MISC[5], MISC[5], MISC[6])
        A.v_cmp_ne_u32('vcc', 0, MISC[5])
    def pf_poll(va):
        L = A.newlabel('pfpoll'); Lx = A.newlabel('pfx')
        A.s_mov_b32(t_s[3], PF_OFF); A.s_mov_b32(sspin, 0)
        A.label(L)
        A.buffer_load_dwordx2(PFD, va, WS, t_s[3], mods='offen sc1')
        A.s_add_u32(sspin, sspin, 1); A.s_cmp_gt_u32(sspin, SPIN); A.s_cbranch_scc1(Lx)
        A.wait_vm(); pf_bad(); A.s_cbranch_vccnz(L)
        A.label(Lx); A.I('s_waitcnt', 'vmcnt(0)')
    stamp('pp')
    pf_poll(vPF0)
    stamp(); stamp('pp')
    x0, x0tags = xloads(B.xa(0))
    for c in range(2):
        for f in issue_w1([c]): f()
        for k in range(5 * c, 5 * c + 5): x0[k]()

    class Bulk:
        def __init__(q): q.items = []; q.open = set(); q.cur = None; q.quiet = None; q.altc = 0
        def add(q, name, fs, gate, kind, dma=False):
            for f in fs: q.items.append((name, f, gate, kind, dma))
        def gate(q, g): q.open.add(g)
        def predict(q, kind):
            pc, lc, lat = A.COST[kind]
            d = max(A.port, A.t) + lat
            if lc: d = max(d, max(A.link, A.t) + lat)
            return max(d, A.prev)
        def pick(q, prefer=None):
            first = None
            for k, it in enumerate(q.items):
                if it[2] is not None and it[2] not in q.open: continue
                if it[4] and q.cur is not None and it[0] != q.cur: continue
                if first is None: first = k
                if prefer is None or it[3] == prefer: return k
            return first
        def emit(q, k):
            it = q.items.pop(k); A.label_ = it[0]; it[1](); A.label_ = None
            if it[4]: q.cur = it[0] if any(x[0] == it[0] for x in q.items) else None
        def pump(q, force=0, limit=None):
            n = 0
            while True:
                k0 = q.pick()
                kv = k0 is not None and q.items[k0][3] == 'kv'
                if force <= n and ((A.prev - A.t >= (limit or cfg.backlog) and not kv) or A.inflight() >= A.NCAP - 1): return
                if force <= n and n >= 1: return
                pref = None
                if cfg.alt and q.altc % cfg.alt == cfg.alt - 1: pref = 'm4'
                k = q.pick(pref)
                if k is None: return
                if kv: k = k0
                elif q.quiet is not None and q.predict(q.items[k][3]) > q.quiet: return
                q.altc += 1
                q.emit(k); n += 1
        def flush(q, name):
            while any(x[0] == name for x in q.items):
                if q.cur is not None and q.cur != name: k = next(i for i, x in enumerate(q.items) if x[0] == q.cur)
                else: k = next(i for i, x in enumerate(q.items) if x[0] == name)
                it = q.items[k]; assert it[2] is None or it[2] in q.open, ('gate closed', it[0], it[2])
                q.emit(k)
        def quiet_for(q, name):
            q.quiet = ev_in.get(name, 1 << 60) + cfg.qslack
        def mark(q, name):
            ev[name] = A.t; q.quiet = None
    Q = Bulk()
    sTt = s(93)
    def poll(vaddr, sbase, const, need, dst=None):
        dst = dst or MISC[7]
        L = A.newlabel('poll'); Lx = A.newlabel('pollx')
        A.s_add_u32(t_s[3], sbase, const); A.s_mov_b32(sspin, 0)
        A.label(L)
        A.buffer_load_dword(dst, vaddr, WS, t_s[3], mods='offen sc1')
        A.s_add_u32(sspin, sspin, 1); A.s_cmp_gt_u32(sspin, SPIN); A.s_cbranch_scc1(Lx)
        A.wait_vm()
        A.v_cmp_gt_u32('vcc', need, dst)
        A.s_cbranch_vccnz(L)
        A.label(Lx)
        A.I('s_waitcnt', 'vmcnt(0)')
        A.t += 300
    def check_issue(vaddr, sbase, const):
        A.s_add_u32(t_s[3], sbase, const)
        return A.buffer_load_dword(MISC[7], vaddr, WS, t_s[3], mods='offen sc1')
    def check_wait(tag, vaddr, sbase, const, need):
        Lp = A.newlabel('chkpoll'); Lb = A.newlabel('chkok')
        A.wait_vm(tag)
        A.v_cmp_gt_u32('vcc', need, MISC[7]); A.s_cbranch_vccnz(Lp)
        A.label(Lb)
        def slow():
            A.label(Lp); poll(vaddr, sbase, const, need); A.s_branch(Lb)
        tail.append(slow)
    def publish(tag, sidx, const, value):
        Ls = A.newlabel('slow'); Lb = A.newlabel('back')
        A.v_mov_b32(MISC[6], value); A.s_add_u32(t_s[3], sidx, const)
        A.wait_vm(tag)
        A.s_cmp_eq_u32(sfast, 0); A.s_cbranch_scc1(Ls)
        A.buffer_store_dword(MISC[6], vZ, WS, t_s[3], mods='offen')
        A.label(Lb)
        def slow():
            A.label(Ls)
            A.I('buffer_wbl2', mods='sc1'); A.I('s_waitcnt', 'vmcnt(0)')
            A.buffer_store_dword(MISC[6], vZ, WS, t_s[3], mods='offen sc1')
            A.s_branch(Lb)
        tail.append(slow)
    def sync(tag, sidx, const, vpoll):
        Q.pump(force=cfg.win)
        publish(tag, sidx, const, 1)
        poll(vpoll, sFl, const, 1)
    def touch(vaddr, sbase, const, imm=0):
        def f():
            A.s_add_u32(sTt, sbase, const)
            A.buffer_load_dword(DUMMY, vaddr, WS, sTt, mods=f'offen offset:{imm} sc1', k='touch')
        return f
    def t_O(l): return [touch(x, sOst, B.o(l)) for x in (vOst0, vOst1, vOst2)] if cfg.touch else []
    def t_X(xc, stc): return [touch(vXst0, sXst, xc), touch(vXst0, sXst, xc, 2048), touch(vXst2, sXst, xc), touch(vSTst, sSTst, stc)] if cfg.touch else []
    def t_H(l, p): return [touch(vHst, sHst, B.h(l), p * 1024 + c * 512) for c in range(2)] if cfg.touch else []
    def t_F(va, l, kind): return [touch(va, sFl, flg(l, kind))] if cfg.touch else []
    def spread(sched, items, start, end=None, per=None):
        n = len(items)
        for k, f in enumerate(items):
            idx = start + (k // per if per else (k * (end - start)) // n)
            sched[idx].append(f)
    def V(op, *ops, **kw): return lambda: A.I(op, *ops, **kw)
    def run_valu(fs, every=5):
        for k, f in enumerate(fs):
            f()
            if k % every == every - 1: Q.pump()
    def st_loads(ST, const):
        tag = {}
        def f():
            A.s_add_u32(t_s[2], sSTu, const)
            for k in range(4): tag[0] = A.buffer_load_dwordx2(ST[2 * k: 2 * k + 2], vSTld, WS, t_s[2], mods=f'offen offset:{128*k} sc1', k='touch')
        return f, tag
    def rstd_stream(ST, mode):
        S_, Q_, S2, Q2 = ST[0], ST[1], ST[2], ST[3]
        o = [V('v_add_f32', S_, ST[0], ST[2]), V('v_add_f32', Q_, ST[1], ST[3]), V('v_add_f32', ST[4], ST[4], ST[6]), V('v_add_f32', ST[5], ST[5], ST[7]),
             V('v_add_f32', S_, S_, ST[4]), V('v_add_f32', Q_, Q_, ST[5]), V('v_mov_b32', S2, S_), V('v_mov_b32', Q2, Q_),
             V('v_permlane32_swap_b32', S_, S2), V('v_permlane32_swap_b32', Q_, Q2), V('v_add_f32', S_, S_, S2), V('v_add_f32', Q_, Q_, Q2),
             V('v_mul_f32', S_, 0x3acccccd, S_), V('v_mul_f32', Q_, 0x3acccccd, Q_), V('v_fma_f32', Q_, Neg(S_), S_, Q_),
             V('v_max_f32', Q_, 0, Q_), V('v_add_f32', Q_, 0x3727c5ac, Q_)]
        if mode == 'k': o += [V('v_rsq_f32', vrs, Q_), V('v_mul_f32', MISC[0], LOG2E, vrs)]
        else: o += [V('v_rcp_f32', vrs, Q_)]
        return o
    def softmax_stream(P, T, dest):
        sc, mx, mn, sp, sn = MISC[0], MISC[1], MISC[2], MISC[3], MISC[4]
        o = [V('v_max3_f32', mx, P[0], P[1], P[2]), V('v_min3_f32', mn, P[0], P[1], P[2])]
        for k in range(3, 19, 2): o += [V('v_max3_f32', mx, mx, P[k], P[k + 1]), V('v_min3_f32', mn, mn, P[k], P[k + 1])]
        o += [V('v_max_f32', mx, mx, P[19]), V('v_min_f32', mn, mn, P[19]), V('v_mul_f32', mx, sc, mx), V('v_mul_f32', mn, sc, mn)]
        for k in range(20):
            o += [V('v_fma_f32', T[k], P[k], sc, Neg(mx)), V('v_fma_f32', P[k], Neg(P[k]), sc, mn)]
            if k >= 1: o += [V('v_exp_f32', T[k - 1], T[k - 1]), V('v_exp_f32', P[k - 1], P[k - 1])]
            if k == 3: o += [V('v_add_f32', sp, T[0], T[1]), V('v_add_f32', sn, P[0], P[1])]
            if k > 3: o += [V('v_add_f32', sp, sp, T[k - 2]), V('v_add_f32', sn, sn, P[k - 2])]
        o += [V('v_exp_f32', T[19], T[19]), V('v_exp_f32', P[19], P[19]), V('v_add_f32', sp, sp, T[18]), V('v_add_f32', sn, sn, P[18]),
              V('v_add_f32', sp, sp, T[19]), V('v_add_f32', sn, sn, P[19]), V('v_rcp_f32', sp, sp), V('v_rcp_f32', sn, sn)]
        for src, rc, base in ((T, sp, 0), (P, sn, 20)):
            for k in range(0, 20, 2):
                o += [V('v_mul_f32', src[k], rc, src[k]), V('v_mul_f32', src[k + 1], rc, src[k + 1]), V('v_cvt_pk_bf16_f32', dest(base + k), src[k], src[k + 1])]
        return o

    class Stream:
        def __init__(z, name, nchunk, slot, tagd, covered, onbar):
            z.name, z.nchunk, z.slot, z.tagd, z.cov, z.onbar = name, nchunk, slot, tagd, covered, onbar
            z.tags = {}
        def off(z, k): return z.slot[k >> 4] * SLOT + (k & 15) * 1024
        def barrier(z, idx, need=None):
            if need is not None: Q.flush(f'{z.name}{need}')
            c = z.cov if need is None else max(z.cov, need)
            while c + 1 < z.nchunk and 'tag' in z.tagd.get(c + 1, {}) and not any(x[0] == f'{z.name}{c+1}' for x in Q.items) \
                    and A.done[z.tagd[c + 1]['tag']] <= A.t + 100: c += 1
            if c > z.cov: A.wait_vm(z.tagd[c]['tag'])
            z.cov = c
            A.s_barrier(); z.onbar(idx)
        def rd(z, k, idx):
            if (k >> 4) > z.cov: z.barrier(idx, k >> 4)
            ad, off = lds_addr(z.off(k)); z.tags[k] = A.ds_read_b128(RING[k % 4], ad, mods=f'offset:{off}')
        def due(z, idx):
            for c in range(min(z.nchunk - 1, (idx + cfg.LK) >> 4) + 1):
                for k, it in enumerate(Q.items):
                    if it[0] == f'{z.name}{c}':
                        if it[2] not in Q.open: return False
                        if Q.cur is not None and Q.cur != it[0]: k = next(i for i, x in enumerate(Q.items) if x[0] == Q.cur)
                        Q.emit(k); return True
            return False
        def run(z, lo, hi, mk, pre, post, total, mix=0, mix_end=0):
            for idx in range(lo, hi):
                for f in pre.get(idx, []): f()
                if idx + 3 < total and (idx + 3) not in z.tags: z.rd(idx + 3, idx)
                A.wait_lg(z.tags[idx])
                mk(idx)
                for f in post.get(idx, []): f()
                if idx % 2 == 1 and z.due(idx): continue
                if idx < mix_end:
                    if mix and idx % mix == mix - 1: Q.pump(force=1)
                else: Q.pump()

    W2F = [a(160 + 4 * k, 4) for k in range(24)] + [a(80, 4)]
    OF = [a(4 * k, 4) for k in range(20)]
    W4F = [v(152 + 4 * k, 4) for k in range(24)] + [a(160 + 4 * k, 4) for k in range(24)] + [a(4 * k, 4) for k in range(12)]
    HF = [a(48 + 4 * k, 4) for k in range(28)]
    p4order = [3 * jj + p for p in range(3) for jj in range(4)]
    w3slot = {0: 3, 1: 4, 2: 5, 3: 0, 4: 1, 5: 2, 6: 6, 7: 7, 8: 8, 9: 9, 10: 3, 11: 4, 12: 5, 13: 0, 14: 1}
    w1slot = {c: c for c in range(10)}
    w3tag = {}; bk = {'cur': None}; w1tags = {0: w1tag, 1: {}}
    def q_w3(l, c, gate):
        fl, res = dma_chunk(sW3, c, w3slot[c]); w3tag[c] = res; Q.add(f'W3_{l}_{c}', fl, gate, 'm2', True)
    def q_w1(l, c, gate):
        fl, res = dma_chunk(sW1, c, c); w1tags[l][c] = res; Q.add(f'W1_{l}_{c}', fl, gate, 'm2', True)
    def wloads(frags, sbase, order):
        tags = {}
        def mk(ri, mi):
            def f():
                key = (str(sbase), mi >> 2)
                if bk['cur'] != key:
                    A.s_add_u32(sBk, sbase, (mi >> 2) * 4096); bk['cur'] = key
                tags[ri] = A.buffer_load_dwordx4(frags[ri], L16, WS, sBk, mods=f'offen offset:{(mi & 3)*1024}', k='m4')
            return f
        return [mk(ri, mi) for ri, mi in order], tags
    wt = {}
    def enqueue(l):
        for c in (range(2, 10) if l == 0 else (8, 9)): q_w1(l, c, f'p1s{l}')
        Q.add(f'tO{l}', t_O(l), f'p1s{l}', 'touch')
        w2l, wt['w2'] = wloads(W2F, sW2, [(k, k) for k in range(25)])
        Q.add(f'W2_{l}', w2l[:24], f'p1s{l}' if l else 'prep', 'm4'); Q.add(f'W2_{l}', w2l[24:], f't3done{l}', 'm4')
        if l == 0: Q.add('tH0', t_H(0, 0) + t_H(0, 1) + t_H(0, 2), 'B2_0', 'touch')
        Q.add(f'tX{l}', t_X(B.xb(l), B.stb(l)) + t_F(vFlA, l, K_O), f't3done{l}', 'touch')
        for c in (0, 1): q_w3(l, c, f'B1_{l}')
        q_w3(l, 2, f'B2_{l}')
        for c in (3, 4, 5): q_w3(l, c, f'B3_{l}')
        Q.add(f'tH{l}a', t_H(l, 0) + t_F(vFlB, l, K_XB), f'p2s{l}', 'touch')
        for c in (6, 7, 8, 9): q_w3(l, c, f'RD2_{l}')
        Q.add(f'tH{l}b', t_H(l, 1) + t_H(l, 2) + t_F(vFlA, l, K_H), f'p3f{l}_14', 'touch')
        for c in range(10, 15): q_w3(l, c, f'p3f{l}_{c}')
        order = [(5 * n + ft, 5 * p4order[n] + ft) for n in range(12) for ft in range(5)]
        w4l, wt['w4'] = wloads(W4F, sW4, order)
        for k, f in enumerate(w4l): Q.add(f'W4_{l}_{k // 5}', [f], f'Ost{l}' if k < 24 else f'p2g{l}' if k < 48 else f'xfree{l}', 'm4')
        if l == 0:
            Q.add('tX1', t_X(B.xa(1), B.sta(1)) + t_F(vFlB, 1, K_XA), 'p4m', 'touch')
            for c in range(8): q_w1(1, c, 'p4s' if c < 6 else 'RD4')

    def p1(l):
        A.cmt(f'======== P1 layer {l}')
        acc = [ACC[16 * t: 16 * t + 16] for t in range(4)]
        LA = cfg.LA1
        if l == 0: xl, xt = x0, x0tags
        else:
            xl, xt = xloads(B.xa(l))
            for k in range(LA): xl[k]()
        enqueue(l)
        ST = PR[0:8]
        ldst, sttag = st_loads(ST, B.sta(l))
        pre, post = defaultdict(list), defaultdict(list)
        for s_ in range(LA, 40): post[2 * (s_ - LA)].append(xl[s_])
        e0 = 2 * (40 - LA)
        post[e0].append(ldst)
        xid = {}
        def onbar(idx):
            Q.gate(f'p1s{l}')
            if idx >= 80: Q.gate(f'B1_{l}')
        Z = Stream(f'W1_{l}_', 10, w1slot, w1tags[l], -1, onbar)
        def mf(idx):
            if idx < 80: t, s_ = idx & 1, idx >> 1
            else: t, s_ = divmod(idx - 80, 40); t += 2
            if idx < 80 and t == 0: A.wait_vm(xt[s_])
            A.v_mfma_f32_32x32x16_bf16(acc[t], RING[idx % 4], XF[s_], acc[t] if s_ else 0)
        for k in range(3): Z.rd(k, 0)
        if l == 0:
            def pf_issue():
                A.s_mov_b32(t_s[3], PF_OFF); xid['tag'] = A.buffer_load_dwordx2(PFD, vPF1, WS, t_s[3], mods='offen sc1', k='touch')
            def pf_check():
                Lp = A.newlabel('pf1poll'); Lb = A.newlabel('pf1ok')
                A.wait_vm(xid['tag']); pf_bad(); A.s_cbranch_vccnz(Lp); A.label(Lb)
                def slow(): A.label(Lp); pf_poll(vPF1); A.s_branch(Lb)
                tail.append(slow)
                A.v_cmp_ne_u32('vcc', sxcc, PFD[1]); A.s_and_b32(t_s[3], 'vcc_lo', 0xffff); A.s_cmp_eq_u32(t_s[3], 0); A.s_cselect_b32(sfast, 1, 0)
            post[cfg.pfat - 24].append(pf_issue)
            pre[cfg.pfat].append(lambda: (pf_check(), Z.barrier(cfg.pfat), Q.gate('prep')))
        pre[84].append(lambda: Z.barrier(84))
        Pk = [acc[0][k] for k in range(16)] + [acc[1][k] for k in range(4)]
        Tk = [PR[8 + k] for k in range(20)]
        spread(post, [lambda: A.wait_vm(sttag[0])] + rstd_stream(ST, 'k'), 74, 80)
        sm = softmax_stream(Pk, Tk, lambda f: TB[f >> 1])
        Vv = [acc[1][4 + k] for k in range(12)] + [acc[2][k] for k in range(8)]
        def vpack(k0, k1):
            o = []
            for k in range(k0, k1, 2):
                o += [V('v_mul_f32', Vv[k], vrs, Vv[k]), V('v_mul_f32', Vv[k + 1], vrs, Vv[k + 1]), V('v_cvt_pk_bf16_f32', TB[20 + (k >> 1)], Vv[k], Vv[k + 1])]
            return o
        def trw(k): return lambda: A.ds_write_b128(vTRw, TB[4 * k: 4 * k + 4], mods=f'offset:{TR + 16*k}')
        extra = vpack(0, 12) + [V('v_mov_b32', TB[30], 0x3f80), V('v_mov_b32', TB[31], 0)]
        nsh = 150
        spread(post, sm[:nsh], 81, 120)
        Z.run(0, 120, mf, pre, post, 120, cfg.mix1, e0)
        rem = sm[nsh:]; seq = []
        n_after = {len(rem) - 48: 0, len(rem) - 36: 1, len(rem) - 24: 2, len(rem) - 12: 3}
        for k, f in enumerate(rem):
            if k in n_after: seq.append(trw(n_after[k]))
            seq.append(f)
        seq += [trw(4)] + extra + [trw(5)] + vpack(12, 20) + [trw(6), trw(7)]
        run_valu(seq)
        A.wait_lg(); Z.barrier(120, 7); Q.gate(f'B2_{l}')
        stamp()
        kacc = [acc[0][4 * ft: 4 * ft + 4] for ft in range(3)]
        KB = [PR[0:16], PR[16:32], PR[32:48], PR[48:64]]
        ktag = {}
        for ks in range(4):
            for u in range(2): A.ds_read_b64_tr_b16(KB[ks][12 + 2 * u: 14 + 2 * u], vTRb, mods=f'offset:{TR + 5120*ks + 2560*u}')
            for ft in range(3):
                for u in range(2): ktag[ks, ft] = A.ds_read_b64_tr_b16(KB[ks][4 * ft + 2 * u: 4 * ft + 2 * u + 2], vTRa, mods=f'offset:{TR + 5120*ks + 2560*u + 32*ft}')
            if ks >= 1:
                for ft in range(3):
                    A.wait_lg(ktag[ks - 1, ft]); A.v_mfma_f32_16x16x32_bf16(kacc[ft], KB[ks - 1][4 * ft: 4 * ft + 4], KB[ks - 1][12:16], kacc[ft] if ks > 1 else 0)
            Q.pump()
        for ft in range(3):
            A.wait_lg(ktag[3, ft]); A.v_mfma_f32_16x16x32_bf16(kacc[ft], KB[3][4 * ft: 4 * ft + 4], KB[3][12:16], kacc[ft])
        for k in range(120, 123): Z.rd(k, 120)
        KP = acc[1][0:6]
        for k in range(6): A.v_cvt_pk_bf16_f32(KP[k], acc[0][2 * k], acc[0][2 * k + 1])
        for k in range(6): A.v_min_u32(KP[k], 0xfffffffe, KP[k])
        A.s_add_u32(t_s[2], sKVw, KVP_OFF + l * KV_SZ)
        A.buffer_store_dwordx4(KP[0:4], vKVst0, WS, t_s[2], mods='offen sc1')
        A.buffer_store_dwordx2(KP[4:6], vKVst1, WS, t_s[2], mods='offen sc1')
        stamp()
        pre, post = defaultdict(list), defaultdict(list)
        PRF = [PR[4 * k: 4 * k + 4] for k in range(16)]; ptag = {}
        def pld(k):
            def f():
                if k == 0: A.s_add_u32(so, sKVr, KVP_OFF + l * KV_SZ); Q.mark(f'kvld{l}')
                else: A.s_add_u32(so, so, KV_SLOT)
                ptag[k] = A.buffer_load_dwordx4(PRF[k], vKVld, WS, so, mods='offen sc1', k='kv')
            return f
        pl = [pld(k) for k in range(16)]
        Q.quiet_for(f'kvld{l}'); Q.quiet += 500
        Q.items = [(f'KV{l}', f, f'kvgo{l}', 'kv', False) for f in pl] + Q.items
        def kvgo(): Q.gate(f'kvgo{l}'); Q.quiet = None
        pre[cfg.kvld_at].append(kvgo)
        Z.run(120, 160, mf, pre, post, 160)
        Q.gate(f't3done{l}')
        if l == 0:
            A.buffer_load_dwordx4(RES[10:14], vOUT0, XIN, 0, mods='offen', k='slow'); A.buffer_load_dwordx4(RES[14:18], vOUT0, XIN, 0, mods='offen offset:64', k='slow')
            rtag = A.buffer_load_dwordx2(RES[18:20], vOUT2, XIN, 0, mods='offen', k='slow')
        Q.quiet_for(f'Ost{l}')
        Pq = [acc[2][8 + k] for k in range(8)] + [acc[3][k] for k in range(12)]
        Tq = [acc[1][k] for k in range(16)] + [acc[0][k] for k in range(4)]
        def qdest(f): return TB[4 * ((f & 15) >> 2) + 2 * (f >> 4) + ((f & 3) >> 1)] if f < 32 else TB[16 + ((f - 32) >> 1)]
        for k, f in enumerate(softmax_stream(Pq, Tq, qdest)):
            f()
            if k % 5 == 4: Q.pump(limit=cfg.backlog + 1400)
        Q.flush(f'KV{l}')
        stamp()
        Lre = A.newlabel('kvre'); Lrt = A.newlabel('kvretry')
        RACC = v(136, 16); mxu = MISC[5]
        A.s_mov_b32(sspin, 0)
        A.label(Lre)
        for k in range(16):
            A.wait_vm(ptag[k])
            A.v_mfma_f32_32x32x16_bf16(RACC, SEL, PRF[k], RACC if k else 0)
            if k == 0: A.v_max_u32(mxu, PRF[0][0], PRF[0][1])
            else: A.v_max3_u32(mxu, mxu, PRF[k][0], PRF[k][1])
            A.v_max3_u32(mxu, mxu, PRF[k][2], PRF[k][3])
        A.v_cmp_eq_u32('vcc', -1, mxu)
        A.s_cbranch_vccnz(Lrt)
        Lok = A.newlabel('kvok'); A.label(Lok)
        def retry():
            A.label(Lrt)
            A.s_add_u32(sspin, sspin, 1); A.s_cmp_gt_u32(sspin, SPIN >> 2); A.s_cbranch_scc1(Lok)
            A.s_nop(7)
            for f in pl: f()
            A.I('s_waitcnt', 'vmcnt(0)')
            A.s_branch(Lre)
        tail.append(retry)
        for k in range(4): A.v_cvt_pk_bf16_f32(MISC[k], RACC[2 * k], RACC[2 * k + 1])
        A.ds_write_b128(vKBw, MISC[0:4])
        Q.pump()
        A.wait_lg(); A.s_barrier(); Q.gate(f'B3_{l}')
        stamp()
        otag = {}
        for T_ in (1, 0):
            for s_ in range(5): otag[T_, s_] = A.ds_read_b128(PRF[5 * T_ + s_], (vKBr0, vKBr1)[T_], mods=f'offset:{16*s_}')
        oacc = [acc[0], acc[1]]
        for T_ in (1, 0):
            for s_ in range(5):
                A.wait_lg(otag[T_, s_])
                A.v_mfma_f32_32x32x16_bf16(oacc[T_], PRF[5 * T_ + s_], TB[4 * s_: 4 * s_ + 4], oacc[T_] if s_ else 0)
                Q.pump()
        den = MISC[1]
        A.v_add_f32(den, 0x358637bd, oacc[1][4]); A.v_rcp_f32(den, den)
        Ov = [oacc[0][k] for k in range(16)] + [oacc[1][k] for k in range(4)]
        OP = v(136, 10)
        A.s_add_u32(t_s[2], sOst, B.o(l))
        for k in list(range(16, 20, 2)) + list(range(0, 16, 2)):
            A.v_mul_f32(Ov[k], den, Ov[k]); A.v_mul_f32(Ov[k + 1], den, Ov[k + 1]); A.v_cvt_pk_bf16_f32(OP[k >> 1], Ov[k], Ov[k + 1])
            if k == 18: A.buffer_store_dwordx2(OP[8:10], vOst2, WS, t_s[2], mods='offen', k='st')
            if k == 6: A.buffer_store_dwordx4(OP[0:4], vOst0, WS, t_s[2], mods='offen')
            if k == 14: last = A.buffer_store_dwordx4(OP[4:8], vOst1, WS, t_s[2], mods='offen')
        Q.mark(f'Ost{l}'); Q.gate(f'Ost{l}')
        Q.flush(f'W2_{l}')
        if l == 0:
            A.wait_vm(rtag)
            for k in range(10):
                A.v_lshlrev_b32(RES[2 * k], 16, RES[10 + k]); A.v_and_b32(RES[2 * k + 1], 0xffff0000, RES[10 + k])
        stamp()
        sync(last, sFlW1, flg(l, K_O), vFlA)
        stamp()

    def ksplit_gemm(nsteps, WF, wneed, AF, atag, sched, pump_from, mix):
        acc = [[ACC[20 * tau + 4 * ft: 20 * tau + 4 * ft + 4] for ft in range(5)] for tau in range(4)]
        def mf(n, tau, ft):
            if ft == 0: A.wait_vm(atag[n, tau])
            wneed(n, ft)
            A.v_mfma_f32_16x16x32_bf16(acc[tau][ft], WF(n, ft), AF(n, tau), acc[tau][ft] if n else 0)
        def hook(key):
            for f in sched.get(key, []): f()
            if key[2] in (1, 4):
                if key[0] >= pump_from: Q.pump()
                elif mix and key[2] == 1 and key[1] % mix == 0: Q.pump(force=1)
        for n in range(nsteps - 2):
            for tau in range(4):
                for ft in range(5):
                    mf(n, tau, ft); hook((n, tau, ft))
        pend = []
        for ti, tau in enumerate((1, 2, 3, 0)):
            for n in (nsteps - 2, nsteps - 1):
                for ft in range(5):
                    mf(n, tau, ft)
                    k = (n - nsteps + 2) * 5 + ft
                    if k % 2 == 1 and pend: pend.pop(0)()
                    hook((nsteps - 2 + (ti >> 1), 2 * (ti & 1) + (n - nsteps + 2), ft))
            if tau: pend += [(lambda tau=tau, ft=ft: A.ds_write_b128(vRDw[tau], acc[tau][ft], mods=f'offset:{ft*1024}')) for ft in range(5)]
        for f in pend: f()
        return acc
    def reduce_epilogue(acc, final, xconst, stconst, flagconst, evname, gate):
        A.wait_lg(); A.s_barrier()
        rt = {}
        for ft in range(5):
            for k in range(3): rt[ft] = A.ds_read_b128(acc[k + 1][ft], vRDr, mods=f'offset:{k*5120 + ft*1024}')
        for ft in range(5):
            for e in range(0, 4, 2): A.v_pk_add_f32(RES[4 * ft + e: 4 * ft + e + 2], RES[4 * ft + e: 4 * ft + e + 2], acc[0][ft][e:e + 2])
        XP = ACC[0:10]; S2, Q2 = ACC[10:12], ACC[12:14]
        if not final: A.s_add_u32(t_s[2], sXst, xconst)
        for ft in range(5):
            A.wait_lg(rt[ft])
            for e in range(0, 4, 2):
                R2 = RES[4 * ft + e: 4 * ft + e + 2]
                A.v_pk_add_f32(acc[1][ft][e:e + 2], acc[1][ft][e:e + 2], acc[2][ft][e:e + 2])
                A.v_pk_add_f32(R2, R2, acc[3][ft][e:e + 2])
            for e in range(0, 4, 2):
                R2 = RES[4 * ft + e: 4 * ft + e + 2]
                A.v_pk_add_f32(R2, R2, acc[1][ft][e:e + 2])
            for e in range(0, 4, 2): A.v_cvt_pk_bf16_f32(XP[2 * ft + (e >> 1)], RES[4 * ft + e], RES[4 * ft + e + 1])
            if final:
                if ft == 1: A.buffer_store_dwordx4(XP[0:4], vOUT0, OUT, 0, mods='offen')
                if ft == 3: A.buffer_store_dwordx4(XP[4:8], vOUT0, OUT, 0, mods='offen offset:64')
                if ft == 4: A.buffer_store_dwordx2(XP[8:10], vOUT2, OUT, 0, mods='offen')
                continue
            if ft == 1: A.buffer_store_dwordx4(XP[0:4], vXst0, WS, t_s[2], mods='offen')
            if ft == 3: A.buffer_store_dwordx4(XP[4:8], vXst0, WS, t_s[2], mods='offen offset:2048')
            if ft == 4:
                A.buffer_store_dwordx2(XP[8:10], vXst2, WS, t_s[2], mods='offen', k='st')
                A.s_barrier(); Q.gate(gate)
            R0, R1 = RES[4 * ft: 4 * ft + 2], RES[4 * ft + 2: 4 * ft + 4]
            if ft == 0:
                A.v_pk_add_f32(S2, R0, R1); A.v_pk_mul_f32(Q2, R0, R0)
            else:
                A.v_pk_add_f32(S2, S2, R0); A.v_pk_fma_f32(Q2, R0, R0, Q2); A.v_pk_add_f32(S2, S2, R1)
            A.v_pk_fma_f32(Q2, R1, R1, Q2)
        if final: return
        A.v_add_f32(S2[0], S2[0], S2[1]); A.v_add_f32(Q2[0], Q2[0], Q2[1])
        A.s_add_u32(t_s[2], sSTst, stconst)
        A.v_permlane32_swap_b32(S2[0], Q2[0]); A.v_add_f32(S2[0], S2[0], Q2[0]); A.v_mov_b32(S2[1], S2[0])
        A.v_permlane16_swap_b32(S2[0], S2[1]); A.v_add_f32(S2[0], S2[0], S2[1])
        last = A.buffer_store_dword(S2[0], vSTst, WS, t_s[2], mods='offen', k='st')
        Q.mark(evname)
        stamp()
        sync(last, sFlW2, flagconst, vFlB)
    def slots(n0, n1, fts):
        return [(n, tau, ft) for n in range(n0, n1) for tau in range(4) for ft in fts]
    def put(sched, items, sl):
        assert len(items) <= len(sl), (len(items), len(sl))
        for k, f in enumerate(items): sched[sl[(k * len(sl)) // len(items)]].append(f)

    def p2(l):
        A.cmt(f'======== P2 layer {l}')
        atag = {}
        def aload(n, tau):
            A.s_add_u32(so, sOld[tau], B.o(l) + (n >> 2) * 4096)
            atag[n, tau] = A.buffer_load_dwordx4(OF[4 * n + tau], L16, WS, so, mods=f'offen offset:{(n & 3)*1024} sc1')
        for n in range(2):
            for tau in range(4): aload(n, tau)
        Q.gate(f'p2s{l}'); Q.quiet_for(f'XBst{l}')
        sched = defaultdict(list)
        put(sched, [(lambda n=n, tau=tau: aload(n, tau)) for n in range(2, 5) for tau in range(4)], slots(0, 2, (0, 2, 4))[:16])
        acc = ksplit_gemm(5, lambda n, ft: W2F[5 * n + ft], lambda n, ft: None, lambda n, tau: OF[4 * n + tau], atag, sched, 2, 0)
        Q.gate(f'p2g{l}')
        stamp()
        reduce_epilogue(acc, False, B.xb(l), B.stb(l), flg(l, K_XB), f'XBst{l}', f'RD2_{l}')
        stamp()

    def p34(l):
        A.cmt(f'======== P3 layer {l}')
        acc = [[ACC[32 * u + 16 * gu: 32 * u + 16 * gu + 16] for gu in range(2)] for u in range(2)]
        LA = cfg.LA1
        xl, xt = xloads(B.xb(l))
        for k in range(LA): xl[k]()
        ST = v(136, 8)
        ldst, sttag = st_loads(ST, B.stb(l))
        pre, post = defaultdict(list), defaultdict(list)
        for s_ in range(LA, 40): post[2 * (s_ - LA)].append(xl[s_])
        e0 = 2 * (40 - LA)
        post[e0].append(ldst)
        def onbar(idx):
            for c in range(10, 15):
                if idx >= 16 * (c - 10 + 1): Q.gate(f'p3f{l}_{c}')
        Z = Stream(f'W3_{l}_', 15, w3slot, w3tag, -1, onbar)
        def mf(idx):
            p, rem = divmod(idx, 80); s_, gu = rem >> 1, rem & 1
            if idx < 80 and gu == 0: A.wait_vm(xt[s_])
            ac = acc[p & 1][gu]
            A.v_mfma_f32_32x32x16_bf16(ac, RING[idx % 4], XF[s_], ac if s_ else 0)
        for k in range(3): Z.rd(k, 0)
        pre[84].append(lambda: Z.barrier(84))
        pre[186].append(lambda: Q.gate(f'xfree{l}'))
        spread(post, [lambda: A.wait_vm(sttag[0])] + rstd_stream(ST, 'sq'), 74, 80)
        HP = [v(144, 4), v(148, 4)]
        htag = {}
        def epi(p):
            G, U = acc[p & 1]; o = []
            for c in range(2):
                for k in range(8 * c, 8 * c + 8, 2):
                    o += [V('v_max_f32', G[k], 0, G[k]), V('v_max_f32', G[k + 1], 0, G[k + 1]), V('v_mul_f32', U[k], vrs, U[k]), V('v_mul_f32', U[k + 1], vrs, U[k + 1]),
                          V('v_mul_f32', G[k], G[k], U[k]), V('v_mul_f32', G[k + 1], G[k + 1], U[k + 1]), V('v_cvt_pk_bf16_f32', HP[c][(k & 7) >> 1], G[k], G[k + 1])]
                def st(c=c):
                    A.s_add_u32(so, sHst, B.h(l))
                    htag[p] = A.buffer_store_dwordx4(HP[c], vHst, WS, so, mods=f'offen offset:{p*1024 + c*512}')
                o.append(st)
            return o
        spread(post, epi(0), 82, 112)
        spread(post, epi(1), 162, 178)
        chk = {}
        post[204].append(lambda: publish(htag[1], sFlW1, flg(l, K_H), 2))
        post[226].append(lambda: chk.__setitem__(2, check_issue(vFlA, sFl, flg(l, K_H))))
        stamp('p3')
        for idx in (20, 40, 60, 80, 100, 120, 140, 160, 180, 200, 220): pre[idx].insert(0, lambda: stamp('p3'))
        Z.run(0, 240, mf, pre, post, 240, cfg.mix3, e0)
        stamp('p3')
        stamp()
        atag = {}
        def aload(n, tau):
            ms = p4order[n]
            A.s_add_u32(so, sHld[tau], B.h(l) + (ms >> 2) * 4096)
            atag[n, tau] = A.buffer_load_dwordx4(HF[(4 * n + tau) % 28], L16, WS, so, mods=f'offen offset:{(ms & 3)*1024} sc1')
        LAst = cfg.LA4
        def grp(n):
            Q.flush(f'W4_{l}_{n}')
        sched = defaultdict(list)
        check_wait(chk[2], vFlA, sFl, flg(l, K_H), 2)
        e2 = epi(2); first = [(n, tau) for n in range(LAst) for tau in range(4)]
        for k, f in enumerate(e2):
            if k % 4 == 0 and first:
                x = first.pop(0)
                if x[1] == 0: grp(x[0])
                aload(*x)
            f()
        for x in first:
            if x[1] == 0: grp(x[0])
            aload(*x)
        stamp()
        sched[(2, 1, 2)].append(lambda: publish(htag[2], sFlW1, flg(l, K_H), 3))
        sched[(3, 3, 2)].append(lambda: chk.__setitem__(3, check_issue(vFlA, sFl, flg(l, K_H))))
        sched[(7 - LAst, 3, 4)].append(lambda: check_wait(chk[3], vFlA, sFl, flg(l, K_H), 3))
        for n in range(LAst, 12):
            sched[(n - LAst, 0, 0)].append(lambda n=n: grp(n))
            for tau in range(4): sched[(n - LAst, tau, 0)].append(lambda n=n, tau=tau: aload(n, tau))
        if l == 0:
            A.s_barrier(); Q.gate('p4s'); sched[(6, 0, 1)].append(lambda: Q.gate('p4m'))
            Q.quiet_for('XAst')
        acc = ksplit_gemm(12, lambda n, ft: W4F[5 * n + ft], lambda n, ft: A.wait_vm(wt['w4'][5 * n + ft]), lambda n, tau: HF[(4 * n + tau) % 28], atag, sched, 12 - LAst, cfg.mix4)
        stamp()
        reduce_epilogue(acc, l == 1, B.xa(l + 1), B.sta(l + 1), flg(l + 1, K_XA) if l == 0 else None, 'XAst', 'RD4')
        stamp()
    for l in range(2):
        p1(l); p2(l); p34(l)
    assert not Q.items, [x[0] for x in Q.items]
    ev['end'] = A.t
    if cfg.diag:
        A.I('s_waitcnt', 'vmcnt(0)'); stamp('always')
        A.s_memrealtime(s(98, 2)); A.wait_lg()
        n = nstamp[0]
        A.s_lshl_b32(t_s[0], b, 10); A.s_lshl_b32(t_s[1], w, 8); A.s_add_u32(t_s[0], t_s[0], t_s[1]); A.s_add_u32(t_s[0], t_s[0], DBG_OFF)
        if cfg.hdbg:
            Lh = A.newlabel('hd'); A.s_cmp_lg_u32(b, cfg.hdbg - 1); A.s_cbranch_scc1(Lh); A.s_cmp_lg_u32(w, 0); A.s_cbranch_scc1(Lh)
            sel = [1, 3, 4, 7, 9, 12, 13, 15, 17, 18, 23, 26, 27, n - 1]
            for k, x in enumerate(sel):
                A.s_sub_u32(t_s[1], STAMPS[x], STAMPS[0]); A.v_mov_b32(MISC[0], t_s[1])
                A.buffer_store_dword(MISC[0], vZ, DBG, 0, mods=f'offen offset:{4*(k+1)}')
            A.s_sub_u32(t_s[1], s(98), s(96)); A.v_mov_b32(MISC[0], t_s[1])
            A.buffer_store_dword(MISC[0], vZ, DBG, 0, mods='offen offset:60')
            A.label(Lh)
        for k, sr in enumerate(STAMPS[:n] + [s(96), s(98), sfast]):
            A.v_mov_b32(MISC[0], sr)
            A.buffer_store_dword(MISC[0], vZ, WS, t_s[0], mods=f'offen offset:{4*(k if k < n else 40 + k - n)}')
    A.label('M_end')
    A.s_endpgm()
    k = 0
    evs = dict(ev); evs['trace'] = list(A.trace)
    while k < len(tail):
        A.vm = []; A.lg = []; tail[k](); k += 1
    A.label('M_codeend'); A.s_endpgm()
    nn = A.finalize()
    return A, nn, nstamp[0], evs
def gen_iter(cfg):
    ev = None
    class ND(cfg): diag = False
    for it in range(4): _, _, _, ev = gen_main(ND, ev)
    A, nn, ns, ev2 = gen_main(cfg, ev)
    return A, nn, ns, ev
```

```python
import re

class R:
    __slots__ = ('f', 'i', 'n')
    def __init__(s, f, i, n=1):
        s.f, s.i, s.n = f, i, n
        lim = 102 if f == 's' else 256
        assert 0 <= i and i + n <= lim, (f, i, n)
    def __str__(s):
        return f'{s.f}{s.i}' if s.n == 1 else f'{s.f}[{s.i}:{s.i+s.n-1}]'
    __repr__ = __str__
    def __getitem__(s, k):
        if isinstance(k, slice):
            a = k.start or 0; b = s.n if k.stop is None else k.stop
            assert 0 <= a < b <= s.n, (s, k)
            return R(s.f, s.i + a, b - a)
        assert 0 <= k < s.n, (s, k)
        return R(s.f, s.i + k, 1)
    def regs(s):
        return {(s.f, s.i + k) for k in range(s.n)}
def v(i, n=1): return R('v', i, n)
def a(i, n=1): return R('a', i, n)
def s(i, n=1): return R('s', i, n)

class Neg:
    def __init__(s, r): s.r = r
    def __str__(s): return f'-{s.r}'
class Abs:
    def __init__(s, r): s.r = r
    def __str__(s): return f'abs({s.r})'

SPECIAL = {'vcc': {('x', 'vcc')}, 'exec': {('x', 'exec')}, 'm0': {('x', 'm0')}, 'vcc_lo': {('x', 'vcc')}, 'vcc_hi': {('x','vcc')},
           'exec_lo': {('x', 'exec')}, 'exec_hi': {('x', 'exec')}}
def regs_of(o):
    if isinstance(o, R): return o.regs()
    if isinstance(o, (Neg, Abs)): return regs_of(o.r)
    if isinstance(o, str) and o in SPECIAL: return set(SPECIAL[o])
    return set()

TRANS = ('v_exp_f32', 'v_log_f32', 'v_rcp_f32', 'v_rsq_f32', 'v_sqrt_f32', 'v_sin_f32', 'v_cos_f32', 'v_rcp_iflag_f32')

class Ins:
    __slots__ = ('op', 'ops', 'mods', 'kind', 'rd', 'wr', 'passes', 'srcc', 'cmt', 'tag')
    def __init__(s, op, ops, mods='', cmt=''):
        s.op, s.ops, s.mods, s.cmt = op, list(ops), mods, cmt
        s.passes = 0; s.srcc = set(); s.tag = None
        s.classify()
    def classify(s):
        op, o = s.op, s.ops
        rd, wr = set(), set()
        def R_(xs):
            for x in xs: rd.update(regs_of(x))
        def W_(xs):
            for x in xs: wr.update(regs_of(x))
        if op.startswith('v_mfma'):
            s.kind = 'mfma'; W_(o[:1]); R_(o[1:]); s.srcc = regs_of(o[3])
            s.passes = 8 if '32x32x16' in op else 4 if '16x16x32' in op else None
            assert s.passes
        elif op.startswith('v_cmp'):
            s.kind = 'valu'; W_(o[:1]); R_(o[1:])
            if op.startswith('v_cmpx'): wr.add(('x', 'exec'))
        elif op.startswith('v_permlane') and 'swap' in op:
            s.kind = 'valu'; W_(o[:2]); R_(o[:2])
        elif op in ('v_readfirstlane_b32', 'v_readlane_b32'):
            s.kind = 'valu'; W_(o[:1]); R_(o[1:])
        elif op.startswith(('v_add_co', 'v_sub_co', 'v_addc_co', 'v_subb_co')):
            s.kind = 'valu'; W_(o[:2]); R_(o[2:])
        elif op.startswith('v_'):
            s.kind = 'valu'; W_(o[:1]); R_(o[1:])
            if op.startswith(('v_fmac', 'v_dot2c', 'v_pk_fmac', 'v_writelane')) or 'sdwa' in op or 'dpp' in op or 'row_' in s.mods or 'quad_perm' in s.mods: R_(o[:1])
            if op.startswith('v_cndmask') and len(o) == 3: rd.add(('x', 'vcc'))
        elif op.startswith(('buffer_load', 'global_load')):
            s.kind = 'vmem'
            if 'lds' in s.mods.split() or '_lds_' in op:
                R_(o); rd.add(('x', 'm0'))
            else:
                W_(o[:1]); R_(o[1:])
                if 'd16' in op: R_(o[:1])
        elif op.startswith(('buffer_store', 'global_store', 'buffer_atomic', 'global_atomic')):
            s.kind = 'vmem'; R_(o)
        elif op in ('buffer_wbl2', 'buffer_inv'):
            s.kind = 'vmem'
        elif op.startswith('ds_read') or op.startswith('ds_bpermute') or op.startswith('ds_swizzle'):
            s.kind = 'ds'; W_(o[:1]); R_(o[1:])
            if 'd16' in op: R_(o[:1])
        elif op.startswith('ds_write'):
            s.kind = 'ds'; R_(o)
        elif op.startswith(('s_load', 's_memtime', 's_memrealtime')):
            s.kind = 'smem'; W_(o[:1]); R_(o[1:])
        elif op.startswith(('s_cmp', 's_bitcmp')):
            s.kind = 'salu'; R_(o); wr.add(('x', 'scc'))
        elif op.startswith(('s_cbranch', 's_branch')):
            s.kind = 'branch'
        elif op in ('s_nop', 's_waitcnt', 's_barrier', 's_endpgm', 's_setprio', 's_sleep'):
            s.kind = 'misc'
        elif op.startswith('s_'):
            s.kind = 'salu'; W_(o[:1]); R_(o[1:])
            if 'saveexec' in op: wr.add(('x', 'exec')); rd.add(('x', 'exec'))
            if op in ('s_addk_i32', 's_mulk_i32'): R_(o[:1])
        else:
            raise ValueError('unknown op ' + op)
        s.rd, s.wr = rd, wr
    def text(s):
        t = s.op
        if s.ops: t += ' ' + ', '.join(fmt(x) for x in s.ops)
        if s.mods: t += ' ' + s.mods
        if s.cmt: t += '  ; ' + s.cmt
        return '\t' + t
def fmt(x):
    if isinstance(x, int):
        return str(x) if -16 <= x <= 64 else hex(x & 0xffffffff)
    if isinstance(x, float):
        return repr(x)
    return str(x)

class Label:
    def __init__(s, name): s.name = name
    def text(s): return s.name + ':'
class Raw:
    def __init__(s, t): s.t = t
    def text(s): return s.t

def vregs(x): return {r for r in x if r[0] in 'va'}
def sregs(x): return {r for r in x if r[0] == 's' or r == ('x', 'vcc')}

def need_states(p, c):
    n = 0
    pk, ck = p.kind, c.kind
    if pk == 'valu':
        pv = vregs(p.wr); ps = sregs(p.wr)
        if pv:
            if ck == 'mfma' and pv & c.rd: n = max(n, 2)
            if ck == 'valu':
                if c.op.startswith('v_permlane') and pv & c.rd: n = max(n, 2)
                if ('dpp' in c.op or 'row_' in c.mods or 'quad_perm' in c.mods) and pv & c.rd: n = max(n, 2)
                if c.op in ('v_readfirstlane_b32', 'v_readlane_b32') and pv & c.rd: n = max(n, 1)
                if p.op.startswith(TRANS) and pv & (c.rd) : n = max(n, 1)
                if ('sdwa' in p.op or 'op_sel' in p.mods) and pv & (c.rd | c.wr): n = max(n, 1)
        if ps:
            if ck == 'vmem' and ps & c.rd: n = max(n, 5)
            if ck == 'valu' and ps & c.rd:
                n = max(n, 4 if c.op in ('v_readlane_b32', 'v_writelane_b32') else 2)
            if ck == 'salu' and ps & c.rd: n = max(n, 1)
        if ('x', 'exec') in p.wr:
            if ck == 'mfma': n = max(n, 4)
            if ck == 'valu': n = max(n, 5)
    if pk == 'valu' and p.op.startswith('v_dot'):
        pv = vregs(p.wr)
        if c.op == p.op:
            if pv & (regs_of(c.ops[1]) | regs_of(c.ops[2])): n = max(n, 3)
        elif pv & (c.rd | c.wr): n = max(n, 3)
    if pk == 'salu':
        if ('x', 'm0') in p.wr and ('x', 'm0') in c.rd and ck in ('vmem', 'ds'): n = max(n, 1)
    if pk == 'mfma':
        D = p.wr
        big = {8: 12, 4: 8}[p.passes]
        if ck == 'mfma':
            ab = regs_of(c.ops[1]) | regs_of(c.ops[2])
            if D & ab: n = max(n, big)
            if D & c.srcc:
                same = (str(c.ops[3]) == str(p.ops[0]) and c.passes == p.passes)
                if not same: n = max(n, {8: 10, 4: 6}[p.passes])
            elif D & c.wr:
                n = max(n, big)
        elif ck in ('valu', 'vmem', 'ds'):
            if D & (c.rd | c.wr): n = max(n, big)
            if ck == 'valu' and p.srcc & c.wr: n = max(n, {8: 7, 4: 3}[p.passes])
    if pk in ('vmem',) and ('store' in p.op or 'atomic' in p.op) and ('x3' in p.op or 'x4' in p.op):
        data = regs_of(p.ops[0]) if p.op.startswith('buffer') else regs_of(p.ops[1])
        if data & c.wr: n = max(n, 2 if ck in ('valu', 'mfma') else 1)
    return n

class Asm:
    def __init__(s):
        s.items = []
        s.vm = []
        s.lg = []
        s.nid = 0
        s.uid = 0
        s.t = 0; s.mfree = 0; s.port = 0; s.link = 0; s.prev = 0; s.done = {}; s.ldsfree = 0
        s.fly = []; s.bigs = set(); s.trace = []; s.label_ = None
    COST = {'hit': (68, 0, 300), 'm2': (68, 130, 700), 'm4': (68, 65, 700), 'kv': (60, 105, 1400), 'st': (70, 0, 340), 'small': (16, 0, 290), 'touch': (30, 20, 500), 'slow': (256, 60, 800), 'l1': (59, 33, 700)}
    NCAP = 8
    def inflight(s): return sum(1 for d in s.fly if d > s.t)
    def I(s, op, *ops, mods='', cmt='', k=None):
        ins = Ins(op, ops, mods, cmt)
        s.items.append(ins)
        if ins.kind == 'mfma':
            st = max(s.t, s.mfree); s.mfree = st + 4 * ins.passes; s.t = st + 8
        elif ins.kind == 'valu': s.t += 8 if (op.startswith(TRANS) or op.startswith('v_pk')) else 4
        elif op == 's_barrier': s.t += 40
        elif op == 's_nop': s.t += 4 * (int(ops[0]) + 1)
        elif op != 's_waitcnt': s.t += 4
        if ins.kind == 'vmem':
            s.nid += 1; ins.tag = s.nid; s.vm.append(s.nid)
            pc, lc, lat = s.COST[k or ('small' if 'x4' not in op else 'st' if 'store' in op else 'hit')]
            big = pc >= 60
            if big:
                s.fly = [d for d in s.fly if d > s.t]
                if len(s.fly) >= s.NCAP: s.t = s.fly[len(s.fly) - s.NCAP]
            s.port = max(s.port, s.t) + pc
            d = s.port - pc + lat
            if lc:
                s.link = max(s.link, s.t) + lc; d = max(d, s.link - lc + lat)
            s.prev = max(s.prev + (pc if s.prev > s.t else 0) * 0, d, s.prev); s.done[s.nid] = s.prev
            if big: s.fly.append(s.prev); s.bigs.add(s.nid)
            s.trace.append((s.t, s.prev, s.label_ or k or op, big))
            return s.nid
        if ins.kind == 'ds':
            s.nid += 1; ins.tag = s.nid; s.lg.append(s.nid)
            c = 52 if 'write_b128' in op else 16 if 'b128' in op else 8
            s.ldsfree = max(s.ldsfree, s.t) + c; s.done[s.nid] = s.ldsfree + 64
            return s.nid
        if ins.kind == 'smem':
            s.lg.append('smem')
        return None
    def __getattr__(s, op):
        if op.startswith(('v_', 's_', 'ds_', 'buffer_', 'global_')):
            return lambda *ops, **kw: s.I(op, *ops, **kw)
        raise AttributeError(op)
    def label(s, name): s.items.append(Label(name))
    def newlabel(s, base='L'):
        s.uid += 1; return f'{base}_{s.uid}'
    def raw(s, t): s.items.append(Raw(t))
    def cmt(s, t): s.items.append(Raw('\t; ' + t))
    def wait_vm(s, tag=None):
        if tag is None:
            if s.vm: s.I('s_waitcnt', 'vmcnt(0)'); s.t = max(s.t, s.prev)
            s.vm = []; return
        if tag not in s.vm: return
        s.t = max(s.t, s.done.get(tag, 0))
        k = s.vm.index(tag); n = len(s.vm) - 1 - k
        n = min(n, 63)
        s.I('s_waitcnt', f'vmcnt({n})')
        s.vm = s.vm[len(s.vm) - n:] if n else []
    def wait_lg(s, tag=None):
        if tag is None or 'smem' in s.lg:
            if s.lg: s.I('s_waitcnt', 'lgkmcnt(0)'); s.t = max([s.t] + [s.done.get(x, 0) for x in s.lg])
            s.lg = []; return
        if tag not in s.lg: return
        s.t = max(s.t, s.done.get(tag, 0))
        k = s.lg.index(tag); n = len(s.lg) - 1 - k
        n = min(n, 15)
        s.I('s_waitcnt', f'lgkmcnt({n})')
        s.lg = s.lg[len(s.lg) - n:] if n else []
    def force_wait_all(s):
        s.I('s_waitcnt', 'vmcnt(0) lgkmcnt(0)'); s.vm = []; s.lg = []
    def vm_done(s, tag): return tag not in s.vm
    def finalize(s, window=24):
        out = []; hist = []
        nins = 0
        for it in s.items:
            if not isinstance(it, Ins):
                out.append(it); continue
            need = 0; dist = 0
            for p in reversed(hist):
                req = need_states(p, it)
                if req > dist: need = max(need, req - dist)
                dist += (int(p.ops[0]) + 1) if p.op == 's_nop' else 1
                if dist >= window: break
            while need > 0:
                k = min(need, 16)
                nop = Ins('s_nop', [k - 1]); out.append(nop); hist.append(nop); need -= k; nins += 1
            out.append(it); hist.append(it)
            if len(hist) > 64: hist = hist[-40:]
        s.items = out
        return nins
    def text(s):
        return '\n'.join(it.text() for it in s.items) + '\n'
    def count(s):
        from collections import Counter
        return Counter(it.kind for it in s.items if isinstance(it, Ins))

def kernel_text(name, asm, vgpr, accum, sgpr=102):
    return (f'.text\n.globl {name}\n.p2align 8\n.type {name},@function\n{name}:\n' + asm.text())
def descriptor(name, vgpr, accum, sgpr=102):
    return (f'.section .rodata,"a"\n.p2align 6\n.amdhsa_kernel {name}\n  .amdhsa_next_free_vgpr {vgpr}\n  .amdhsa_next_free_sgpr {sgpr}\n'
            f'  .amdhsa_accum_offset {accum}\n  .amdhsa_group_segment_fixed_size 0\n  .amdhsa_kernarg_size 88\n  .amdhsa_user_sgpr_count 2\n'
            f'  .amdhsa_user_sgpr_kernarg_segment_ptr 1\n  .amdhsa_system_sgpr_workgroup_id_x 1\n.end_amdhsa_kernel\n')
```

```python
from asmlib import *
from layout import *
from prepass import srd, sel_frag, emit_prep, B_W3, B_X, B_W24, B_END
from collections import defaultdict

LOG2E = 0x3fb8aa3b
SLOT = 16384
TR = 0
KVB = 6 * SLOT
RD = 6 * SLOT + 4096
MAIN_LDS = 163840
SPIN = 1 << 17

class Cfg:
    diag = False
    fine = None
    alias = 1
    touch = 1
    early = 1
    LA1 = 10
    nt1 = 0; nt2 = 0; nt3 = 0; nt4 = 0
    win2 = 0; win3 = 0; flagwait = 0; pub3 = 2; kvq = 500; topup = 1; altlead = 300; head = 0; hdbg = 0; cpf = 1; pnt = 14; help = 1; psc1 = 1; pfat = 72; LK = 40; backlog = 800; win = 4; mix1 = 0; mix3 = 0; mix4 = 0; alt = 0; qslack = 0; kvdelay = 900; LA4 = 3
    kvld_at = 146

def gen_main(cfg=Cfg, ev_in=None):
    A = Asm()
    B = Bufs(cfg.alias)
    ev = {}; ev_in = ev_in or {}
    tail = []
    WS, OUT, XIN = s(8, 4), s(12, 4), s(16, 4)
    b, w, si, sj, sth, sfs, sfast = s(2), s(20), s(21), s(22), s(23), s(24), s(25)
    t_s = [s(26), s(27), s(28), s(29)]
    sW1, sW3, sW2, sW4, sXu, sSTu, sKVw, sKVr, sFl = (s(30 + k) for k in range(9))
    sM0w, sXst, sSTst, sOst, sHst, sFlW1, sFlW2, sxcc, sspin = (s(39 + k) for k in range(9))
    sOld = [s(48 + k) for k in range(4)]; sHld = [s(52 + k) for k in range(4)]
    so, so2 = s(88), s(89)
    POUT, PDBG, PX, PWS = s(56, 2), s(58, 2), s(60, 2), s(62, 2)
    DBG = s(84, 4); sNonce = s(90)
    nstamp = [0]; STAMPS = [s(64 + k) for k in range(20)] + [s(91), s(92), s(95), s(100), s(101), s(3), s(4), s(5), s(6), s(7), s(0), s(1)]
    def stamp(tag=None):
        if tag in (None, 'always'): ev.setdefault('stamps', []).append(A.t)
        if cfg.diag and (tag == cfg.fine or tag == 'always'):
            A.wait_lg(); A.s_memtime(s(98, 2)); A.wait_lg(); A.s_mov_b32(STAMPS[nstamp[0]], s(98)); nstamp[0] += 1
    tid = v(0); L16, L16b, L16c = v(1), v(2), v(3)
    (vXst0, vXst2, vSTst, vSTld, vOst0, vOst1, vOst2, vHst, vOUT0, vOUT2, vFlA, vFlB, vZ, vKVst0, vKVst1, vKVld,
     vTRw, vTRa, vTRb, vKBw, vKBr0, vKBr1, vRDr, vT) = (v(4 + k) for k in range(24))
    vRDw = [None, v(28), v(29), v(30)]
    vrs = v(31)
    SEL = v(32, 4)
    RES = v(36, 20); DUMMY = tid
    sBk = s(94)
    RING = [v(56 + 4 * k, 4) for k in range(4)]
    ACC = v(72, 80)
    TB = v(152, 32); PR = v(184, 64); MISC = v(248, 8)
    def lds_addr(off):
        return ((L16, L16b, L16c)[off >> 16], off & 0xffff)

    A.s_cmp_ge_u32(b, 256); A.s_cbranch_scc1('M_end')
    def after_karg():
        A.s_mov_b32(PX[0], s(40)); A.s_mov_b32(PX[1], s(41))
        srd(A, DBG, PDBG, 256)
        if cfg.diag: A.s_memrealtime(s(96, 2))
        stamp('always')
        L = A.newlabel('nononce')
        A.s_cmp_lg_u32(b, 0); A.s_cbranch_scc1(L)
        A.s_memrealtime(s(98, 2)); A.v_lshlrev_b32(v(10), 8, v(0)); A.wait_lg()
        A.s_or_b32(s(98), s(98), 1); A.v_mov_b32(v(9), s(98))
        A.buffer_store_dword(v(9), v(10), DBG, 0, mods='offen sc1')
        A.label(L)
    def fill():
        t0, t1, F4, Z4 = v(9), v(10), v(28, 4), v(24, 4)
        a0, a1, a2 = s(31), s(32), s(95)
        A.s_and_b32(a0, b, 7); A.s_lshl_b32(a0, a0, 1); A.s_lshr_b32(a1, b, 7); A.s_add_u32(a0, a0, a1)
        A.s_bfe_u32(a1, b, (4 << 16) | 3)
        for k in range(4): A.v_mov_b32(F4[k], -1); A.v_mov_b32(Z4[k], 0)
        A.s_lshl_b32(a2, a1, 4); A.s_add_u32(a2, a2, a0); A.s_mul_i32(a2, a2, KV_SLOT); A.s_add_u32(a2, a2, KVP_OFF)
        A.v_lshlrev_b32(t0, 4, v(0)); A.v_cmp_gt_u32('vcc', KV_SLOT // 16, v(0)); A.v_mov_b32(t1, OOB); A.v_cndmask_b32(t0, t1, t0, 'vcc')
        A.buffer_store_dwordx4(F4, t0, WS, a2, mods='offen sc1')
        A.s_add_u32(a2, a2, KV_SZ)
        A.buffer_store_dwordx4(F4, t0, WS, a2, mods='offen sc1')
        A.v_cmp_gt_u32('vcc', 16, v(0)); A.v_cndmask_b32(t0, t1, t0, 'vcc')
        A.s_lshl_b32(a0, a0, 8); A.s_lshl_b32(a2, a1, 12); A.s_add_u32(a2, a2, a0); A.s_add_u32(a2, a2, FLG_OFF)
        A.s_cmp_lt_u32(a1, 8); A.s_cselect_b32(a2, a2, OOB)
        A.buffer_store_dwordx4(Z4, t0, WS, a2, mods='offen sc1')
        A.buffer_load_dword(v(255), Z4[0], DBG, 0, mods='offen sc1')
        if cfg.cpf:
            Lp = A.newlabel('pc')
            A.s_getpc_b64(s(98, 2)); A.label(Lp)
            A.s_lshr_b32(a0, b, 3); A.s_lshl_b32(a0, a0, 11)
            A.v_and_b32(t0, 15, v(0)); A.v_lshl_add_u32(t0, t0, 7, a0)
            A.raw(f'\tv_add_u32 {t0}, PP_done-{Lp}, {t0}'); A.raw(f'\tv_min_u32 {t0}, M_codeend-{Lp}-4, {t0}')
            A.v_mov_b32(v(253), s(99)); A.v_add_co_u32(v(252), 'vcc', s(98), t0); A.v_addc_co_u32(v(253), 'vcc', 0, v(253), 'vcc')
            A.global_load_dword(v(254), v(252, 2), 'off')
    def pstamp(k):
        if cfg.diag and cfg.fine == 'pp':
            A.wait_lg(); A.s_memtime(s(98, 2)); A.wait_lg(); A.s_mov_b32(STAMPS[k], s(98))
    if cfg.diag and cfg.fine == 'pp': A.s_mov_b32(STAMPS[1], 0); A.s_mov_b32(STAMPS[2], 0)
    emit_prep(A, fill, after_karg, ' sc1' if cfg.psc1 else '', pstamp, cfg.help, cfg.pnt)
    if cfg.diag and cfg.fine == 'pp': nstamp[0] = 3
    A.label('PP_done')
    A.t = 0; A.mfree = A.port = A.link = A.prev = A.ldsfree = 0; A.fly = []; A.trace = []
    stamp(); stamp('pp')
    lane, t0, t1, t2, t3, hf, l15, q = (v(152 + k) for k in range(8))
    m, g, h, r = (v(160 + k) for k in range(4))
    vN = v(255); vPF0, vPF1 = RES[0], RES[1]; PFD = RES[2:4]
    Ln = A.newlabel('nonce'); Lo = A.newlabel('nonceok')
    A.s_getreg_b32(sxcc, 'hwreg(HW_REG_XCC_ID, 0, 4)')
    A.v_mov_b32(t3, OOB); A.v_cmp_eq_u32('vcc', 0, tid); A.v_cndmask_b32(t1, t3, tid, 'vcc'); A.v_mov_b32(t0, 0)
    A.s_mov_b32(sspin, 0)
    A.I('s_waitcnt', 'vmcnt(0)')
    stamp('pp')
    A.label(Ln)
    A.v_readfirstlane_b32(sNonce, vN); A.s_cmp_lg_u32(sNonce, 0); A.s_cbranch_scc1(Lo)
    A.s_add_u32(sspin, sspin, 1); A.s_cmp_gt_u32(sspin, SPIN); A.s_cbranch_scc1(Lo)
    A.buffer_load_dword(vN, t0, DBG, 0, mods='offen sc1'); A.wait_vm()
    A.s_branch(Ln)
    A.label(Lo)
    A.s_not_b32(t_s[0], sNonce); A.s_andn2_b32(t_s[0], t_s[0], 15); A.s_or_b32(sxcc, sxcc, t_s[0])
    A.v_mov_b32(PFD[0], sNonce); A.v_mov_b32(PFD[1], sxcc)
    A.s_lshl_b32(t_s[0], b, 7); A.s_add_u32(t_s[0], t_s[0], PF_OFF)
    A.s_barrier()
    A.buffer_store_dwordx2(PFD, t1, WS, t_s[0], mods='offen sc1')
    A.s_mov_b32(sfast, 0)
    stamp(); stamp('pp')
    A.v_and_b32(lane, 63, tid)
    A.v_lshlrev_b32(L16, 4, lane)
    A.s_and_b32(t_s[0], b, 7); A.s_lshr_b32(t_s[1], b, 3); A.s_and_b32(sj, t_s[1], 15); A.s_lshr_b32(t_s[1], t_s[1], 4)
    A.s_lshl_b32(si, t_s[0], 1); A.s_add_u32(si, si, t_s[1])
    A.s_lshr_b32(sth, sj, 3); A.s_and_b32(sfs, sj, 7)
    A.s_lshl_b32(sM0w, w, 12)
    A.s_mul_i32(sW1, sj, W1_J); A.s_add_u32(sW1, sW1, sM0w)
    if W1_OFF: A.s_add_u32(sW1, sW1, W1_OFF)
    A.s_lshl_b32(t_s[0], si, 2); A.s_add_u32(t_s[0], t_s[0], w); A.s_mul_i32(sXu, t_s[0], 40960); A.s_lshl_b32(sSTu, t_s[0], 11)

    cache = {}
    def setreg(reg, base, const):
        key = (str(base), const)
        if cache.get(str(reg)) != key:
            A.s_add_u32(reg, base, const); cache[str(reg)] = key
    def dma_chunk(base, c, slot):
        res = {}
        def mk(k):
            def f():
                setreg(so2, base, c * SLOT); setreg('m0', sM0w, slot * SLOT)
                res['tag'] = A.buffer_load_dwordx4(L16, WS, so2, mods=f'offen offset:{k*1024} lds', k='m2')
            return f
        return [mk(k) for k in range(4)], res
    XF = [a(4 * k, 4) for k in range(40)]
    def xloads(base_const, kind='hit'):
        tags = {}
        def mk(k):
            def f():
                setreg(so, sXu, base_const + (k >> 2) * 4096)
                tags[k] = A.buffer_load_dwordx4(XF[k], L16, WS, so, mods=f'offen offset:{(k & 3)*1024} sc1', k=kind)
            return f
        return [mk(k) for k in range(40)], tags
    srd(A, OUT, POUT, X_SZ); srd(A, XIN, PX, X_SZ)
    A.v_add_u32(L16b, 0x10000, L16); A.v_add_u32(L16c, 0x20000, L16)
    A.v_lshrrev_b32(hf, 5, lane); A.v_and_b32(l15, 15, lane); A.v_lshrrev_b32(q, 4, lane)
    A.v_and_b32(m, 31, lane); A.v_lshrrev_b32(g, 3, m); A.v_bfe_u32(h, m, 2, 1); A.v_and_b32(r, 3, m)
    A.s_mul_i32(sW3, sj, W3_J); A.s_add_u32(sW3, sW3, sM0w); A.s_add_u32(sW3, sW3, W3_OFF)
    A.s_mul_i32(t_s[0], sfs, 20); A.s_mul_i32(t_s[1], w, 5); A.s_add_u32(t_s[0], t_s[0], t_s[1]); A.s_mul_i32(sW2, t_s[0], 5120); A.s_add_u32(sW2, sW2, W2_OFF)
    A.s_mul_i32(t_s[0], sfs, 48); A.s_mul_i32(t_s[1], w, 12); A.s_add_u32(t_s[0], t_s[0], t_s[1]); A.s_mul_i32(sW4, t_s[0], 5120); A.s_add_u32(sW4, sW4, W4_OFF)
    A.s_mul_i32(sKVr, sj, 16 * KV_SLOT); A.s_mul_i32(t_s[0], si, KV_SLOT); A.s_add_u32(sKVw, sKVr, t_s[0])
    A.s_lshl_b32(sFl, si, 8)
    A.s_lshl_b32(t_s[0], w, 4); A.s_add_u32(t_s[0], t_s[0], sj); A.s_lshl_b32(t_s[0], t_s[0], 2); A.s_add_u32(sFlW1, sFl, t_s[0])
    A.s_lshl_b32(t_s[0], sth, 2); A.s_add_u32(t_s[0], t_s[0], w); A.s_lshl_b32(t_s[0], t_s[0], 3); A.s_add_u32(t_s[0], t_s[0], sfs)
    A.s_lshl_b32(t_s[0], t_s[0], 2); A.s_add_u32(sFlW2, sFl, t_s[0])
    A.s_lshl_b32(t_s[0], si, 2); A.s_lshl_b32(t_s[1], sth, 1); A.s_add_u32(t_s[0], t_s[0], t_s[1]); A.s_lshr_b32(t_s[1], w, 1); A.s_add_u32(t_s[0], t_s[0], t_s[1])
    A.s_mul_i32(sXst, t_s[0], 40960); A.s_mul_i32(t_s[1], sfs, 5120); A.s_add_u32(sXst, sXst, t_s[1])
    A.s_lshl_b32(sSTst, t_s[0], 11); A.s_and_b32(t_s[1], w, 1); A.s_lshl_b32(t_s[1], t_s[1], 10); A.s_add_u32(sSTst, sSTst, t_s[1])
    A.s_lshl_b32(t_s[1], sfs, 7); A.s_add_u32(sSTst, sSTst, t_s[1])
    A.s_mul_i32(sOst, si, 8 * B.o_tile)
    A.s_mul_i32(sHst, si, 393216); A.s_mul_i32(t_s[1], sj, 3072); A.s_add_u32(sHst, sHst, t_s[1])
    for tau in range(4):
        A.s_add_u32(t_s[0], w, tau); A.s_and_b32(t_s[0], t_s[0], 3)
        if tau:
            A.s_mul_i32(t_s[1], t_s[0], 15360); A.s_add_u32(t_s[1], t_s[1], RD + (3 - tau) * 5120); A.v_add_u32(vRDw[tau], t_s[1], L16)
        A.s_lshl_b32(t_s[1], sth, 2); A.s_add_u32(t_s[0], t_s[0], t_s[1])
        A.s_mul_i32(t_s[1], t_s[0], B.o_tile); A.s_add_u32(sOld[tau], t_s[1], sOst); A.s_mul_i32(t_s[1], w, 5120); A.s_add_u32(sOld[tau], sOld[tau], t_s[1])
        A.s_mul_i32(t_s[1], t_s[0], 49152); A.s_mul_i32(t_s[2], si, 393216); A.s_add_u32(sHld[tau], t_s[1], t_s[2]); A.s_mul_i32(t_s[1], w, 12288); A.s_add_u32(sHld[tau], sHld[tau], t_s[1])
    A.s_mul_i32(t_s[1], w, 15360); A.s_add_u32(t_s[1], t_s[1], RD); A.v_add_u32(vRDr, t_s[1], L16)
    A.s_and_b32(t_s[0], w, 1); A.s_lshl_b32(t_s[0], t_s[0], 4); A.v_add_u32(t3, t_s[0], l15)
    A.v_lshrrev_b32(t0, 1, q); A.v_and_b32(t1, 1, q)
    A.v_lshl_add_u32(t2, t1, 5, t3); A.v_lshlrev_b32(t2, 4, t2); A.v_lshl_add_u32(vXst0, t0, 10, t2)
    A.v_lshl_add_u32(t2, t0, 5, t3); A.v_lshlrev_b32(t2, 4, t2); A.v_lshl_add_u32(t2, t1, 3, t2); A.v_add_u32(vXst2, 4096, t2)
    A.v_lshlrev_b32(t2, 3, l15); A.v_lshl_add_u32(vSTst, hf, 2, t2)
    A.v_lshrrev_b32(t0, 4, m); A.v_lshl_add_u32(t2, t0, 10, t2); A.v_lshl_add_u32(vSTld, hf, 9, t2)
    A.s_lshl_b32(t_s[0], w, 1); A.v_lshrrev_b32(t0, 4, m); A.v_add_u32(t0, t_s[0], t0)
    A.s_mov_b32(t_s[1], 49152); A.v_mul_lo_u32(t1, t0, t_s[1]); A.v_lshl_add_u32(t1, l15, 4, t1); A.v_lshl_add_u32(vHst, hf, 8, t1)
    A.v_mul_u32_u24(t0, B.o_tile, t0); A.v_lshl_add_u32(t0, l15, 4, t0)
    A.s_mul_i32(t_s[0], sj, 5)
    for dst_, add in ((vOst0, 0), (vOst1, 1)):
        A.v_lshl_add_u32(t1, hf, 1, t_s[0])
        if add: A.v_add_u32(t1, 1, t1)
        A.v_lshl_add_u32(dst_, t1, 8, t0)
    A.s_add_u32(t_s[0], t_s[0], 4); A.s_lshl_b32(t_s[0], t_s[0], 8); A.v_add_u32(t1, t_s[0], t0); A.v_lshl_add_u32(vOst2, hf, 3, t1)
    A.s_lshl_b32(t_s[0], si, 7); A.s_lshl_b32(t_s[1], sth, 6); A.s_add_u32(t_s[0], t_s[0], t_s[1]); A.s_lshl_b32(t_s[1], w, 4); A.s_add_u32(t_s[0], t_s[0], t_s[1])
    A.v_add_u32(t0, t_s[0], l15); A.v_mul_u32_u24(t0, 1280, t0); A.s_mul_i32(t_s[0], sfs, 160); A.v_add_u32(t0, t_s[0], t0)
    A.v_lshl_add_u32(vOUT0, q, 4, t0); A.v_lshl_add_u32(t0, q, 3, t0); A.v_add_u32(vOUT2, 128, t0)
    A.v_bfe_u32(t0, lane, 2, 1); A.s_lshl_b32(t_s[0], sth, 1); A.v_add_u32(t0, t_s[0], t0); A.v_lshlrev_b32(t0, 4, t0)
    A.s_lshl_b32(t_s[0], w, 2); A.v_add3_u32(t0, t0, r, t_s[0]); A.v_lshlrev_b32(vFlA, 2, t0)
    A.s_lshl_b32(t_s[0], w, 4); A.v_add_u32(t0, t_s[0], l15); A.v_lshlrev_b32(vFlB, 2, t0)
    A.v_mov_b32(t3, OOB)
    A.v_cmp_eq_u32('vcc', 0, lane); A.v_cndmask_b32(vZ, t3, lane, 'vcc')
    A.s_and_b32(t_s[0], w, 1); A.s_lshl_b32(t_s[0], t_s[0], 4); A.v_add_u32(t0, t_s[0], l15)
    A.s_lshr_b32(t_s[1], w, 1); A.s_mul_i32(t_s[2], t_s[1], 21); A.v_add_u32(t1, t_s[2], t0); A.v_mul_u32_u24(t1, 80, t1)
    A.v_cmp_gt_u32('vcc', 21, t0); A.v_cndmask_b32(t1, t3, t1, 'vcc')
    A.v_lshl_add_u32(vKVst0, q, 4, t1)
    A.v_lshl_add_u32(t1, q, 3, t1); A.v_add_u32(t1, 64, t1); A.v_cmp_gt_u32('vcc', 2, q); A.v_cndmask_b32(vKVst1, t3, t1, 'vcc')
    A.v_lshlrev_b32(t0, 4, tid); A.v_add_u32(vKBw, KVB, t0); A.v_cmp_gt_u32('vcc', 210, tid); A.v_cndmask_b32(vKVld, t3, t0, 'vcc')
    A.s_lshl_b32(t_s[0], w, 5); A.v_lshl_add_u32(t0, hf, 7, m); A.v_add_u32(t0, t_s[0], t0); A.v_mul_u32_u24(vTRw, 160, t0)
    A.s_lshl_b32(t_s[0], t_s[1], 7); A.v_lshrrev_b32(t0, 2, lane); A.v_add_u32(t0, t_s[0], t0)
    A.v_mul_u32_u24(t0, 160, t0); A.v_lshl_add_u32(vTRa, r, 3, t0)
    A.s_and_b32(t_s[0], w, 1); A.s_lshl_b32(t_s[0], t_s[0], 5); A.s_add_u32(t_s[0], t_s[0], 80); A.v_add_u32(vTRb, t_s[0], vTRa)
    A.v_lshl_add_u32(t0, g, 2, r); A.v_mul_u32_u24(t1, 21, hf); A.v_add_u32(t1, t1, t0); A.v_mul_u32_u24(t1, 80, t1); A.v_add_u32(t1, KVB, t1)
    A.v_mov_b32(t2, KVB + 3360)
    A.v_cmp_eq_u32('vcc', h, hf); A.v_cndmask_b32(vKBr0, t2, t1, 'vcc')
    A.v_add_u32(t1, 1280, t1); A.v_cndmask_b32(t1, t2, t1, 'vcc'); A.v_cmp_gt_u32('vcc', 5, t0); A.v_cndmask_b32(vKBr1, t2, t1, 'vcc')
    A.v_mov_b32(t2, -100 & 0xffffffff); A.v_cmp_eq_u32('vcc', h, hf); A.v_cndmask_b32(t0, t2, t0, 'vcc')
    sel_frag(A, SEL, t0, t1, t2)
    A.s_lshr_b32(t_s[0], sj, 1); A.s_and_b32(t_s[1], sj, 1); A.s_lshl_b32(t_s[1], t_s[1], 3); A.s_add_u32(t_s[0], t_s[0], t_s[1])
    A.v_and_b32(t0, 7, lane); A.v_min_u32(t1, 2, t0); A.v_lshl_add_u32(t1, t1, 4, t_s[0])
    A.s_lshl_b32(t_s[0], si, 2); A.s_add_u32(t_s[0], t_s[0], B_X); A.v_and_b32(t2, 3, t0); A.v_add_u32(t2, t_s[0], t2)
    A.v_cmp_gt_u32('vcc', 4, t0); A.v_cndmask_b32(t1, t2, t1, 'vcc'); A.v_lshlrev_b32(vPF0, 7, t1)
    A.s_bfe_u32(t_s[0], b, (1 << 16) | 7); A.s_lshl_b32(t_s[0], t_s[0], 7); A.s_and_b32(t_s[1], b, 7); A.s_add_u32(t_s[0], t_s[0], t_s[1])
    A.v_lshl_add_u32(t0, l15, 3, t_s[0])
    A.v_and_b32(t1, 7, lane); A.v_bfe_u32(t2, lane, 3, 1); A.v_lshl_add_u32(t1, t2, 7, t1); A.s_lshl_b32(t_s[0], sj, 3); A.v_add_u32(t1, t_s[0], t1)
    A.v_mov_b32(t2, B_W24); A.v_add3_u32(t2, t2, lane, -16); A.v_min_u32(t2, B_END - 1, t2)
    A.s_mul_i32(t_s[0], sj, 3); A.v_min_u32(vN2 := v(165), 2, r); A.v_add_u32(vN2, t_s[0], vN2)
    A.v_lshrrev_b32(v(166), 1, vN2); A.v_mad_u32_u24(v(166), h, 24, v(166))
    A.v_and_b32(vN2, 1, vN2); A.v_lshlrev_b32(vN2, 3, vN2); A.v_and_b32(v(167), 7, v(166)); A.v_add_u32(vN2, vN2, v(167))
    A.v_lshrrev_b32(v(166), 3, v(166)); A.v_lshl_add_u32(vN2, v(166), 4, vN2); A.v_add_u32(vN2, B_W3, vN2)
    A.s_cmp_eq_u32(w, 0); A.s_cselect_b64('vcc', -1, 0); A.v_cndmask_b32(t2, t2, t1, 'vcc')
    A.s_cmp_eq_u32(w, 3); A.s_cselect_b64('vcc', -1, 0); A.v_cndmask_b32(t2, t2, vN2, 'vcc')
    A.v_cmp_gt_u32('vcc', 16, lane); A.v_cndmask_b32(t2, t2, t0, 'vcc'); A.v_lshlrev_b32(vPF1, 7, t2)
    def pf_bad():
        A.v_xor_b32(MISC[5], sxcc, PFD[1]); A.v_lshrrev_b32(MISC[5], 4, MISC[5]); A.v_xor_b32(MISC[6], sNonce, PFD[0]); A.v_or_b32(MISC[5], MISC[5], MISC[6])
        A.v_cmp_ne_u32('vcc', 0, MISC[5])
    def pf_poll(va):
        L = A.newlabel('pfpoll'); Lx = A.newlabel('pfx')
        A.s_mov_b32(t_s[3], PF_OFF); A.s_mov_b32(sspin, 0)
        A.label(L)
        A.buffer_load_dwordx2(PFD, va, WS, t_s[3], mods='offen sc1')
        A.s_add_u32(sspin, sspin, 1); A.s_cmp_gt_u32(sspin, SPIN); A.s_cbranch_scc1(Lx)
        A.wait_vm(); pf_bad(); A.s_cbranch_vccnz(L)
        A.label(Lx); A.I('s_waitcnt', 'vmcnt(0)')
    stamp('pp')
    pf_poll(vPF0)
    stamp(); stamp('pp')

    class Bulk:
        def __init__(q): q.items = []; q.open = set(); q.quiet = None; q.altc = 0
        def add(q, name, fs, gate, kind, crit=False):
            for f in fs: q.items.append((name, f, gate, kind, crit))
        def gate(q, g): q.open.add(g)
        def ok(q, it): return it[2] is None or it[2] in q.open
        def has(q, name): return any(x[0] == name for x in q.items)
        def predict(q, kind):
            pc, lc, lat = A.COST[kind]
            d = max(A.port, A.t) + lat
            if lc: d = max(d, max(A.link, A.t) + lat)
            return max(d, A.prev)
        def pick(q):
            first = next((k for k, it in enumerate(q.items) if q.ok(it)), None)
            if first is None: return None
            it = q.items[first]
            if it[3] == 'm2' and cfg.alt and A.link - A.t > cfg.altlead:
                k2 = next((k for k, x in enumerate(q.items) if q.ok(x) and x[3] in ('m4', 'hit')), None)
                q.altc += 1
                if k2 is not None and q.altc % cfg.alt == 0: first = k2
            it = q.items[first]
            if not it[4] and q.quiet is not None and q.predict(it[3]) > q.quiet: return None
            return first
        def emit(q, k):
            it = q.items.pop(k); A.label_ = it[0]; it[1](); A.label_ = None
        def pump(q, force=0, maxn=1):
            n = 0
            while n < max(force, maxn):
                if n >= force and A.inflight() >= A.NCAP - cfg.head: return
                k = q.pick()
                if k is None: return
                q.emit(k); n += 1
        def flush(q, name):
            while q.has(name):
                last = max(k for k, x in enumerate(q.items) if x[0] == name)
                k = next(i for i, x in enumerate(q.items[:last + 1]) if x[0] == name or (q.ok(x) and x[4]))
                assert q.ok(q.items[k]), ('gate closed', q.items[k][0], q.items[k][2])
                q.emit(k)
        def need(q, name, get):
            q.flush(name)
            tag = get()
            if tag not in A.vm: return
            if A.done[tag] > A.t + 16:
                while sum(1 for x in A.vm[A.vm.index(tag) + 1:] if x in A.bigs) < A.NCAP - cfg.topup:
                    k = q.pick()
                    if k is None: break
                    q.emit(k)
            A.wait_vm(tag)
        def merge_front(q, crit, keyed):
            pend = [(keyed(it[0]), n, it) for n, it in enumerate(q.items)]
            withk = [(k, 1, n, it) for k, n, it in pend if k is not None] + [(k, 0, n, it) for n, (k, it) in enumerate(crit)]
            withk.sort(key=lambda x: x[:3])
            q.items = [x[3] for x in withk] + [it for k, n, it in pend if k is None]
        def quiet_for(q, name):
            q.quiet = ev_in.get(name, 1 << 60) + cfg.qslack
        def mark(q, name):
            ev[name] = A.t; q.quiet = None
    Q = Bulk()
    sTt = s(93)
    def poll(vaddr, sbase, const, need, dst=None):
        dst = dst or MISC[7]
        L = A.newlabel('poll'); Lx = A.newlabel('pollx')
        A.s_add_u32(t_s[3], sbase, const); A.s_mov_b32(sspin, 0)
        A.label(L)
        A.buffer_load_dword(dst, vaddr, WS, t_s[3], mods='offen sc1')
        A.s_add_u32(sspin, sspin, 1); A.s_cmp_gt_u32(sspin, SPIN); A.s_cbranch_scc1(Lx)
        A.wait_vm()
        A.v_cmp_gt_u32('vcc', need, dst)
        A.s_cbranch_vccnz(L)
        A.label(Lx)
        A.I('s_waitcnt', 'vmcnt(0)')
        A.t += 300
    def check_issue(vaddr, sbase, const):
        A.s_add_u32(t_s[3], sbase, const)
        return A.buffer_load_dword(MISC[7], vaddr, WS, t_s[3], mods='offen sc1')
    def check_wait(tag, vaddr, sbase, const, need):
        Lp = A.newlabel('chkpoll'); Lb = A.newlabel('chkok')
        A.wait_vm(tag)
        A.v_cmp_gt_u32('vcc', need, MISC[7]); A.s_cbranch_vccnz(Lp)
        A.label(Lb)
        def slow():
            A.label(Lp); poll(vaddr, sbase, const, need); A.s_branch(Lb)
        tail.append(slow)
    def publish(tag, sidx, const, value):
        Ls = A.newlabel('slow'); Lb = A.newlabel('back')
        A.v_mov_b32(MISC[6], value); A.s_add_u32(t_s[3], sidx, const)
        A.wait_vm(tag)
        A.s_cmp_eq_u32(sfast, 0); A.s_cbranch_scc1(Ls)
        A.buffer_store_dword(MISC[6], vZ, WS, t_s[3], mods='offen')
        A.label(Lb)
        def slow():
            A.label(Ls)
            A.I('buffer_wbl2', mods='sc1'); A.I('s_waitcnt', 'vmcnt(0)')
            A.buffer_store_dword(MISC[6], vZ, WS, t_s[3], mods='offen sc1')
            A.s_branch(Lb)
        tail.append(slow)
    def sync(tag, sidx, const, vpoll):
        Q.pump(force=cfg.win)
        publish(tag, sidx, const, 1)
        if not cfg.win2:
            poll(vpoll, sFl, const, 1); return
        t0_ = A.t
        Q.pump(force=cfg.win2)
        if A.t - t0_ < cfg.flagwait:
            n = (cfg.flagwait - (A.t - t0_)) // 64
            if n: A.I('s_sleep', n); A.t += 64 * n
        tg = check_issue(vpoll, sFl, const)
        Q.pump(force=cfg.win3)
        check_wait(tg, vpoll, sFl, const, 1)
    def touch(vaddr, sbase, const, imm=0):
        def f():
            A.s_add_u32(sTt, sbase, const)
            A.buffer_load_dword(DUMMY, vaddr, WS, sTt, mods=f'offen offset:{imm} sc1', k='touch')
        return f
    def t_O(l): return [touch(x, sOst, B.o(l)) for x in (vOst0, vOst1, vOst2)] if cfg.touch else []
    def t_X(xc, stc): return [touch(vXst0, sXst, xc), touch(vXst0, sXst, xc, 2048), touch(vXst2, sXst, xc), touch(vSTst, sSTst, stc)] if cfg.touch else []
    def t_H(l, p): return [touch(vHst, sHst, B.h(l), p * 1024 + c * 512) for c in range(2)] if cfg.touch else []
    def t_F(va, l, kind): return [touch(va, sFl, flg(l, kind))] if cfg.touch else []
    def spread(sched, items, start, end=None, per=None):
        n = len(items)
        for k, f in enumerate(items):
            idx = start + (k // per if per else (k * (end - start)) // n)
            sched[idx].append(f)
    def V(op, *ops, **kw): return lambda: A.I(op, *ops, **kw)
    def run_valu(fs, every=5):
        for k, f in enumerate(fs):
            f()
            if k % every == every - 1: Q.pump()
    def st_loads(ST, const):
        tag = {}
        def f():
            A.s_add_u32(t_s[2], sSTu, const)
            for k in range(4): tag[0] = A.buffer_load_dwordx2(ST[2 * k: 2 * k + 2], vSTld, WS, t_s[2], mods=f'offen offset:{128*k} sc1', k='touch')
        return f, tag
    def rstd_stream(ST, mode):
        S_, Q_, S2, Q2 = ST[0], ST[1], ST[2], ST[3]
        o = [V('v_add_f32', S_, ST[0], ST[2]), V('v_add_f32', Q_, ST[1], ST[3]), V('v_add_f32', ST[4], ST[4], ST[6]), V('v_add_f32', ST[5], ST[5], ST[7]),
             V('v_add_f32', S_, S_, ST[4]), V('v_add_f32', Q_, Q_, ST[5]), V('v_mov_b32', S2, S_), V('v_mov_b32', Q2, Q_),
             V('v_permlane32_swap_b32', S_, S2), V('v_permlane32_swap_b32', Q_, Q2), V('v_add_f32', S_, S_, S2), V('v_add_f32', Q_, Q_, Q2),
             V('v_mul_f32', S_, 0x3acccccd, S_), V('v_mul_f32', Q_, 0x3acccccd, Q_), V('v_fma_f32', Q_, Neg(S_), S_, Q_),
             V('v_max_f32', Q_, 0, Q_), V('v_add_f32', Q_, 0x3727c5ac, Q_)]
        if mode == 'k': o += [V('v_rsq_f32', vrs, Q_), V('v_mul_f32', MISC[0], LOG2E, vrs)]
        else: o += [V('v_rcp_f32', vrs, Q_)]
        return o
    def softmax_stream(P, T, dest):
        sc, mx, mn, sp, sn = MISC[0], MISC[1], MISC[2], MISC[3], MISC[4]
        o = [V('v_max3_f32', mx, P[0], P[1], P[2]), V('v_min3_f32', mn, P[0], P[1], P[2])]
        for k in range(3, 19, 2): o += [V('v_max3_f32', mx, mx, P[k], P[k + 1]), V('v_min3_f32', mn, mn, P[k], P[k + 1])]
        o += [V('v_max_f32', mx, mx, P[19]), V('v_min_f32', mn, mn, P[19]), V('v_mul_f32', mx, sc, mx), V('v_mul_f32', mn, sc, mn)]
        for k in range(20):
            o += [V('v_fma_f32', T[k], P[k], sc, Neg(mx)), V('v_fma_f32', P[k], Neg(P[k]), sc, mn)]
            if k >= 1: o += [V('v_exp_f32', T[k - 1], T[k - 1]), V('v_exp_f32', P[k - 1], P[k - 1])]
            if k == 3: o += [V('v_add_f32', sp, T[0], T[1]), V('v_add_f32', sn, P[0], P[1])]
            if k > 3: o += [V('v_add_f32', sp, sp, T[k - 2]), V('v_add_f32', sn, sn, P[k - 2])]
        o += [V('v_exp_f32', T[19], T[19]), V('v_exp_f32', P[19], P[19]), V('v_add_f32', sp, sp, T[18]), V('v_add_f32', sn, sn, P[18]),
              V('v_add_f32', sp, sp, T[19]), V('v_add_f32', sn, sn, P[19]), V('v_rcp_f32', sp, sp), V('v_rcp_f32', sn, sn)]
        for src, rc, base in ((T, sp, 0), (P, sn, 20)):
            for k in range(0, 20, 2):
                o += [V('v_mul_f32', src[k], rc, src[k]), V('v_mul_f32', src[k + 1], rc, src[k + 1]), V('v_cvt_pk_bf16_f32', dest(base + k), src[k], src[k + 1])]
        return o

    class Stream:
        def __init__(z, name, nchunk, slot, tagd, covered, onbar):
            z.name, z.nchunk, z.slot, z.tagd, z.cov, z.onbar = name, nchunk, slot, tagd, covered, onbar
            z.tags = {}
        def off(z, k): return z.slot[k >> 4] * SLOT + (k & 15) * 1024
        def key(z, name):
            if name.startswith(z.name): return 16 * int(name[len(z.name):]) - cfg.LK
        def barrier(z, idx, need=None):
            c = z.cov
            if need is not None and need > c:
                for cc in range(c + 1, need + 1): Q.flush(f'{z.name}{cc}')
                c = need
            while c + 1 < z.nchunk and 'tag' in z.tagd.get(c + 1, {}) and not Q.has(f'{z.name}{c+1}') and A.done[z.tagd[c + 1]['tag']] <= A.t + 100: c += 1
            if c > z.cov: Q.need(f'{z.name}{c}', lambda: z.tagd[c]['tag'])
            z.cov = c
            A.s_barrier(); z.onbar(idx)
        def rd(z, k, idx):
            if (k >> 4) > z.cov: z.barrier(idx, k >> 4)
            ad, off = lds_addr(z.off(k)); z.tags[k] = A.ds_read_b128(RING[k % 4], ad, mods=f'offset:{off}')
        def run(z, lo, hi, mk, pre, post, total):
            for idx in range(lo, hi):
                for f in pre.get(idx, []): f()
                if idx + 3 < total and (idx + 3) not in z.tags: z.rd(idx + 3, idx)
                A.wait_lg(z.tags[idx])
                mk(idx)
                for f in post.get(idx, []): f()
                Q.pump()

    W2F = [a(160 + 4 * k, 4) for k in range(24)] + [a(80, 4)]
    OF = [a(4 * k, 4) for k in range(20)]
    W4F = [v(152 + 4 * k, 4) for k in range(24)] + [a(160 + 4 * k, 4) for k in range(24)] + [a(4 * k, 4) for k in range(12)]
    HF = [a(48 + 4 * k, 4) for k in range(28)]
    p4order = [3 * jj + p for p in range(3) for jj in range(4)]
    w3slot = {0: 3, 1: 4, 2: 5, 3: 0, 4: 1, 5: 2, 6: 6, 7: 7, 8: 8, 9: 9, 10: 3, 11: 4, 12: 5, 13: 0, 14: 1}
    w1slot = {c: c for c in range(10)}
    w3tag = {}; w1tags = {0: {}, 1: {}}
    def q_w3(l, c, gate):
        fl, res = dma_chunk(sW3, c, w3slot[c]); w3tag[c] = res; Q.add(f'W3_{l}_{c}', fl, gate, 'm2')
    def q_w1(l, c, gate):
        fl, res = dma_chunk(sW1, c, c); w1tags[l][c] = res; Q.add(f'W1_{l}_{c}', fl, gate, 'm2')
    def wloads(frags, sbase, order):
        tags = {}
        def mk(ri, mi):
            def f():
                setreg(sBk, sbase, (mi >> 2) * 4096)
                tags[ri] = A.buffer_load_dwordx4(frags[ri], L16, WS, sBk, mods=f'offen offset:{(mi & 3)*1024}', k='m4')
            return f
        return [mk(ri, mi) for ri, mi in order], tags
    wt = {}
    def enqueue(l):
        for c in (range(10) if l == 0 else (8, 9)): q_w1(l, c, None if l == 0 else 'RD4')
        Q.add(f'tO{l}', t_O(l), None, 'touch')
        w2l, wt['w2'] = wloads(W2F, sW2, [(k, k) for k in range(25)])
        Q.add(f'W2_{l}', w2l[:24], None if l else 'prep', 'm4'); Q.add(f'W2_{l}', w2l[24:], f't3done{l}', 'm4')
        if l == 0: Q.add('tH0', t_H(0, 0) + t_H(0, 1) + t_H(0, 2), 'B2_0', 'touch')
        Q.add(f'tX{l}', t_X(B.xb(l), B.stb(l)) + t_F(vFlA, l, K_O), f't3done{l}', 'touch')
        for c in (0, 1): q_w3(l, c, f'B1_{l}')
        q_w3(l, 2, f'B2_{l}')
        for c in (3, 4, 5): q_w3(l, c, f'B3_{l}')
        Q.add(f'tH{l}a', t_H(l, 0) + t_F(vFlB, l, K_XB), f'p2s{l}', 'touch')
        for c in (6, 7, 8, 9): q_w3(l, c, f'RD2_{l}')
        Q.add(f'tH{l}b', t_H(l, 1) + t_H(l, 2) + t_F(vFlA, l, K_H), f'p3f{l}_14', 'touch')
        for c in range(10, 15): q_w3(l, c, f'p3f{l}_{c}')
        order = [(5 * n + ft, 5 * p4order[n] + ft) for n in range(12) for ft in range(5)]
        w4l, wt['w4'] = wloads(W4F, sW4, order)
        for k, f in enumerate(w4l): Q.add(f'W4_{l}_{k // 5}', [f], f'Ost{l}' if k < 24 else f'p2g{l}' if k < 48 else f'xfree{l}', 'm4')
        if l == 0:
            Q.add('tX1', t_X(B.xa(1), B.sta(1)) + t_F(vFlB, 1, K_XA), 'p4m', 'touch')
            for c in range(8): q_w1(1, c, 'p4s' if c < 6 else 'RD4')

    def p1(l):
        A.cmt(f'======== P1 layer {l}')
        acc = [ACC[16 * t: 16 * t + 16] for t in range(4)]
        enqueue(l)
        xl, xt = xloads(B.xa(l), 'hit' if l else 'm4')
        ST = PR[0:8]
        ldst, sttag = st_loads(ST, B.sta(l))
        pre, post = defaultdict(list), defaultdict(list)
        xid = {}
        def onbar(idx):
            if idx >= 80: Q.gate(f'B1_{l}')
        Z = Stream(f'W1_{l}_', 10, w1slot, w1tags[l], -1, onbar)
        Q.merge_front([(2 * s_, (f'X{s_}', xl[s_], None, 'hit', True)) for s_ in range(40)] + [(60, ('ST', ldst, None, 'touch', True))], Z.key)
        Q.pump(maxn=A.NCAP)
        def mf(idx):
            if idx < 80: t, s_ = idx & 1, idx >> 1
            else: t, s_ = divmod(idx - 80, 40); t += 2
            if idx < 80 and t == 0: Q.need(f'X{s_}', lambda: xt[s_])
            A.v_mfma_f32_32x32x16_bf16(acc[t], RING[idx % 4], XF[s_], acc[t] if s_ else 0)
        for k in range(3): Z.rd(k, 0)
        if l == 0:
            def pf_issue():
                A.s_mov_b32(t_s[3], PF_OFF); xid['tag'] = A.buffer_load_dwordx2(PFD, vPF1, WS, t_s[3], mods='offen sc1', k='touch')
            def pf_check():
                Lp = A.newlabel('pf1poll'); Lb = A.newlabel('pf1ok')
                A.wait_vm(xid['tag']); pf_bad(); A.s_cbranch_vccnz(Lp); A.label(Lb)
                def slow(): A.label(Lp); pf_poll(vPF1); A.s_branch(Lb)
                tail.append(slow)
                A.v_cmp_ne_u32('vcc', sxcc, PFD[1]); A.s_and_b32(t_s[3], 'vcc_lo', 0xffff); A.s_cmp_eq_u32(t_s[3], 0); A.s_cselect_b32(sfast, 1, 0)
            post[cfg.pfat - 24].append(pf_issue)
            pre[cfg.pfat].append(lambda: (pf_check(), Z.barrier(cfg.pfat), Q.gate('prep')))
        pre[84].append(lambda: Z.barrier(84))
        Pk = [acc[0][k] for k in range(16)] + [acc[1][k] for k in range(4)]
        Tk = [PR[8 + k] for k in range(20)]
        spread(post, [lambda: Q.need('ST', lambda: sttag[0])] + rstd_stream(ST, 'k'), 74, 80)
        sm = softmax_stream(Pk, Tk, lambda f: TB[f >> 1])
        Vv = [acc[1][4 + k] for k in range(12)] + [acc[2][k] for k in range(8)]
        def vpack(k0, k1):
            o = []
            for k in range(k0, k1, 2):
                o += [V('v_mul_f32', Vv[k], vrs, Vv[k]), V('v_mul_f32', Vv[k + 1], vrs, Vv[k + 1]), V('v_cvt_pk_bf16_f32', TB[20 + (k >> 1)], Vv[k], Vv[k + 1])]
            return o
        def trw(k): return lambda: A.ds_write_b128(vTRw, TB[4 * k: 4 * k + 4], mods=f'offset:{TR + 16*k}')
        extra = vpack(0, 12) + [V('v_mov_b32', TB[30], 0x3f80), V('v_mov_b32', TB[31], 0)]
        nsh = 150
        spread(post, sm[:nsh], 81, 120)
        Z.run(0, 120, mf, pre, post, 120)
        rem = sm[nsh:]; seq = []
        n_after = {len(rem) - 48: 0, len(rem) - 36: 1, len(rem) - 24: 2, len(rem) - 12: 3}
        for k, f in enumerate(rem):
            if k in n_after: seq.append(trw(n_after[k]))
            seq.append(f)
        seq += [trw(4)] + extra + [trw(5)] + vpack(12, 20) + [trw(6), trw(7)]
        run_valu(seq)
        A.wait_lg(); Z.barrier(120, 7); Q.gate(f'B2_{l}')
        stamp()
        kacc = [acc[0][4 * ft: 4 * ft + 4] for ft in range(3)]
        KB = [PR[0:16], PR[16:32], PR[32:48], PR[48:64]]
        ktag = {}
        for ks in range(4):
            for u in range(2): A.ds_read_b64_tr_b16(KB[ks][12 + 2 * u: 14 + 2 * u], vTRb, mods=f'offset:{TR + 5120*ks + 2560*u}')
            for ft in range(3):
                for u in range(2): ktag[ks, ft] = A.ds_read_b64_tr_b16(KB[ks][4 * ft + 2 * u: 4 * ft + 2 * u + 2], vTRa, mods=f'offset:{TR + 5120*ks + 2560*u + 32*ft}')
            if ks >= 1:
                for ft in range(3):
                    A.wait_lg(ktag[ks - 1, ft]); A.v_mfma_f32_16x16x32_bf16(kacc[ft], KB[ks - 1][4 * ft: 4 * ft + 4], KB[ks - 1][12:16], kacc[ft] if ks > 1 else 0)
            Q.pump()
        for ft in range(3):
            A.wait_lg(ktag[3, ft]); A.v_mfma_f32_16x16x32_bf16(kacc[ft], KB[3][4 * ft: 4 * ft + 4], KB[3][12:16], kacc[ft])
        for k in range(120, 123): Z.rd(k, 120)
        KP = acc[1][0:6]
        for k in range(6): A.v_cvt_pk_bf16_f32(KP[k], acc[0][2 * k], acc[0][2 * k + 1])
        for k in range(6): A.v_min_u32(KP[k], 0xfffffffe, KP[k])
        A.s_add_u32(t_s[2], sKVw, KVP_OFF + l * KV_SZ)
        A.buffer_store_dwordx4(KP[0:4], vKVst0, WS, t_s[2], mods='offen sc1')
        A.buffer_store_dwordx2(KP[4:6], vKVst1, WS, t_s[2], mods='offen sc1')
        stamp()
        pre, post = defaultdict(list), defaultdict(list)
        PRF = [PR[4 * k: 4 * k + 4] for k in range(16)]; ptag = {}
        def pld(k):
            def f():
                if k == 0: Q.mark(f'kvld{l}')
                setreg(so, sKVr, KVP_OFF + l * KV_SZ + k * KV_SLOT)
                ptag[k] = A.buffer_load_dwordx4(PRF[k], vKVld, WS, so, mods='offen sc1', k='kv')
            return f
        pl = [pld(k) for k in range(16)]
        Q.quiet_for(f'kvld{l}'); Q.quiet += cfg.kvq
        Q.items = [(f'KV{k}', f, f'kvgo{l}', 'kv', True) for k, f in enumerate(pl)] + Q.items
        def kvgo(): Q.gate(f'kvgo{l}'); Q.quiet = None
        pre[cfg.kvld_at].append(kvgo)
        Z.run(120, 160, mf, pre, post, 160)
        Q.gate(f't3done{l}')
        if l == 0:
            A.buffer_load_dwordx4(RES[10:14], vOUT0, XIN, 0, mods='offen', k='slow'); A.buffer_load_dwordx4(RES[14:18], vOUT0, XIN, 0, mods='offen offset:64', k='slow')
            rtag = A.buffer_load_dwordx2(RES[18:20], vOUT2, XIN, 0, mods='offen', k='slow')
        Q.quiet_for(f'Ost{l}')
        Pq = [acc[2][8 + k] for k in range(8)] + [acc[3][k] for k in range(12)]
        Tq = [acc[1][k] for k in range(16)] + [acc[0][k] for k in range(4)]
        def qdest(f): return TB[4 * ((f & 15) >> 2) + 2 * (f >> 4) + ((f & 3) >> 1)] if f < 32 else TB[16 + ((f - 32) >> 1)]
        for k, f in enumerate(softmax_stream(Pq, Tq, qdest)):
            f()
            if k % 5 == 4: Q.pump()
        Q.flush('KV15'); Q.pump(maxn=A.NCAP)
        stamp()
        Lre = A.newlabel('kvre'); Lrt = A.newlabel('kvretry')
        RACC = v(136, 16); mxu = MISC[5]
        A.s_mov_b32(sspin, 0)
        A.label(Lre)
        for k in range(16):
            A.wait_vm(ptag[k])
            A.v_mfma_f32_32x32x16_bf16(RACC, SEL, PRF[k], RACC if k else 0)
            if k == 0: A.v_max_u32(mxu, PRF[0][0], PRF[0][1])
            else: A.v_max3_u32(mxu, mxu, PRF[k][0], PRF[k][1])
            A.v_max3_u32(mxu, mxu, PRF[k][2], PRF[k][3])
        A.v_cmp_eq_u32('vcc', -1, mxu)
        A.s_cbranch_vccnz(Lrt)
        Lok = A.newlabel('kvok'); A.label(Lok)
        def retry():
            A.label(Lrt); Lp = A.newlabel('kvlight')
            A.v_and_b32(MISC[5], 0xf0, L16); A.v_mul_u32_u24(MISC[5], KV_SLOT // 16, MISC[5]); A.s_lshl_b32(t_s[3], w, 10); A.v_add_u32(MISC[5], t_s[3], MISC[5])
            A.s_add_u32(t_s[3], sKVr, KVP_OFF + l * KV_SZ)
            A.label(Lp)
            A.s_add_u32(sspin, sspin, 1); A.s_cmp_gt_u32(sspin, SPIN); A.s_cbranch_scc1(Lok)
            A.I('s_sleep', 2)
            A.buffer_load_dword(MISC[6], MISC[5], WS, t_s[3], mods='offen sc1'); A.I('s_waitcnt', 'vmcnt(0)')
            A.v_cmp_eq_u32('vcc', -1, MISC[6]); A.s_cbranch_vccnz(Lp)
            for k in range(16):
                A.s_add_u32(t_s[3], sKVr, KVP_OFF + l * KV_SZ + k * KV_SLOT)
                A.buffer_load_dwordx4(PRF[k], vKVld, WS, t_s[3], mods='offen sc1')
            A.I('s_waitcnt', 'vmcnt(0)')
            A.s_branch(Lre)
        tail.append(retry)
        for k in range(4): A.v_cvt_pk_bf16_f32(MISC[k], RACC[2 * k], RACC[2 * k + 1])
        A.ds_write_b128(vKBw, MISC[0:4])
        Q.pump()
        A.wait_lg(); A.s_barrier(); Q.gate(f'B3_{l}')
        stamp()
        otag = {}
        for T_ in (1, 0):
            for s_ in range(5): otag[T_, s_] = A.ds_read_b128(PRF[5 * T_ + s_], (vKBr0, vKBr1)[T_], mods=f'offset:{16*s_}')
        oacc = [acc[0], acc[1]]
        for T_ in (1, 0):
            for s_ in range(5):
                A.wait_lg(otag[T_, s_])
                A.v_mfma_f32_32x32x16_bf16(oacc[T_], PRF[5 * T_ + s_], TB[4 * s_: 4 * s_ + 4], oacc[T_] if s_ else 0)
                Q.pump()
        den = MISC[1]
        A.v_add_f32(den, 0x358637bd, oacc[1][4]); A.v_rcp_f32(den, den)
        Ov = [oacc[0][k] for k in range(16)] + [oacc[1][k] for k in range(4)]
        OP = v(136, 10)
        A.s_add_u32(t_s[2], sOst, B.o(l))
        for k in list(range(16, 20, 2)) + list(range(0, 16, 2)):
            A.v_mul_f32(Ov[k], den, Ov[k]); A.v_mul_f32(Ov[k + 1], den, Ov[k + 1]); A.v_cvt_pk_bf16_f32(OP[k >> 1], Ov[k], Ov[k + 1])
            if k == 18: A.buffer_store_dwordx2(OP[8:10], vOst2, WS, t_s[2], mods='offen', k='st')
            if k == 6: A.buffer_store_dwordx4(OP[0:4], vOst0, WS, t_s[2], mods='offen')
            if k == 14: last = A.buffer_store_dwordx4(OP[4:8], vOst1, WS, t_s[2], mods='offen')
        Q.mark(f'Ost{l}'); Q.gate(f'Ost{l}')
        Q.flush(f'W2_{l}')
        if l == 0:
            A.wait_vm(rtag)
            for k in range(10):
                A.v_lshlrev_b32(RES[2 * k], 16, RES[10 + k]); A.v_and_b32(RES[2 * k + 1], 0xffff0000, RES[10 + k])
        stamp()
        sync(last, sFlW1, flg(l, K_O), vFlA)
        stamp()

    def ksplit_gemm(nsteps, WF, wneed, AF, aneed, sched):
        acc = [[ACC[20 * tau + 4 * ft: 20 * tau + 4 * ft + 4] for ft in range(5)] for tau in range(4)]
        def mf(n, tau, ft):
            if ft == 0: aneed(n, tau)
            wneed(n, ft)
            A.v_mfma_f32_16x16x32_bf16(acc[tau][ft], WF(n, ft), AF(n, tau), acc[tau][ft] if n else 0)
        def hook(key):
            for f in sched.get(key, []): f()
            if key[2] in (0, 2, 4): Q.pump()
        for n in range(nsteps - 2):
            for tau in range(4):
                for ft in range(5):
                    mf(n, tau, ft); hook((n, tau, ft))
        pend = []
        for ti, tau in enumerate((1, 2, 3, 0)):
            for n in (nsteps - 2, nsteps - 1):
                for ft in range(5):
                    mf(n, tau, ft)
                    k = (n - nsteps + 2) * 5 + ft
                    if k % 2 == 1 and pend: pend.pop(0)()
                    hook((nsteps - 2 + (ti >> 1), 2 * (ti & 1) + (n - nsteps + 2), ft))
            if tau: pend += [(lambda tau=tau, ft=ft: A.ds_write_b128(vRDw[tau], acc[tau][ft], mods=f'offset:{ft*1024}')) for ft in range(5)]
        for f in pend: f()
        return acc
    def reduce_epilogue(acc, final, xconst, stconst, flagconst, evname, gate):
        A.wait_lg(); A.s_barrier()
        rt = {}
        for ft in range(5):
            for k in range(3): rt[ft] = A.ds_read_b128(acc[k + 1][ft], vRDr, mods=f'offset:{k*5120 + ft*1024}')
        for ft in range(5):
            for e in range(0, 4, 2): A.v_pk_add_f32(RES[4 * ft + e: 4 * ft + e + 2], RES[4 * ft + e: 4 * ft + e + 2], acc[0][ft][e:e + 2])
        XP = ACC[0:10]; S2, Q2 = ACC[10:12], ACC[12:14]
        if not final: A.s_add_u32(t_s[2], sXst, xconst)
        for ft in range(5):
            A.wait_lg(rt[ft])
            for e in range(0, 4, 2):
                R2 = RES[4 * ft + e: 4 * ft + e + 2]
                A.v_pk_add_f32(acc[1][ft][e:e + 2], acc[1][ft][e:e + 2], acc[2][ft][e:e + 2])
                A.v_pk_add_f32(R2, R2, acc[3][ft][e:e + 2])
            for e in range(0, 4, 2):
                R2 = RES[4 * ft + e: 4 * ft + e + 2]
                A.v_pk_add_f32(R2, R2, acc[1][ft][e:e + 2])
            for e in range(0, 4, 2): A.v_cvt_pk_bf16_f32(XP[2 * ft + (e >> 1)], RES[4 * ft + e], RES[4 * ft + e + 1])
            if final:
                if ft == 1: A.buffer_store_dwordx4(XP[0:4], vOUT0, OUT, 0, mods='offen')
                if ft == 3: A.buffer_store_dwordx4(XP[4:8], vOUT0, OUT, 0, mods='offen offset:64')
                if ft == 4: A.buffer_store_dwordx2(XP[8:10], vOUT2, OUT, 0, mods='offen')
                continue
            if ft == 1: A.buffer_store_dwordx4(XP[0:4], vXst0, WS, t_s[2], mods='offen')
            if ft == 3: A.buffer_store_dwordx4(XP[4:8], vXst0, WS, t_s[2], mods='offen offset:2048')
            if ft == 4:
                A.buffer_store_dwordx2(XP[8:10], vXst2, WS, t_s[2], mods='offen', k='st')
                A.s_barrier(); Q.gate(gate)
            R0, R1 = RES[4 * ft: 4 * ft + 2], RES[4 * ft + 2: 4 * ft + 4]
            if ft == 0:
                A.v_pk_add_f32(S2, R0, R1); A.v_pk_mul_f32(Q2, R0, R0)
            else:
                A.v_pk_add_f32(S2, S2, R0); A.v_pk_fma_f32(Q2, R0, R0, Q2); A.v_pk_add_f32(S2, S2, R1)
            A.v_pk_fma_f32(Q2, R1, R1, Q2)
        if final: return
        A.v_add_f32(S2[0], S2[0], S2[1]); A.v_add_f32(Q2[0], Q2[0], Q2[1])
        A.s_add_u32(t_s[2], sSTst, stconst)
        A.v_permlane32_swap_b32(S2[0], Q2[0]); A.v_add_f32(S2[0], S2[0], Q2[0]); A.v_mov_b32(S2[1], S2[0])
        A.v_permlane16_swap_b32(S2[0], S2[1]); A.v_add_f32(S2[0], S2[0], S2[1])
        last = A.buffer_store_dword(S2[0], vSTst, WS, t_s[2], mods='offen', k='st')
        Q.mark(evname)
        stamp()
        sync(last, sFlW2, flagconst, vFlB)
    def slots(n0, n1, fts):
        return [(n, tau, ft) for n in range(n0, n1) for tau in range(4) for ft in fts]
    def put(sched, items, sl):
        assert len(items) <= len(sl), (len(items), len(sl))
        for k, f in enumerate(items): sched[sl[(k * len(sl)) // len(items)]].append(f)

    def p2(l):
        A.cmt(f'======== P2 layer {l}')
        atag = {}
        def aload(n, tau):
            def f():
                setreg(so, sOld[tau], B.o(l) + (n >> 2) * 4096)
                atag[n, tau] = A.buffer_load_dwordx4(OF[4 * n + tau], L16, WS, so, mods=f'offen offset:{(n & 3)*1024} sc1')
            return f
        Q.items = [(f'O{n}_{tau}', aload(n, tau), None, 'hit', True) for n in range(5) for tau in ((0, 1, 2, 3) if n < 3 else (1, 2, 3, 0))] + Q.items
        Q.gate(f'p2s{l}'); Q.quiet_for(f'XBst{l}')
        Q.pump(maxn=A.NCAP)
        acc = ksplit_gemm(5, lambda n, ft: W2F[5 * n + ft], lambda n, ft: A.wait_vm(wt['w2'][5 * n + ft]), lambda n, tau: OF[4 * n + tau],
                          lambda n, tau: Q.need(f'O{n}_{tau}', lambda: atag[n, tau]), {})
        Q.gate(f'p2g{l}')
        stamp()
        reduce_epilogue(acc, False, B.xb(l), B.stb(l), flg(l, K_XB), f'XBst{l}', f'RD2_{l}')
        stamp()

    def p34(l):
        A.cmt(f'======== P3 layer {l}')
        acc = [[ACC[32 * u + 16 * gu: 32 * u + 16 * gu + 16] for gu in range(2)] for u in range(2)]
        xl, xt = xloads(B.xb(l))
        ST = v(136, 8)
        ldst, sttag = st_loads(ST, B.stb(l))
        pre, post = defaultdict(list), defaultdict(list)
        def onbar(idx):
            for c in range(10, 15):
                if idx >= 16 * (c - 10 + 1): Q.gate(f'p3f{l}_{c}')
        Z = Stream(f'W3_{l}_', 15, w3slot, w3tag, -1, onbar)
        Q.merge_front([(2 * s_, (f'X{s_}', xl[s_], None, 'hit', True)) for s_ in range(40)] + [(60, ('ST', ldst, None, 'touch', True))], Z.key)
        Q.pump(maxn=A.NCAP)
        def mf(idx):
            p, rem = divmod(idx, 80); s_, gu = rem >> 1, rem & 1
            if idx < 80 and gu == 0: Q.need(f'X{s_}', lambda: xt[s_])
            ac = acc[p & 1][gu]
            A.v_mfma_f32_32x32x16_bf16(ac, RING[idx % 4], XF[s_], ac if s_ else 0)
        for k in range(3): Z.rd(k, 0)
        pre[84].append(lambda: Z.barrier(84))
        pre[186].append(lambda: Q.gate(f'xfree{l}'))
        spread(post, [lambda: Q.need('ST', lambda: sttag[0])] + rstd_stream(ST, 'sq'), 74, 80)
        HP = [v(144, 4), v(148, 4)]
        htag = {}
        def epi(p):
            G, U = acc[p & 1]; o = []
            for c in range(2):
                for k in range(8 * c, 8 * c + 8, 2):
                    o += [V('v_max_f32', G[k], 0, G[k]), V('v_max_f32', G[k + 1], 0, G[k + 1]), V('v_mul_f32', U[k], vrs, U[k]), V('v_mul_f32', U[k + 1], vrs, U[k + 1]),
                          V('v_mul_f32', G[k], G[k], U[k]), V('v_mul_f32', G[k + 1], G[k + 1], U[k + 1]), V('v_cvt_pk_bf16_f32', HP[c][(k & 7) >> 1], G[k], G[k + 1])]
                def st(c=c):
                    A.s_add_u32(t_s[2], sHst, B.h(l))
                    htag[p] = A.buffer_store_dwordx4(HP[c], vHst, WS, t_s[2], mods=f'offen offset:{p*1024 + c*512}')
                o.append(st)
            return o
        spread(post, epi(0), 82, 112)
        spread(post, epi(1), 162, 178)
        chk = {}
        post[204].append(lambda: publish(htag[1], sFlW1, flg(l, K_H), 2))
        post[226].append(lambda: chk.__setitem__(2, check_issue(vFlA, sFl, flg(l, K_H))))
        stamp('p3')
        for idx in (20, 40, 60, 80, 100, 120, 140, 160, 180, 200, 220): pre[idx].insert(0, lambda: stamp('p3'))
        Z.run(0, 240, mf, pre, post, 240)
        stamp('p3')
        stamp()
        atag = {}
        def aload(n, tau):
            def f():
                ms = p4order[n]
                setreg(so, sHld[tau], B.h(l) + (ms >> 2) * 4096)
                atag[n, tau] = A.buffer_load_dwordx4(HF[(4 * n + tau) % 28], L16, WS, so, mods=f'offen offset:{(ms & 3)*1024} sc1')
            return f
        sched = defaultdict(list)
        check_wait(chk[2], vFlA, sFl, flg(l, K_H), 2)
        def hgate(n): return None if n < 7 else f'h{l}_{n}'
        Q.merge_front([(2 * n + 1, (f'H{n}_{tau}', aload(n, tau), hgate(n), 'hit', True)) for n in range(12) for tau in ((0, 1, 2, 3) if n < 10 else (1, 2, 3, 0))],
                      lambda name: 2 * int(name.split('_')[2]) if name.startswith(f'W4_{l}_') else None)
        run_valu(epi(2), 4)
        stamp()
        sched[(cfg.pub3, 1, 2)].append(lambda: publish(htag[2], sFlW1, flg(l, K_H), 3))
        sched[(cfg.pub3 + 1, 3, 2)].append(lambda: chk.__setitem__(3, check_issue(vFlA, sFl, flg(l, K_H))))
        sched[(1, 0, 0)].append(lambda: Q.gate(f'h{l}_7'))
        def open8():
            check_wait(chk[3], vFlA, sFl, flg(l, K_H), 3)
            for n in range(8, 12):
                if n - 7 <= cfg.pub3 + 2: Q.gate(f'h{l}_{n}')
        sched[(cfg.pub3 + 2, 3, 4)].append(open8)
        for n in range(8, 12):
            if n - 7 > cfg.pub3 + 2: sched[(n - 6, 0, 0)].append(lambda n=n: Q.gate(f'h{l}_{n}'))
        if l == 0:
            A.s_barrier(); Q.gate('p4s'); sched[(6, 0, 1)].append(lambda: Q.gate('p4m'))
            Q.quiet_for('XAst')
        acc = ksplit_gemm(12, lambda n, ft: W4F[5 * n + ft], lambda n, ft: Q.need(f'W4_{l}_{n}', lambda: wt['w4'][5 * n + ft]),
                          lambda n, tau: HF[(4 * n + tau) % 28], lambda n, tau: Q.need(f'H{n}_{tau}', lambda: atag[n, tau]), sched)
        stamp()
        reduce_epilogue(acc, l == 1, B.xa(l + 1), B.sta(l + 1), flg(l + 1, K_XA) if l == 0 else None, 'XAst', 'RD4')
        stamp()
    for l in range(2):
        p1(l); p2(l); p34(l)
    assert not Q.items, [x[0] for x in Q.items]
    ev['end'] = A.t
    if cfg.diag:
        A.I('s_waitcnt', 'vmcnt(0)'); stamp('always')
        A.s_memrealtime(s(98, 2)); A.wait_lg()
        n = nstamp[0]
        A.s_lshl_b32(t_s[0], b, 10); A.s_lshl_b32(t_s[1], w, 8); A.s_add_u32(t_s[0], t_s[0], t_s[1]); A.s_add_u32(t_s[0], t_s[0], DBG_OFF)
        if cfg.hdbg:
            Lh = A.newlabel('hd'); A.s_cmp_lg_u32(b, cfg.hdbg - 1); A.s_cbranch_scc1(Lh); A.s_cmp_lg_u32(w, 0); A.s_cbranch_scc1(Lh)
            sel = [1, 3, 4, 7, 9, 12, 13, 15, 17, 18, 23, 26, 27, n - 1]
            for k, x in enumerate(sel):
                A.s_sub_u32(t_s[1], STAMPS[x], STAMPS[0]); A.v_mov_b32(MISC[0], t_s[1])
                A.buffer_store_dword(MISC[0], vZ, DBG, 0, mods=f'offen offset:{4*(k+1)}')
            A.s_sub_u32(t_s[1], s(98), s(96)); A.v_mov_b32(MISC[0], t_s[1])
            A.buffer_store_dword(MISC[0], vZ, DBG, 0, mods='offen offset:60')
            A.label(Lh)
        for k, sr in enumerate(STAMPS[:n] + [s(96), s(98), sfast]):
            A.v_mov_b32(MISC[0], sr)
            A.buffer_store_dword(MISC[0], vZ, WS, t_s[0], mods=f'offen offset:{4*(k if k < n else 40 + k - n)}')
    A.label('M_end')
    A.s_endpgm()
    k = 0
    evs = dict(ev); evs['trace'] = list(A.trace)
    while k < len(tail):
        A.vm = []; A.lg = []; tail[k](); k += 1
    A.label('M_codeend'); A.s_endpgm()
    nn = A.finalize()
    return A, nn, nstamp[0], evs
def gen_iter(cfg):
    ev = None
    class ND(cfg): diag = False
    for it in range(4): _, _, _, ev = gen_main(ND, ev)
    A, nn, ns, ev2 = gen_main(cfg, ev)
    return A, nn, ns, ev
```

```python
S, D, H, DH, F = 2048, 640, 32, 20, 1536
W1_OFF = 0;                 W1_J = 163840;  W1_SZ = 16 * W1_J
W2_OFF = W1_OFF + W1_SZ;    W2_SZ = 8 * 20 * 5120
W3_OFF = W2_OFF + W2_SZ;    W3_J = 245760;  W3_SZ = 16 * W3_J
W4_OFF = W3_OFF + W3_SZ;    W4_SZ = 8 * 48 * 5120
X_SZ = S * D * 2
XA_OFF = W4_OFF + W4_SZ
XB_OFF = XA_OFF + 2 * X_SZ
O_OFF = XB_OFF + 2 * X_SZ
H_SZ = S * F * 2
H_OFF = O_OFF + 2 * X_SZ
ST_SZ = S * 8 * 2 * 4
STA_OFF = H_OFF + 2 * H_SZ
STB_OFF = STA_OFF + 2 * ST_SZ
KV_SLOT = 3456
KV_SZ = 256 * KV_SLOT
KVP_OFF = STB_OFF + 2 * ST_SZ
FLG_OFF = KVP_OFF + 2 * KV_SZ
FLG_SZ = 2 * 4 * 16 * 256
XID_OFF = FLG_OFF + FLG_SZ
ZERO_SZ = 9 * 4096
PF_OFF = FLG_OFF + ZERO_SZ
PB_OFF = PF_OFF + 256 * 128
C1_OFF = PB_OFF + 4096
C3_OFF = C1_OFF + 16 * 4096
DBG_OFF = C3_OFF + 16 * 6144
DBG_SZ = 256 * 4 * 256
WS_USED = DBG_OFF + DBG_SZ
OOB = 0x40000000
class Bufs:
    def __init__(s, alias):
        s.alias = alias
        s.o_tile = 49152 if alias else 20480
    def xa(s, l): return XA_OFF if s.alias else XA_OFF + l * X_SZ
    def xb(s, l): return XA_OFF if s.alias else XB_OFF + l * X_SZ
    def o(s, l): return H_OFF if s.alias else O_OFF + l * X_SZ
    def h(s, l): return H_OFF if s.alias else H_OFF + l * H_SZ
    def sta(s, l): return STA_OFF if s.alias else STA_OFF + l * ST_SZ
    def stb(s, l): return STA_OFF if s.alias else STB_OFF + l * ST_SZ
K_O, K_XB, K_H, K_XA = 0, 1, 2, 3
def flg(layer, kind): return FLG_OFF + (layer * 4 + kind) * 4096
def perm32(m):
    g, h, r = m >> 3, (m >> 2) & 1, m & 3
    return 16 * (g >> 1) + 8 * h + 4 * (g & 1) + r
def kperm_o(kpos):
    jj, pos = divmod(kpos, 40)
    if pos < 32: h, d = pos >> 4, pos & 15
    else: h, d = (pos - 32) >> 2, 16 + (pos & 3)
    return 40 * jj + 20 * h + d
def feat80(ft, row):
    q, r = row >> 2, row & 3
    return 32 * (ft >> 1) + 8 * q + 4 * (ft & 1) + r if ft < 4 else 64 + row
if __name__ == '__main__':
    for k, x in list(globals().items()):
        if isinstance(x, int): print(k, x, hex(x))
```

```python
from asmlib import *
from layout import *
from prepass import srd, sel_frag, emit_prep, B_W3, B_X, B_W24, B_END
from collections import defaultdict

LOG2E = 0x3fb8aa3b
SLOT = 16384
TR = 0
KVB = 6 * SLOT
RD = 6 * SLOT + 4096
MAIN_LDS = 163840
SPIN = 1 << 17

class Cfg:
    diag = False
    fine = None
    alias = 1
    touch = 1
    early = 1
    LA1 = 10
    nt1 = 0; nt2 = 0; nt3 = 0; nt4 = 0
    win2 = 5; win3 = 7; flagwait = 0; pub3 = 2; kvq = 500; topup = 1; altlead = 100; head = 0; hdbg = 0; psleep = 0; fake16 = 0; pad = 1; res2 = 0; res4 = 0; osc = 0; wb = 0; wbat = 9; rpump = 1; hsc1 = 0; th0gate = 'B2_0'; snt = 0; cpf = 1; pnt = 14; help = 1; psc1 = 1; pfat = 72; LK = 40; backlog = 800; win = 4; mix1 = 0; mix3 = 0; mix4 = 0; alt = 2; qslack = 5000; kvdelay = 900; LA4 = 3
    kvld_at = 136

def gen_main(cfg=Cfg, ev_in=None):
    A = Asm()
    B = Bufs(cfg.alias)
    ev = {}; ev_in = ev_in or {}
    tail = []
    WS, OUT, XIN = s(8, 4), s(12, 4), s(16, 4)
    b, w, si, sj, sth, sfs, sfast = s(2), s(20), s(21), s(22), s(23), s(24), s(25)
    t_s = [s(26), s(27), s(28), s(29)]
    sW1, sW3, sW2, sW4, sXu, sSTu, sKVw, sKVr, sFl = (s(30 + k) for k in range(9))
    sM0w, sXst, sSTst, sOst, sHst, sFlW1, sFlW2, sxcc, sspin = (s(39 + k) for k in range(9))
    sOld = [s(48 + k) for k in range(4)]; sHld = [s(52 + k) for k in range(4)]
    so, so2 = s(88), s(89)
    POUT, PDBG, PX, PWS = s(56, 2), s(58, 2), s(60, 2), s(62, 2)
    DBG = s(84, 4); sNonce = s(90)
    nstamp = [0]; STAMPS = [s(3), s(4), s(5), s(6), s(7), s(100), s(101)] + [s(64 + k) for k in range(20)] + [s(91), s(92), s(95), s(0), s(1)]
    def stamp(tag=None):
        if tag in (None, 'always'): ev.setdefault('stamps', []).append(A.t)
        if cfg.diag and (tag == cfg.fine or tag == 'always'):
            A.wait_lg(); A.s_memtime(s(98, 2)); A.wait_lg(); A.s_mov_b32(STAMPS[nstamp[0]], s(98)); nstamp[0] += 1
    tid = v(0); L16, L16b, L16c = v(1), v(2), v(3)
    (vXst0, vXst2, vSTst, vSTld, vOst0, vOst1, vOst2, vHst, vOUT0, vOUT2, vFlA, vFlB, vZ, vKVst0, vKVst1, vKVld,
     vTRw, vTRa, vTRb, vKBw, vKBr0, vKBr1, vRDr, vT) = (v(4 + k) for k in range(24))
    vRDw = [None, v(28), v(29), v(30)]
    vrs = v(31)
    SEL = v(32, 4)
    RES = v(36, 20); DUMMY = tid
    sBk = s(94)
    RING = [v(56 + 4 * k, 4) for k in range(4)]
    ACC = v(72, 80)
    TB = v(152, 32); PR = v(184, 64); MISC = v(248, 8)
    def lds_addr(off):
        return ((L16, L16b, L16c)[off >> 16], off & 0xffff)

    A.s_cmp_ge_u32(b, 256); A.s_cbranch_scc1('M_end')
    if cfg.diag: A.s_memrealtime(s(96, 2))
    stamp('always')
    def after_karg():
        srd(A, DBG, PDBG, 256)
        L = A.newlabel('nononce')
        A.s_cmp_lg_u32(b, 0); A.s_cbranch_scc1(L)
        A.s_memrealtime(s(98, 2)); A.v_lshlrev_b32(v(10), 8, v(0)); A.wait_lg()
        A.s_or_b32(s(98), s(98), 1); A.v_mov_b32(v(9), s(98))
        A.buffer_store_dword(v(9), v(10), DBG, 0, mods='offen sc1')
        A.label(L)
    def fill():
        t0, t1, F4, Z4 = v(9), v(10), v(28, 4), v(24, 4)
        a0, a1, a2 = s(31), s(32), s(95)
        A.s_and_b32(a0, b, 7); A.s_lshl_b32(a0, a0, 1); A.s_lshr_b32(a1, b, 7); A.s_add_u32(a0, a0, a1)
        A.s_bfe_u32(a1, b, (4 << 16) | 3)
        for k in range(4): A.v_mov_b32(F4[k], -1); A.v_mov_b32(Z4[k], 0)
        A.s_lshl_b32(a2, a1, 4); A.s_add_u32(a2, a2, a0); A.s_mul_i32(a2, a2, KV_SLOT); A.s_add_u32(a2, a2, KVP_OFF)
        A.v_lshlrev_b32(t0, 4, v(0)); A.v_cmp_gt_u32('vcc', KV_SLOT // 16, v(0)); A.v_mov_b32(t1, OOB); A.v_cndmask_b32(t0, t1, t0, 'vcc')
        A.buffer_store_dwordx4(F4, t0, WS, a2, mods='offen sc1')
        A.s_add_u32(a2, a2, KV_SZ)
        A.buffer_store_dwordx4(F4, t0, WS, a2, mods='offen sc1')
        A.v_cmp_gt_u32('vcc', 16, v(0)); A.v_cndmask_b32(t0, t1, t0, 'vcc')
        A.s_lshl_b32(a0, a0, 8); A.s_lshl_b32(a2, a1, 12); A.s_add_u32(a2, a2, a0); A.s_add_u32(a2, a2, FLG_OFF)
        A.s_cmp_lt_u32(a1, 8); A.s_cselect_b32(a2, a2, OOB)
        A.buffer_store_dwordx4(Z4, t0, WS, a2, mods='offen sc1')
        A.buffer_load_dword(v(255), Z4[0], DBG, 0, mods='offen sc1')
        if cfg.cpf:
            Lp = A.newlabel('pc')
            A.s_getpc_b64(s(98, 2)); A.label(Lp)
            A.s_lshr_b32(a0, b, 3); A.s_lshl_b32(a0, a0, 11)
            A.v_and_b32(t0, 15, v(0)); A.v_lshl_add_u32(t0, t0, 7, a0)
            A.raw(f'\tv_add_u32 {t0}, PP_done-{Lp}, {t0}'); A.raw(f'\tv_min_u32 {t0}, M_codeend-{Lp}-4, {t0}')
            A.v_mov_b32(v(253), s(99)); A.v_add_co_u32(v(252), 'vcc', s(98), t0); A.v_addc_co_u32(v(253), 'vcc', 0, v(253), 'vcc')
            A.global_load_dword(v(254), v(252, 2), 'off')
    def pstamp(k):
        if cfg.diag and cfg.fine == 'pp':
            A.wait_lg(); A.s_memtime(s(98, 2)); A.wait_lg(); A.s_mov_b32(STAMPS[k], s(98))
    if cfg.diag and cfg.fine == 'pp': A.s_mov_b32(STAMPS[1], 0); A.s_mov_b32(STAMPS[2], 0)
    emit_prep(A, fill, after_karg, ' sc1' if cfg.psc1 else '', pstamp, cfg.help, cfg.pnt, ' sc1 nt' if cfg.snt else ' sc1')
    if cfg.diag and cfg.fine == 'pp': nstamp[0] = 3
    A.label('PP_done')
    A.t = 0; A.mfree = A.port = A.link = A.prev = A.ldsfree = 0; A.fly = []; A.trace = []
    stamp(); stamp('pp')
    lane, t0, t1, t2, t3, hf, l15, q = (v(152 + k) for k in range(8))
    m, g, h, r = (v(160 + k) for k in range(4))
    vN = v(255); vPF0, vPF1 = RES[0], RES[1]; PFD = RES[2:4]
    Ln = A.newlabel('nonce'); Lo = A.newlabel('nonceok')
    A.s_getreg_b32(sxcc, 'hwreg(HW_REG_XCC_ID, 0, 4)')
    A.v_mov_b32(t3, OOB); A.v_cmp_eq_u32('vcc', 0, tid); A.v_cndmask_b32(t1, t3, tid, 'vcc'); A.v_mov_b32(t0, 0)
    A.s_mov_b32(sspin, 0)
    A.I('s_waitcnt', 'vmcnt(0)')
    stamp('pp')
    A.label(Ln)
    A.v_readfirstlane_b32(sNonce, vN); A.s_cmp_lg_u32(sNonce, 0); A.s_cbranch_scc1(Lo)
    A.s_add_u32(sspin, sspin, 1); A.s_cmp_gt_u32(sspin, SPIN); A.s_cbranch_scc1(Lo)
    A.buffer_load_dword(vN, t0, DBG, 0, mods='offen sc1'); A.wait_vm()
    A.s_branch(Ln)
    A.label(Lo)
    A.s_not_b32(t_s[0], sNonce); A.s_andn2_b32(t_s[0], t_s[0], 15); A.s_or_b32(sxcc, sxcc, t_s[0])
    A.v_mov_b32(PFD[0], sNonce); A.v_mov_b32(PFD[1], sxcc)
    A.s_lshl_b32(t_s[0], b, 7); A.s_add_u32(t_s[0], t_s[0], PF_OFF)
    A.s_barrier()
    A.buffer_store_dwordx2(PFD, t1, WS, t_s[0], mods='offen sc1')
    A.s_mov_b32(sfast, 0)
    stamp(); stamp('pp')
    A.v_and_b32(lane, 63, tid)
    A.v_lshlrev_b32(L16, 4, lane)
    A.s_and_b32(t_s[0], b, 7); A.s_lshr_b32(t_s[1], b, 3); A.s_and_b32(sj, t_s[1], 15); A.s_lshr_b32(t_s[1], t_s[1], 4)
    A.s_lshl_b32(si, t_s[0], 1); A.s_add_u32(si, si, t_s[1])
    A.s_lshr_b32(sth, sj, 3); A.s_and_b32(sfs, sj, 7)
    A.s_lshl_b32(sM0w, w, 12)
    A.s_mul_i32(sW1, sj, W1_J); A.s_add_u32(sW1, sW1, sM0w)
    if W1_OFF: A.s_add_u32(sW1, sW1, W1_OFF)
    A.s_lshl_b32(t_s[0], si, 2); A.s_add_u32(t_s[0], t_s[0], w); A.s_mul_i32(sXu, t_s[0], 40960); A.s_lshl_b32(sSTu, t_s[0], 11)

    cache = {}
    def setreg(reg, base, const):
        key = (str(base), const)
        if cache.get(str(reg)) != key:
            A.s_add_u32(reg, base, const); cache[str(reg)] = key
    def dma_chunk(base, c, slot, va=None):
        res = {}
        def mk(k):
            def f():
                setreg(so2, base, c * SLOT); setreg('m0', sM0w, slot * SLOT)
                res['tag'] = A.buffer_load_dwordx4(va or L16, WS, so2, mods=f'offen offset:{k*1024} lds', k='m2')
            return f
        return [mk(k) for k in range(4)], res
    XF = [a(4 * k, 4) for k in range(40)]
    def xloads(base_const, kind='hit'):
        tags = {}
        def mk(k):
            def f():
                setreg(so, sXu, base_const + (k >> 2) * 4096)
                tags[k] = A.buffer_load_dwordx4(XF[k], L16, WS, so, mods=f'offen offset:{(k & 3)*1024} sc1', k=kind)
            return f
        return [mk(k) for k in range(40)], tags
    A.v_add_u32(L16b, 0x10000, L16); A.v_add_u32(L16c, 0x20000, L16)
    A.v_and_b32(t0, 24, lane); A.v_cmp_eq_u32('vcc', 24, t0); A.v_cndmask_b32(vT, L16, t3, 'vcc')
    A.s_lshr_b32(t_s[0], sj, 1); A.s_and_b32(t_s[1], sj, 1); A.s_lshl_b32(t_s[1], t_s[1], 3); A.s_add_u32(t_s[0], t_s[0], t_s[1])
    A.v_and_b32(t0, 7, lane); A.v_min_u32(t1, 2, t0); A.v_lshl_add_u32(t1, t1, 4, t_s[0])
    A.s_lshl_b32(t_s[0], si, 2); A.s_add_u32(t_s[0], t_s[0], B_X); A.v_and_b32(t2, 3, t0); A.v_add_u32(t2, t_s[0], t2)
    A.v_cmp_gt_u32('vcc', 4, t0); A.v_cndmask_b32(t1, t2, t1, 'vcc'); A.v_lshlrev_b32(vPF0, 7, t1)
    A_real = A; A = Asm()
    srd(A, OUT, POUT, X_SZ)
    A.v_lshrrev_b32(hf, 5, lane); A.v_and_b32(l15, 15, lane); A.v_lshrrev_b32(q, 4, lane)
    A.v_and_b32(m, 31, lane); A.v_lshrrev_b32(g, 3, m); A.v_bfe_u32(h, m, 2, 1); A.v_and_b32(r, 3, m)
    A.s_mul_i32(sW3, sj, W3_J); A.s_add_u32(sW3, sW3, sM0w); A.s_add_u32(sW3, sW3, W3_OFF)
    A.s_mul_i32(t_s[0], sfs, 20); A.s_mul_i32(t_s[1], w, 5); A.s_add_u32(t_s[0], t_s[0], t_s[1]); A.s_mul_i32(sW2, t_s[0], 5120); A.s_add_u32(sW2, sW2, W2_OFF)
    A.s_mul_i32(t_s[0], sfs, 48); A.s_mul_i32(t_s[1], w, 12); A.s_add_u32(t_s[0], t_s[0], t_s[1]); A.s_mul_i32(sW4, t_s[0], 5120); A.s_add_u32(sW4, sW4, W4_OFF)
    A.s_mul_i32(sKVr, sj, 16 * KV_SLOT); A.s_mul_i32(t_s[0], si, KV_SLOT); A.s_add_u32(sKVw, sKVr, t_s[0])
    A.s_lshl_b32(sFl, si, 8)
    A.s_lshl_b32(t_s[0], w, 4); A.s_add_u32(t_s[0], t_s[0], sj); A.s_lshl_b32(t_s[0], t_s[0], 2); A.s_add_u32(sFlW1, sFl, t_s[0])
    A.s_lshl_b32(t_s[0], sth, 2); A.s_add_u32(t_s[0], t_s[0], w); A.s_lshl_b32(t_s[0], t_s[0], 3); A.s_add_u32(t_s[0], t_s[0], sfs)
    A.s_lshl_b32(t_s[0], t_s[0], 2); A.s_add_u32(sFlW2, sFl, t_s[0])
    A.s_lshl_b32(t_s[0], si, 2); A.s_lshl_b32(t_s[1], sth, 1); A.s_add_u32(t_s[0], t_s[0], t_s[1]); A.s_lshr_b32(t_s[1], w, 1); A.s_add_u32(t_s[0], t_s[0], t_s[1])
    A.s_mul_i32(sXst, t_s[0], 40960); A.s_mul_i32(t_s[1], sfs, 5120); A.s_add_u32(sXst, sXst, t_s[1])
    A.s_lshl_b32(sSTst, t_s[0], 11); A.s_and_b32(t_s[1], w, 1); A.s_lshl_b32(t_s[1], t_s[1], 10); A.s_add_u32(sSTst, sSTst, t_s[1])
    A.s_lshl_b32(t_s[1], sfs, 7); A.s_add_u32(sSTst, sSTst, t_s[1])
    A.s_mul_i32(sOst, si, 8 * B.o_tile)
    A.s_mul_i32(sHst, si, 393216); A.s_mul_i32(t_s[1], sj, 3072); A.s_add_u32(sHst, sHst, t_s[1])
    for tau in range(4):
        A.s_add_u32(t_s[0], w, tau); A.s_and_b32(t_s[0], t_s[0], 3)
        if tau:
            A.s_mul_i32(t_s[1], t_s[0], 15360); A.s_add_u32(t_s[1], t_s[1], RD + (3 - tau) * 5120); A.v_add_u32(vRDw[tau], t_s[1], L16)
        A.s_lshl_b32(t_s[1], sth, 2); A.s_add_u32(t_s[0], t_s[0], t_s[1])
        A.s_mul_i32(t_s[1], t_s[0], B.o_tile); A.s_add_u32(sOld[tau], t_s[1], sOst); A.s_mul_i32(t_s[1], w, 5120); A.s_add_u32(sOld[tau], sOld[tau], t_s[1])
        A.s_mul_i32(t_s[1], t_s[0], 49152); A.s_mul_i32(t_s[2], si, 393216); A.s_add_u32(sHld[tau], t_s[1], t_s[2]); A.s_mul_i32(t_s[1], w, 12288); A.s_add_u32(sHld[tau], sHld[tau], t_s[1])
    A.s_mul_i32(t_s[1], w, 15360); A.s_add_u32(t_s[1], t_s[1], RD); A.v_add_u32(vRDr, t_s[1], L16)
    A.s_and_b32(t_s[0], w, 1); A.s_lshl_b32(t_s[0], t_s[0], 4); A.v_add_u32(t3, t_s[0], l15)
    A.v_lshrrev_b32(t0, 1, q); A.v_and_b32(t1, 1, q)
    A.v_lshl_add_u32(t2, t1, 5, t3); A.v_lshlrev_b32(t2, 4, t2); A.v_lshl_add_u32(vXst0, t0, 10, t2)
    A.v_lshl_add_u32(t2, t0, 5, t3); A.v_lshlrev_b32(t2, 4, t2); A.v_lshl_add_u32(t2, t1, 3, t2); A.v_add_u32(vXst2, 4096, t2)
    A.v_lshlrev_b32(t2, 3, l15); A.v_lshl_add_u32(vSTst, hf, 2, t2)
    A.v_lshrrev_b32(t0, 4, m); A.v_lshl_add_u32(t2, t0, 10, t2); A.v_lshl_add_u32(vSTld, hf, 9, t2)
    A.s_lshl_b32(t_s[0], w, 1); A.v_lshrrev_b32(t0, 4, m); A.v_add_u32(t0, t_s[0], t0)
    A.s_mov_b32(t_s[1], 49152); A.v_mul_lo_u32(t1, t0, t_s[1]); A.v_lshl_add_u32(t1, l15, 4, t1); A.v_lshl_add_u32(vHst, hf, 8, t1)
    A.v_mul_u32_u24(t0, B.o_tile, t0); A.v_lshl_add_u32(t0, l15, 4, t0)
    A.s_mul_i32(t_s[0], sj, 5)
    for dst_, add in ((vOst0, 0), (vOst1, 1)):
        A.v_lshl_add_u32(t1, hf, 1, t_s[0])
        if add: A.v_add_u32(t1, 1, t1)
        A.v_lshl_add_u32(dst_, t1, 8, t0)
    A.s_add_u32(t_s[0], t_s[0], 4); A.s_lshl_b32(t_s[0], t_s[0], 8); A.v_add_u32(t1, t_s[0], t0); A.v_lshl_add_u32(vOst2, hf, 3, t1)
    A.s_lshl_b32(t_s[0], si, 7); A.s_lshl_b32(t_s[1], sth, 6); A.s_add_u32(t_s[0], t_s[0], t_s[1]); A.s_lshl_b32(t_s[1], w, 4); A.s_add_u32(t_s[0], t_s[0], t_s[1])
    A.v_add_u32(t0, t_s[0], l15); A.v_mul_u32_u24(t0, 1280, t0); A.s_mul_i32(t_s[0], sfs, 160); A.v_add_u32(t0, t_s[0], t0)
    A.v_lshl_add_u32(vOUT0, q, 4, t0); A.v_lshl_add_u32(t0, q, 3, t0); A.v_add_u32(vOUT2, 128, t0)
    A.v_bfe_u32(t0, lane, 2, 1); A.s_lshl_b32(t_s[0], sth, 1); A.v_add_u32(t0, t_s[0], t0); A.v_lshlrev_b32(t0, 4, t0)
    A.s_lshl_b32(t_s[0], w, 2); A.v_add3_u32(t0, t0, r, t_s[0]); A.v_lshlrev_b32(vFlA, 2, t0)
    A.s_lshl_b32(t_s[0], w, 4); A.v_add_u32(t0, t_s[0], l15); A.v_lshlrev_b32(vFlB, 2, t0)
    A.v_mov_b32(t3, OOB)
    A.v_cmp_eq_u32('vcc', 0, lane); A.v_cndmask_b32(vZ, t3, lane, 'vcc')
    A.s_and_b32(t_s[0], w, 1); A.s_lshl_b32(t_s[0], t_s[0], 4); A.v_add_u32(t0, t_s[0], l15)
    A.s_lshr_b32(t_s[1], w, 1); A.s_mul_i32(t_s[2], t_s[1], 21); A.v_add_u32(t1, t_s[2], t0); A.v_mul_u32_u24(t1, 80, t1)
    A.v_cmp_gt_u32('vcc', 21, t0); A.v_cndmask_b32(t1, t3, t1, 'vcc')
    A.v_lshl_add_u32(vKVst0, q, 4, t1)
    A.v_lshl_add_u32(t1, q, 3, t1); A.v_add_u32(t1, 64, t1); A.v_cmp_gt_u32('vcc', 2, q); A.v_cndmask_b32(vKVst1, t3, t1, 'vcc')
    A.v_lshlrev_b32(t0, 4, tid); A.v_add_u32(vKBw, KVB, t0); A.v_cmp_gt_u32('vcc', 210, tid); A.v_cndmask_b32(vKVld, t3, t0, 'vcc')
    A.s_lshl_b32(t_s[0], w, 5); A.v_lshl_add_u32(t0, hf, 7, m); A.v_add_u32(t0, t_s[0], t0); A.v_mul_u32_u24(vTRw, 160, t0)
    A.s_lshl_b32(t_s[0], t_s[1], 7); A.v_lshrrev_b32(t0, 2, lane); A.v_add_u32(t0, t_s[0], t0)
    A.v_mul_u32_u24(t0, 160, t0); A.v_lshl_add_u32(vTRa, r, 3, t0)
    A.s_and_b32(t_s[0], w, 1); A.s_lshl_b32(t_s[0], t_s[0], 5); A.s_add_u32(t_s[0], t_s[0], 80); A.v_add_u32(vTRb, t_s[0], vTRa)
    A.v_lshl_add_u32(t0, g, 2, r); A.v_mul_u32_u24(t1, 21, hf); A.v_add_u32(t1, t1, t0); A.v_mul_u32_u24(t1, 80, t1); A.v_add_u32(t1, KVB, t1)
    A.v_mov_b32(t2, KVB + 3360)
    A.v_cmp_eq_u32('vcc', h, hf); A.v_cndmask_b32(vKBr0, t2, t1, 'vcc')
    A.v_add_u32(t1, 1280, t1); A.v_cndmask_b32(t1, t2, t1, 'vcc'); A.v_cmp_gt_u32('vcc', 5, t0); A.v_cndmask_b32(vKBr1, t2, t1, 'vcc')
    A.v_mov_b32(t2, -100 & 0xffffffff); A.v_cmp_eq_u32('vcc', h, hf); A.v_cndmask_b32(t0, t2, t0, 'vcc')
    sel_frag(A, SEL, t0, t1, t2)
    A.s_bfe_u32(t_s[0], b, (1 << 16) | 7); A.s_lshl_b32(t_s[0], t_s[0], 7); A.s_and_b32(t_s[1], b, 7); A.s_add_u32(t_s[0], t_s[0], t_s[1])
    A.v_lshl_add_u32(t0, l15, 3, t_s[0])
    A.v_and_b32(t1, 7, lane); A.v_bfe_u32(t2, lane, 3, 1); A.v_lshl_add_u32(t1, t2, 7, t1); A.s_lshl_b32(t_s[0], sj, 3); A.v_add_u32(t1, t_s[0], t1)
    A.v_mov_b32(t2, B_W24); A.v_add3_u32(t2, t2, lane, -16); A.v_min_u32(t2, B_END - 1, t2)
    A.s_mul_i32(t_s[0], sj, 3); A.v_min_u32(vN2 := v(165), 2, r); A.v_add_u32(vN2, t_s[0], vN2)
    A.v_lshrrev_b32(v(166), 1, vN2); A.v_mad_u32_u24(v(166), h, 24, v(166))
    A.v_and_b32(vN2, 1, vN2); A.v_lshlrev_b32(vN2, 3, vN2); A.v_and_b32(v(167), 7, v(166)); A.v_add_u32(vN2, vN2, v(167))
    A.v_lshrrev_b32(v(166), 3, v(166)); A.v_lshl_add_u32(vN2, v(166), 4, vN2); A.v_add_u32(vN2, B_W3, vN2)
    A.s_cmp_eq_u32(w, 0); A.s_cselect_b64('vcc', -1, 0); A.v_cndmask_b32(t2, t2, t1, 'vcc')
    A.s_cmp_eq_u32(w, 3); A.s_cselect_b64('vcc', -1, 0); A.v_cndmask_b32(t2, t2, vN2, 'vcc')
    A.v_cmp_gt_u32('vcc', 16, lane); A.v_cndmask_b32(t2, t2, t0, 'vcc'); A.v_lshlrev_b32(vPF1, 7, t2)
    rec = A.items; A = A_real
    def atomic_groups(items):
        n = len(items); join = [False] * n
        for fl in (('x', 'scc'), ('x', 'vcc')):
            last = None
            for k, it in enumerate(items):
                rd = fl in it.rd or (fl[1] == 'scc' and it.op.startswith('s_cselect'))
                if rd and last is not None:
                    for x in range(last + 1, k + 1): join[x] = True
                if fl in it.wr: last = k
        out = []
        for k, it in enumerate(items):
            if join[k]: out[-1].append(it)
            else: out.append([it])
        return [(lambda g=g: [A.I(i.op, *i.ops, mods=i.mods) for i in g]) for g in out]
    deferred = atomic_groups(rec)
    def pf_bad():
        A.v_xor_b32(MISC[5], sxcc, PFD[1]); A.v_lshrrev_b32(MISC[5], 4, MISC[5]); A.v_xor_b32(MISC[6], sNonce, PFD[0]); A.v_or_b32(MISC[5], MISC[5], MISC[6])
        A.v_cmp_ne_u32('vcc', 0, MISC[5])
    def pf_poll(va):
        L = A.newlabel('pfpoll'); Lx = A.newlabel('pfx')
        A.s_mov_b32(t_s[3], PF_OFF); A.s_mov_b32(sspin, 0)
        A.label(L)
        A.buffer_load_dwordx2(PFD, va, WS, t_s[3], mods='offen sc1')
        A.s_add_u32(sspin, sspin, 1); A.s_cmp_gt_u32(sspin, SPIN); A.s_cbranch_scc1(Lx)
        A.wait_vm(); pf_bad(); A.s_cbranch_vccnz(L)
        A.label(Lx); A.I('s_waitcnt', 'vmcnt(0)')
    stamp('pp')
    pf_poll(vPF0)
    stamp(); stamp('pp')

    class Bulk:
        def __init__(q): q.items = []; q.open = set(); q.quiet = None; q.altc = 0
        def add(q, name, fs, gate, kind, crit=False):
            for f in fs: q.items.append((name, f, gate, kind, crit))
        def gate(q, g): q.open.add(g)
        def ok(q, it): return it[2] is None or it[2] in q.open
        def has(q, name): return any(x[0] == name for x in q.items)
        def predict(q, kind):
            pc, lc, lat = A.COST[kind]
            d = max(A.port, A.t) + lat
            if lc: d = max(d, max(A.link, A.t) + lat)
            return max(d, A.prev)
        def pick(q):
            first = next((k for k, it in enumerate(q.items) if q.ok(it)), None)
            if first is None: return None
            it = q.items[first]
            if it[3] == 'm2' and cfg.alt and A.link - A.t > cfg.altlead:
                k2 = next((k for k, x in enumerate(q.items) if q.ok(x) and x[3] in ('m4', 'hit')), None)
                q.altc += 1
                if k2 is not None and q.altc % cfg.alt == 0: first = k2
            it = q.items[first]
            if not it[4] and q.quiet is not None and q.predict(it[3]) > q.quiet: return None
            return first
        def emit(q, k):
            it = q.items.pop(k); A.label_ = it[0]; it[1](); A.label_ = None
        def pump(q, force=0, maxn=1):
            n = 0
            while n < max(force, maxn):
                if n >= force and A.inflight() >= A.NCAP - cfg.head: return
                k = q.pick()
                if k is None: return
                q.emit(k); n += 1
        def flush(q, name):
            while q.has(name):
                last = max(k for k, x in enumerate(q.items) if x[0] == name)
                k = next(i for i, x in enumerate(q.items[:last + 1]) if x[0] == name or (q.ok(x) and x[4]))
                assert q.ok(q.items[k]), ('gate closed', q.items[k][0], q.items[k][2])
                q.emit(k)
        def need(q, name, get):
            q.flush(name)
            tag = get()
            if tag not in A.vm: return
            if A.done[tag] > A.t + 16:
                while sum(1 for x in A.vm[A.vm.index(tag) + 1:] if x in A.bigs) < A.NCAP - cfg.topup:
                    k = q.pick()
                    if k is None: break
                    q.emit(k)
            A.wait_vm(tag)
        def merge_front(q, crit, keyed):
            pend = [(keyed(it[0]), n, it) for n, it in enumerate(q.items)]
            withk = [(k, 1, n, it) for k, n, it in pend if k is not None] + [(k, 0, n, it) for n, (k, it) in enumerate(crit)]
            withk.sort(key=lambda x: x[:3])
            q.items = [x[3] for x in withk] + [it for k, n, it in pend if k is None]
        def quiet_for(q, name):
            q.quiet = ev_in.get(name, 1 << 60) + cfg.qslack
        def mark(q, name):
            ev[name] = A.t; q.quiet = None
    Q = Bulk()
    sTt = s(93)
    def poll(vaddr, sbase, const, need, dst=None):
        dst = dst or MISC[7]
        L = A.newlabel('poll'); Lx = A.newlabel('pollx')
        A.s_add_u32(t_s[3], sbase, const); A.s_mov_b32(sspin, 0)
        A.label(L)
        A.buffer_load_dword(dst, vaddr, WS, t_s[3], mods='offen sc1')
        A.s_add_u32(sspin, sspin, 1); A.s_cmp_gt_u32(sspin, SPIN); A.s_cbranch_scc1(Lx)
        A.wait_vm()
        A.v_cmp_gt_u32('vcc', need, dst)
        if cfg.psleep:
            A.s_cbranch_vccz(Lx); A.I('s_sleep', cfg.psleep); A.s_branch(L)
        else: A.s_cbranch_vccnz(L)
        A.label(Lx)
        A.I('s_waitcnt', 'vmcnt(0)')
        A.t += 300
    def check_issue(vaddr, sbase, const):
        A.s_add_u32(t_s[3], sbase, const)
        return A.buffer_load_dword(MISC[7], vaddr, WS, t_s[3], mods='offen sc1')
    def check_wait(tag, vaddr, sbase, const, need):
        Lp = A.newlabel('chkpoll'); Lb = A.newlabel('chkok')
        A.wait_vm(tag)
        A.v_cmp_gt_u32('vcc', need, MISC[7]); A.s_cbranch_vccnz(Lp)
        A.label(Lb)
        def slow():
            A.label(Lp); poll(vaddr, sbase, const, need); A.s_branch(Lb)
        tail.append(slow)
    def publish(tag, sidx, const, value):
        Ls = A.newlabel('slow'); Lb = A.newlabel('back')
        A.v_mov_b32(MISC[6], value); A.s_add_u32(t_s[3], sidx, const)
        A.wait_vm(tag)
        A.s_cmp_eq_u32(sfast, 0); A.s_cbranch_scc1(Ls)
        A.buffer_store_dword(MISC[6], vZ, WS, t_s[3], mods='offen')
        A.label(Lb)
        def slow():
            A.label(Ls)
            A.I('buffer_wbl2', mods='sc1'); A.I('s_waitcnt', 'vmcnt(0)')
            A.buffer_store_dword(MISC[6], vZ, WS, t_s[3], mods='offen sc1')
            A.s_branch(Lb)
        tail.append(slow)
    def sync(tag, sidx, const, vpoll):
        Q.pump(force=cfg.win)
        publish(tag, sidx, const, 1)
        if not cfg.win2:
            poll(vpoll, sFl, const, 1); return
        t0_ = A.t
        Q.pump(force=cfg.win2)
        if A.t - t0_ < cfg.flagwait:
            n = (cfg.flagwait - (A.t - t0_)) // 64
            if n: A.I('s_sleep', n); A.t += 64 * n
        tg = check_issue(vpoll, sFl, const)
        Q.pump(force=cfg.win3)
        check_wait(tg, vpoll, sFl, const, 1)
    def touch(vaddr, sbase, const, imm=0):
        def f():
            A.s_add_u32(sTt, sbase, const)
            A.buffer_load_dword(DUMMY, vaddr, WS, sTt, mods=f'offen offset:{imm} sc1', k='touch')
        return f
    def t_O(l): return [touch(x, sOst, B.o(l)) for x in (vOst0, vOst1, vOst2)] if cfg.touch else []
    def t_X(xc, stc): return [touch(vXst0, sXst, xc), touch(vXst0, sXst, xc, 2048), touch(vXst2, sXst, xc), touch(vSTst, sSTst, stc)] if cfg.touch else []
    def t_H(l, p): return [touch(vHst, sHst, B.h(l), p * 1024 + c * 512) for c in range(2)] if cfg.touch else []
    def t_F(va, l, kind): return [touch(va, sFl, flg(l, kind))] if cfg.touch else []
    def spread(sched, items, start, end=None, per=None):
        n = len(items)
        for k, f in enumerate(items):
            idx = start + (k // per if per else (k * (end - start)) // n)
            sched[idx].append(f)
    def V(op, *ops, **kw): return lambda: A.I(op, *ops, **kw)
    def run_valu(fs, every=5):
        for k, f in enumerate(fs):
            f()
            if k % every == every - 1: Q.pump()
    def st_loads(ST, const):
        tag = {}
        def f():
            A.s_add_u32(sTt, sSTu, const)
            for k in range(4): tag[0] = A.buffer_load_dwordx2(ST[2 * k: 2 * k + 2], vSTld, WS, sTt, mods=f'offen offset:{128*k} sc1', k='touch')
        return f, tag
    def rstd_stream(ST, mode):
        S_, Q_, S2, Q2 = ST[0], ST[1], ST[2], ST[3]
        o = [V('v_add_f32', S_, ST[0], ST[2]), V('v_add_f32', Q_, ST[1], ST[3]), V('v_add_f32', ST[4], ST[4], ST[6]), V('v_add_f32', ST[5], ST[5], ST[7]),
             V('v_add_f32', S_, S_, ST[4]), V('v_add_f32', Q_, Q_, ST[5]), V('v_mov_b32', S2, S_), V('v_mov_b32', Q2, Q_),
             V('v_permlane32_swap_b32', S_, S2), V('v_permlane32_swap_b32', Q_, Q2), V('v_add_f32', S_, S_, S2), V('v_add_f32', Q_, Q_, Q2),
             V('v_mul_f32', S_, 0x3acccccd, S_), V('v_mul_f32', Q_, 0x3acccccd, Q_), V('v_fma_f32', Q_, Neg(S_), S_, Q_),
             V('v_max_f32', Q_, 0, Q_), V('v_add_f32', Q_, 0x3727c5ac, Q_)]
        if mode == 'k': o += [V('v_rsq_f32', vrs, Q_), V('v_mul_f32', MISC[0], LOG2E, vrs)]
        else: o += [V('v_rcp_f32', vrs, Q_)]
        return o
    def softmax_stream(P, T, dest):
        sc, mx, mn, sp, sn = MISC[0], MISC[1], MISC[2], MISC[3], MISC[4]
        o = [V('v_max3_f32', mx, P[0], P[1], P[2]), V('v_min3_f32', mn, P[0], P[1], P[2])]
        for k in range(3, 19, 2): o += [V('v_max3_f32', mx, mx, P[k], P[k + 1]), V('v_min3_f32', mn, mn, P[k], P[k + 1])]
        o += [V('v_max_f32', mx, mx, P[19]), V('v_min_f32', mn, mn, P[19]), V('v_mul_f32', mx, sc, mx), V('v_mul_f32', mn, sc, mn)]
        for k in range(20):
            o += [V('v_fma_f32', T[k], P[k], sc, Neg(mx)), V('v_fma_f32', P[k], Neg(P[k]), sc, mn)]
            if k >= 1: o += [V('v_exp_f32', T[k - 1], T[k - 1]), V('v_exp_f32', P[k - 1], P[k - 1])]
            if k == 3: o += [V('v_add_f32', sp, T[0], T[1]), V('v_add_f32', sn, P[0], P[1])]
            if k > 3: o += [V('v_add_f32', sp, sp, T[k - 2]), V('v_add_f32', sn, sn, P[k - 2])]
        o += [V('v_exp_f32', T[19], T[19]), V('v_exp_f32', P[19], P[19]), V('v_add_f32', sp, sp, T[18]), V('v_add_f32', sn, sn, P[18]),
              V('v_add_f32', sp, sp, T[19]), V('v_add_f32', sn, sn, P[19]), V('v_rcp_f32', sp, sp), V('v_rcp_f32', sn, sn)]
        for src, rc, base in ((T, sp, 0), (P, sn, 20)):
            for k in range(0, 20, 2):
                o += [V('v_mul_f32', src[k], rc, src[k]), V('v_mul_f32', src[k + 1], rc, src[k + 1]), V('v_cvt_pk_bf16_f32', dest(base + k), src[k], src[k + 1])]
        return o

    class Stream:
        def __init__(z, name, nchunk, slot, tagd, covered, onbar):
            z.name, z.nchunk, z.slot, z.tagd, z.cov, z.onbar = name, nchunk, slot, tagd, covered, onbar
            z.tags = {}
        def off(z, k): return z.slot[k >> 4] * SLOT + (k & 15) * 1024
        def key(z, name):
            if name.startswith(z.name): return 16 * int(name[len(z.name):]) - cfg.LK
        def barrier(z, idx, need=None):
            c = z.cov
            if need is not None and need > c:
                for cc in range(c + 1, need + 1): Q.flush(f'{z.name}{cc}')
                c = need
            while c + 1 < z.nchunk and 'tag' in z.tagd.get(c + 1, {}) and not Q.has(f'{z.name}{c+1}') and A.done[z.tagd[c + 1]['tag']] <= A.t + 100: c += 1
            if c > z.cov: Q.need(f'{z.name}{c}', lambda: z.tagd[c]['tag'])
            z.cov = c
            A.s_barrier(); z.onbar(idx)
        def rd(z, k, idx):
            if (k >> 4) > z.cov: z.barrier(idx, k >> 4)
            ad, off = lds_addr(z.off(k)); z.tags[k] = A.ds_read_b128(RING[k % 4], ad, mods=f'offset:{off}')
        def run(z, lo, hi, mk, pre, post, total):
            for idx in range(lo, hi):
                for f in pre.get(idx, []): f()
                if idx + 3 < total and (idx + 3) not in z.tags: z.rd(idx + 3, idx)
                A.wait_lg(z.tags[idx])
                mk(idx)
                for f in post.get(idx, []): f()
                Q.pump()

    W2Fs = {0: [a(160 + 4 * k, 4) for k in range(24)] + [a(80, 4)]}; OFs = {0: [a(4 * k, 4) for k in range(20)]}
    if cfg.res4:
        W2Fs[1] = [a(4 * k, 4) for k in range(25)]; OFs[1] = [a(100 + 4 * k, 4) for k in range(15)] + [v(228 + 4 * k, 4) for k in range(5)]
    else: W2Fs[1] = W2Fs[0]; OFs[1] = OFs[0]
    if cfg.res2:
        W4F = [v(152 + 4 * k, 4) for k in range(24)] + [a(4 * k, 4) for k in range(24)] + [v(152 + 4 * k, 4) for k in range(12)]
        HF = [a(96 + 4 * k, 4) for k in range(16)]
        def w4gate(l, k): return f'Ost{l}' if k < 24 else f'xf{l}_{k-24}' if k < 48 else f'p4d{l}_{(k-48)//5}'
    else:
        W4F = [v(152 + 4 * k, 4) for k in range(24)] + [a(160 + 4 * k, 4) for k in range(24)] + [a(4 * k, 4) for k in range(12)]
        HF = [a(48 + 4 * k, 4) for k in range(28)]
        def w4gate(l, k): return (f'p2g{l}' if (cfg.res4 and l and k >= 19) else f'Ost{l}') if k < 24 else f'p2g{l}' if k < 48 else f'xf{l}_{k-48}'
    NH = len(HF) // 4
    p4order = [3 * jj + p for p in range(3) for jj in range(4)]
    w3slot = {0: 3, 1: 4, 2: 5, 3: 0, 4: 1, 5: 2, 6: 6, 7: 7, 8: 8, 9: 9, 10: 3, 11: 4, 12: 5, 13: 0, 14: 1}
    w1slot = {c: c for c in range(10)}
    w3tag = {}; w1tags = {0: {}, 1: {}}
    def q_w3(l, c, gate):
        fl, res = dma_chunk(sW3, c, w3slot[c]); w3tag[c] = res; Q.add(f'W3_{l}_{c}', fl, gate, 'm2')
    def q_w1(l, c, gate):
        fl, res = dma_chunk(sW1, c, c, vT if (cfg.pad and c >= 8) else None); w1tags[l][c] = res; Q.add(f'W1_{l}_{c}', fl, gate, 'm2')
    def wloads(frags, sbase, order):
        tags = {}
        def mk(ri, mi):
            def f():
                setreg(sBk, sbase, (mi >> 2) * 4096)
                tags[ri] = A.buffer_load_dwordx4(frags[ri], L16, WS, sBk, mods=f'offen offset:{(mi & 3)*1024}', k='m4')
            return f
        return [mk(ri, mi) for ri, mi in order], tags
    wt = {}
    def enqueue(l):
        for c in (range(10) if l == 0 else (8, 9)): q_w1(l, c, None if l == 0 else 'RD4')
        Q.add(f'tO{l}', t_O(l), 'prol', 'touch')
        w2l, wt['w2'] = wloads(W2Fs[l], sW2, [(k, k) for k in range(25)])
        if not (cfg.res2 and l): Q.add(f'W2_{l}', w2l[:24], (f't3done{l}' if cfg.res4 else None) if l else 'prep', 'm4')
        else: wt['w2'].update({k: -1 for k in range(24)})
        Q.add(f'W2_{l}', w2l[24:], f't3done{l}', 'm4')
        if l == 0 and not cfg.hsc1: Q.add('tH0', t_H(0, 0) + t_H(0, 1) + t_H(0, 2), cfg.th0gate, 'touch')
        if l == 0:
            def ldres(k):
                def f():
                    A.s_add_u32(sTt, sXst, B.xa(0))
                    if k < 2: A.buffer_load_dwordx4(RES[10 + 4 * k: 14 + 4 * k], vXst0, WS, sTt, mods=f'offen offset:{2048*k} sc1')
                    else: wt['res'] = A.buffer_load_dwordx2(RES[18:20], vXst2, WS, sTt, mods='offen sc1', k='hit')
                return f
            Q.add('RES', [ldres(k) for k in range(3)], 'prep', 'hit')
        Q.add(f'tX{l}', (t_X(B.xb(l), B.stb(l)) if (l or not cfg.alias) else t_X(B.xb(l), B.stb(l))[3:]) + t_F(vFlA, l, K_O), f't3done{l}', 'touch')
        for c in (0, 1): q_w3(l, c, f'B1_{l}')
        q_w3(l, 2, f'B2_{l}')
        for c in (3, 4, 5): q_w3(l, c, f'B3_{l}')
        hs = cfg.hsc1 and l == 0
        Q.add(f'tH{l}a', ([] if hs else t_H(l, 0)) + t_F(vFlB, l, K_XB), f'p2s{l}', 'touch')
        for c in (6, 7, 8, 9): q_w3(l, c, f'RD2_{l}')
        Q.add(f'tH{l}b', ([] if hs else t_H(l, 1) + t_H(l, 2)) + t_F(vFlA, l, K_H), f'p3f{l}_14', 'touch')
        for c in range(10, 15): q_w3(l, c, f'p3f{l}_{c}')
        order = [(5 * n + ft, 5 * p4order[n] + ft) for n in range(12) for ft in range(5)]
        w4l, wt['w4'] = wloads(W4F, sW4, order)
        for k, f in enumerate(w4l):
            if cfg.res4 and l and 24 <= k < 48: wt['w4'][k] = -1
            else: Q.add(f'W4_{l}_{k // 5}', [f], w4gate(l, k), 'm4')
        if l == 0:
            Q.add('tX1', t_X(B.xa(1), B.sta(1)) + t_F(vFlB, 1, K_XA), 'p4m', 'touch')
            for c in range(8): q_w1(1, c, 'p4s' if c < 6 else 'RD4')

    def p1(l):
        A.cmt(f'======== P1 layer {l}')
        acc = [ACC[16 * t: 16 * t + 16] for t in range(4)]
        enqueue(l)
        xl, xt = xloads(B.xa(l), 'hit' if l else 'm4')
        ST = PR[0:8]
        ldst, sttag = st_loads(ST, B.sta(l))
        pre, post = defaultdict(list), defaultdict(list)
        xid = {}
        def onbar(idx):
            if idx >= 80: Q.gate(f'B1_{l}')
        Z = Stream(f'W1_{l}_', 10, w1slot, w1tags[l], -1, onbar)
        Q.merge_front([(2 * s_, (f'X{s_}', xl[s_], None, 'hit', True)) for s_ in range(40)] + [(60, ('ST', ldst, 'prol', 'touch', True))], Z.key)
        Q.pump(maxn=A.NCAP)
        def mf(idx):
            if idx < 80: t, s_ = idx & 1, idx >> 1
            else: t, s_ = divmod(idx - 80, 40); t += 2
            if idx < 80 and t == 0: Q.need(f'X{s_}', lambda: xt[s_])
            if cfg.fake16 > 1:
                for u in range(2):
                    d = acc[t][8 * (s_ & 1) + 4 * u: 8 * (s_ & 1) + 4 * u + 4]
                    A.v_mfma_f32_16x16x32_bf16(d, RING[idx % 4], XF[max(s_ - u, 0)], d if s_ > 1 else 0)
                return
            A.v_mfma_f32_32x32x16_bf16(acc[t], RING[idx % 4], XF[s_], acc[t] if s_ else 0)
        for k in range(3): Z.rd(k, 0)
        if l == 0:
            spread(post, deferred, 0, cfg.pfat - 26); post[cfg.pfat - 26].append(lambda: Q.gate('prol'))
            def pf_issue():
                A.s_mov_b32(t_s[3], PF_OFF); xid['tag'] = A.buffer_load_dwordx2(PFD, vPF1, WS, t_s[3], mods='offen sc1', k='touch')
            def pf_check():
                Lp = A.newlabel('pf1poll'); Lb = A.newlabel('pf1ok')
                A.wait_vm(xid['tag']); pf_bad(); A.s_cbranch_vccnz(Lp); A.label(Lb)
                def slow(): A.label(Lp); pf_poll(vPF1); A.s_branch(Lb)
                tail.append(slow)
                A.v_cmp_ne_u32('vcc', sxcc, PFD[1]); A.s_and_b32(t_s[3], 'vcc_lo', 0xffff); A.s_cmp_eq_u32(t_s[3], 0); A.s_cselect_b32(sfast, 1, 0)
            post[cfg.pfat - 24].append(pf_issue)
            pre[cfg.pfat].append(lambda: (pf_check(), Z.barrier(cfg.pfat), Q.gate('prep')))
        pre[84].append(lambda: Z.barrier(84))
        Pk = [acc[0][k] for k in range(16)] + [acc[1][k] for k in range(4)]
        Tk = [PR[8 + k] for k in range(20)]
        spread(post, [lambda: Q.need('ST', lambda: sttag[0])] + rstd_stream(ST, 'k'), 74, 80)
        sm = softmax_stream(Pk, Tk, lambda f: TB[f >> 1])
        Vv = [acc[1][4 + k] for k in range(12)] + [acc[2][k] for k in range(8)]
        def vpack(k0, k1):
            o = []
            for k in range(k0, k1, 2):
                o += [V('v_mul_f32', Vv[k], vrs, Vv[k]), V('v_mul_f32', Vv[k + 1], vrs, Vv[k + 1]), V('v_cvt_pk_bf16_f32', TB[20 + (k >> 1)], Vv[k], Vv[k + 1])]
            return o
        def trw(k): return lambda: A.ds_write_b128(vTRw, TB[4 * k: 4 * k + 4], mods=f'offset:{TR + 16*k}')
        extra = vpack(0, 12) + [V('v_mov_b32', TB[30], 0x3f80), V('v_mov_b32', TB[31], 0)]
        nsh = 150
        spread(post, sm[:nsh], 81, 120)
        stamp('p1')
        for idx in (10, 20, 30, 40, 50, 60, 70, 80, 90, 100, 110): pre[idx].insert(0, lambda: stamp('p1'))
        Z.run(0, 120, mf, pre, post, 120)
        stamp('p1')
        rem = sm[nsh:]; seq = []
        n_after = {len(rem) - 48: 0, len(rem) - 36: 1, len(rem) - 24: 2, len(rem) - 12: 3}
        for k, f in enumerate(rem):
            if k in n_after: seq.append(trw(n_after[k]))
            seq.append(f)
        seq += [trw(4)] + extra + [trw(5)] + vpack(12, 20) + [trw(6), trw(7)]
        run_valu(seq)
        A.wait_lg(); Z.barrier(120, 7); Q.gate(f'B2_{l}')
        stamp('p1')
        stamp()
        kacc = [acc[0][4 * ft: 4 * ft + 4] for ft in range(3)]
        KB = [PR[0:16], PR[16:32], PR[32:48], PR[48:64]]
        ktag = {}
        for ks in range(4):
            for u in range(2): A.ds_read_b64_tr_b16(KB[ks][12 + 2 * u: 14 + 2 * u], vTRb, mods=f'offset:{TR + 5120*ks + 2560*u}')
            for ft in range(3):
                for u in range(2): ktag[ks, ft] = A.ds_read_b64_tr_b16(KB[ks][4 * ft + 2 * u: 4 * ft + 2 * u + 2], vTRa, mods=f'offset:{TR + 5120*ks + 2560*u + 32*ft}')
            if ks >= 1:
                for ft in range(3):
                    A.wait_lg(ktag[ks - 1, ft]); A.v_mfma_f32_16x16x32_bf16(kacc[ft], KB[ks - 1][4 * ft: 4 * ft + 4], KB[ks - 1][12:16], kacc[ft] if ks > 1 else 0)
            Q.pump()
        for ft in range(3):
            A.wait_lg(ktag[3, ft]); A.v_mfma_f32_16x16x32_bf16(kacc[ft], KB[3][4 * ft: 4 * ft + 4], KB[3][12:16], kacc[ft])
        for k in range(120, 123): Z.rd(k, 120)
        KP = acc[1][0:6]
        for k in range(6): A.v_cvt_pk_bf16_f32(KP[k], acc[0][2 * k], acc[0][2 * k + 1])
        for k in range(6): A.v_min_u32(KP[k], 0xfffffffe, KP[k])
        A.s_add_u32(t_s[2], sKVw, KVP_OFF + l * KV_SZ)
        A.buffer_store_dwordx4(KP[0:4], vKVst0, WS, t_s[2], mods='offen sc1')
        A.buffer_store_dwordx2(KP[4:6], vKVst1, WS, t_s[2], mods='offen sc1')
        stamp()
        pre, post = defaultdict(list), defaultdict(list)
        PRF = [PR[4 * k: 4 * k + 4] for k in range(16)]; ptag = {}
        def pld(k):
            def f():
                if k == 0: Q.mark(f'kvld{l}')
                setreg(so, sKVr, KVP_OFF + l * KV_SZ + k * KV_SLOT)
                ptag[k] = A.buffer_load_dwordx4(PRF[k], vKVld, WS, so, mods='offen sc1', k='kv')
            return f
        pl = [pld(k) for k in range(16)]
        Q.quiet_for(f'kvld{l}'); Q.quiet += cfg.kvq
        Q.items = [(f'KV{k}', f, f'kvgo{l}', 'kv', True) for k, f in enumerate(pl)] + Q.items
        def kvgo(): Q.gate(f'kvgo{l}'); Q.quiet = None
        pre[cfg.kvld_at].append(kvgo)
        Z.run(120, 160, mf, pre, post, 160)
        Q.gate(f't3done{l}')
        Q.quiet_for(f'Ost{l}')
        Pq = [acc[2][8 + k] for k in range(8)] + [acc[3][k] for k in range(12)]
        Tq = [acc[1][k] for k in range(16)] + [acc[0][k] for k in range(4)]
        def qdest(f): return TB[4 * ((f & 15) >> 2) + 2 * (f >> 4) + ((f & 3) >> 1)] if f < 32 else TB[16 + ((f - 32) >> 1)]
        for k, f in enumerate(softmax_stream(Pq, Tq, qdest)):
            f()
            if k % 5 == 4: Q.pump()
        Q.flush('KV15'); Q.pump(maxn=A.NCAP)
        stamp()
        Lre = A.newlabel('kvre'); Lrt = A.newlabel('kvretry')
        RACC = v(136, 16); mxu = MISC[5]
        A.s_mov_b32(sspin, 0)
        A.label(Lre); cache.clear()
        for k in range(16):
            if cfg.rpump: Q.need(None, lambda: ptag[k])
            else: A.wait_vm(ptag[k])
            A.v_mfma_f32_32x32x16_bf16(RACC, SEL, PRF[k], RACC if k else 0)
            if cfg.rpump: Q.pump()
            if k == 0: A.v_max_u32(mxu, PRF[0][0], PRF[0][1])
            else: A.v_max3_u32(mxu, mxu, PRF[k][0], PRF[k][1])
            A.v_max3_u32(mxu, mxu, PRF[k][2], PRF[k][3])
        A.v_cmp_eq_u32('vcc', -1, mxu)
        A.s_cbranch_vccnz(Lrt)
        Lok = A.newlabel('kvok'); A.label(Lok)
        def retry():
            A.label(Lrt); Lp = A.newlabel('kvlight')
            A.v_and_b32(MISC[5], 0xf0, L16); A.v_mul_u32_u24(MISC[5], KV_SLOT // 16, MISC[5]); A.s_lshl_b32(t_s[3], w, 10); A.v_add_u32(MISC[5], t_s[3], MISC[5])
            A.s_add_u32(t_s[3], sKVr, KVP_OFF + l * KV_SZ)
            A.label(Lp)
            A.s_add_u32(sspin, sspin, 1); A.s_cmp_gt_u32(sspin, SPIN); A.s_cbranch_scc1(Lok)
            A.I('s_sleep', 2)
            A.buffer_load_dword(MISC[6], MISC[5], WS, t_s[3], mods='offen sc1'); A.I('s_waitcnt', 'vmcnt(0)')
            A.v_cmp_eq_u32('vcc', -1, MISC[6]); A.s_cbranch_vccnz(Lp)
            for k in range(16):
                A.s_add_u32(t_s[3], sKVr, KVP_OFF + l * KV_SZ + k * KV_SLOT)
                A.buffer_load_dwordx4(PRF[k], vKVld, WS, t_s[3], mods='offen sc1')
            A.I('s_waitcnt', 'vmcnt(0)')
            A.s_branch(Lre)
        tail.append(retry)
        for k in range(4): A.v_cvt_pk_bf16_f32(MISC[k], RACC[2 * k], RACC[2 * k + 1])
        A.ds_write_b128(vKBw, MISC[0:4])
        Q.pump()
        A.wait_lg(); A.s_barrier(); Q.gate(f'B3_{l}')
        stamp()
        otag = {}
        for T_ in (1, 0):
            for s_ in range(5): otag[T_, s_] = A.ds_read_b128(PRF[5 * T_ + s_], (vKBr0, vKBr1)[T_], mods=f'offset:{16*s_}')
        oacc = [acc[0], acc[1]]
        for T_ in (1, 0):
            for s_ in range(5):
                A.wait_lg(otag[T_, s_])
                A.v_mfma_f32_32x32x16_bf16(oacc[T_], PRF[5 * T_ + s_], TB[4 * s_: 4 * s_ + 4], oacc[T_] if s_ else 0)
                Q.pump()
        den = MISC[1]
        A.v_add_f32(den, 0x358637bd, oacc[1][4]); A.v_rcp_f32(den, den)
        Ov = [oacc[0][k] for k in range(16)] + [oacc[1][k] for k in range(4)]
        OP = v(136, 10)
        A.s_add_u32(t_s[2], sOst, B.o(l))
        for k in list(range(16, 20, 2)) + list(range(0, 16, 2)):
            A.v_mul_f32(Ov[k], den, Ov[k]); A.v_mul_f32(Ov[k + 1], den, Ov[k + 1]); A.v_cvt_pk_bf16_f32(OP[k >> 1], Ov[k], Ov[k + 1])
            if k == 18: A.buffer_store_dwordx2(OP[8:10], vOst2, WS, t_s[2], mods='offen', k='st')
            if k == 6: A.buffer_store_dwordx4(OP[0:4], vOst0, WS, t_s[2], mods='offen')
            if k == 14: last = A.buffer_store_dwordx4(OP[4:8], vOst1, WS, t_s[2], mods='offen')
        Q.mark(f'Ost{l}'); Q.gate(f'Ost{l}')
        Q.flush(f'W2_{l}')
        if l == 0:
            Q.need('RES', lambda: wt['res'])
            for k in range(10):
                A.v_lshlrev_b32(RES[2 * k], 16, RES[10 + k]); A.v_and_b32(RES[2 * k + 1], 0xffff0000, RES[10 + k])
        stamp()
        sync(last, sFlW1, flg(l, K_O), vFlA)
        stamp()

    def ksplit_gemm(nsteps, WF, wneed, AF, aneed, sched):
        acc = [[ACC[20 * tau + 4 * ft: 20 * tau + 4 * ft + 4] for ft in range(5)] for tau in range(4)]
        def mf(n, tau, ft):
            if ft == 0: aneed(n, tau)
            wneed(n, ft)
            A.v_mfma_f32_16x16x32_bf16(acc[tau][ft], WF(n, ft), AF(n, tau), acc[tau][ft] if n else 0)
        def hook(key):
            if nsteps == 12 and key[1:] == (3, 4): stamp('p4')
            for f in sched.get(key, []): f()
            if key[2] in (0, 2, 4): Q.pump()
        for n in range(nsteps - 2):
            for tau in range(4):
                for ft in range(5):
                    mf(n, tau, ft); hook((n, tau, ft))
        pend = []
        for ti, tau in enumerate((1, 2, 3, 0)):
            for n in (nsteps - 2, nsteps - 1):
                for ft in range(5):
                    mf(n, tau, ft)
                    k = (n - nsteps + 2) * 5 + ft
                    if k % 2 == 1 and pend: pend.pop(0)()
                    hook((nsteps - 2 + (ti >> 1), 2 * (ti & 1) + (n - nsteps + 2), ft))
            if tau: pend += [(lambda tau=tau, ft=ft: A.ds_write_b128(vRDw[tau], acc[tau][ft], mods=f'offset:{ft*1024}')) for ft in range(5)]
        for f in pend: f()
        return acc
    def reduce_epilogue(acc, final, xconst, stconst, flagconst, evname, gate):
        if cfg.rpump: Q.pump(maxn=3)
        A.wait_lg(); A.s_barrier()
        rt = {}
        for ft in range(5):
            for k in range(3): rt[ft] = A.ds_read_b128(acc[k + 1][ft], vRDr, mods=f'offset:{k*5120 + ft*1024}')
        for ft in range(5):
            for e in range(0, 4, 2): A.v_pk_add_f32(RES[4 * ft + e: 4 * ft + e + 2], RES[4 * ft + e: 4 * ft + e + 2], acc[0][ft][e:e + 2])
        XP = ACC[0:10]; S2, Q2 = ACC[10:12], ACC[12:14]
        if not final: A.s_add_u32(t_s[2], sXst, xconst)
        for ft in range(5):
            if cfg.rpump: Q.pump(maxn=2)
            A.wait_lg(rt[ft])
            for e in range(0, 4, 2):
                R2 = RES[4 * ft + e: 4 * ft + e + 2]
                A.v_pk_add_f32(acc[1][ft][e:e + 2], acc[1][ft][e:e + 2], acc[2][ft][e:e + 2])
                A.v_pk_add_f32(R2, R2, acc[3][ft][e:e + 2])
            for e in range(0, 4, 2):
                R2 = RES[4 * ft + e: 4 * ft + e + 2]
                A.v_pk_add_f32(R2, R2, acc[1][ft][e:e + 2])
            for e in range(0, 4, 2): A.v_cvt_pk_bf16_f32(XP[2 * ft + (e >> 1)], RES[4 * ft + e], RES[4 * ft + e + 1])
            if final:
                om = ['', ' sc1', ' nt', ' sc0 sc1'][cfg.osc]
                if ft == 1: A.buffer_store_dwordx4(XP[0:4], vOUT0, OUT, 0, mods='offen' + om)
                if ft == 3: A.buffer_store_dwordx4(XP[4:8], vOUT0, OUT, 0, mods='offen offset:64' + om)
                if ft == 4: A.buffer_store_dwordx2(XP[8:10], vOUT2, OUT, 0, mods='offen' + om)
                continue
            if ft == 1: A.buffer_store_dwordx4(XP[0:4], vXst0, WS, t_s[2], mods='offen')
            if ft == 3: A.buffer_store_dwordx4(XP[4:8], vXst0, WS, t_s[2], mods='offen offset:2048')
            if ft == 4:
                A.buffer_store_dwordx2(XP[8:10], vXst2, WS, t_s[2], mods='offen', k='st')
                A.s_barrier(); Q.gate(gate)
            R0, R1 = RES[4 * ft: 4 * ft + 2], RES[4 * ft + 2: 4 * ft + 4]
            if ft == 0:
                A.v_pk_add_f32(S2, R0, R1); A.v_pk_mul_f32(Q2, R0, R0)
            else:
                A.v_pk_add_f32(S2, S2, R0); A.v_pk_fma_f32(Q2, R0, R0, Q2); A.v_pk_add_f32(S2, S2, R1)
            A.v_pk_fma_f32(Q2, R1, R1, Q2)
        if final: return
        A.v_add_f32(S2[0], S2[0], S2[1]); A.v_add_f32(Q2[0], Q2[0], Q2[1])
        A.s_add_u32(t_s[2], sSTst, stconst)
        A.v_permlane32_swap_b32(S2[0], Q2[0]); A.v_add_f32(S2[0], S2[0], Q2[0]); A.v_mov_b32(S2[1], S2[0])
        A.v_permlane16_swap_b32(S2[0], S2[1]); A.v_add_f32(S2[0], S2[0], S2[1])
        last = A.buffer_store_dword(S2[0], vSTst, WS, t_s[2], mods='offen', k='st')
        Q.mark(evname)
        stamp()
        sync(last, sFlW2, flagconst, vFlB)
    def slots(n0, n1, fts):
        return [(n, tau, ft) for n in range(n0, n1) for tau in range(4) for ft in fts]
    def put(sched, items, sl):
        assert len(items) <= len(sl), (len(items), len(sl))
        for k, f in enumerate(items): sched[sl[(k * len(sl)) // len(items)]].append(f)

    def p2(l):
        A.cmt(f'======== P2 layer {l}')
        atag = {}
        def aload(n, tau):
            def f():
                setreg(so, sOld[tau], B.o(l) + (n >> 2) * 4096)
                atag[n, tau] = A.buffer_load_dwordx4(OFs[l][4 * n + tau], L16, WS, so, mods=f'offen offset:{(n & 3)*1024} sc1')
            return f
        Q.items = [(f'O{n}_{tau}', aload(n, tau), None, 'hit', True) for n in range(5) for tau in ((0, 1, 2, 3) if n < 3 else (1, 2, 3, 0))] + Q.items
        Q.gate(f'p2s{l}'); Q.quiet_for(f'XBst{l}')
        Q.pump(maxn=A.NCAP)
        acc = ksplit_gemm(5, lambda n, ft: W2Fs[l][5 * n + ft], lambda n, ft: A.wait_vm(wt['w2'][5 * n + ft]), lambda n, tau: OFs[l][4 * n + tau],
                          lambda n, tau: Q.need(f'O{n}_{tau}', lambda: atag[n, tau]), {})
        Q.gate(f'p2g{l}')
        stamp()
        reduce_epilogue(acc, False, B.xb(l), B.stb(l), flg(l, K_XB), f'XBst{l}', f'RD2_{l}')
        stamp()

    def p34(l):
        A.cmt(f'======== P3 layer {l}')
        acc = [[ACC[32 * u + 16 * gu: 32 * u + 16 * gu + 16] for gu in range(2)] for u in range(2)]
        xl, xt = xloads(B.xb(l))
        ST = v(136, 8)
        ldst, sttag = st_loads(ST, B.stb(l))
        pre, post = defaultdict(list), defaultdict(list)
        def onbar(idx):
            for c in range(10, 15):
                if idx >= 16 * (c - 10 + 1): Q.gate(f'p3f{l}_{c}')
        Z = Stream(f'W3_{l}_', 15, w3slot, w3tag, -1, onbar)
        Q.merge_front([(2 * s_, (f'X{s_}', xl[s_], None, 'hit', True)) for s_ in range(40)] + [(60, ('ST', ldst, None, 'touch', True))], Z.key)
        Q.pump(maxn=A.NCAP)
        def mf(idx):
            p, rem = divmod(idx, 80); s_, gu = rem >> 1, rem & 1
            if idx < 80 and gu == 0: Q.need(f'X{s_}', lambda: xt[s_])
            ac = acc[p & 1][gu]
            if cfg.fake16:
                for u in range(2):
                    d = ac[8 * (s_ & 1) + 4 * u: 8 * (s_ & 1) + 4 * u + 4]
                    A.v_mfma_f32_16x16x32_bf16(d, RING[idx % 4], XF[max(s_ - u, 0)], d if s_ > 1 else 0)
                return
            A.v_mfma_f32_32x32x16_bf16(ac, RING[idx % 4], XF[s_], ac if s_ else 0)
        for k in range(3): Z.rd(k, 0)
        pre[84].append(lambda: Z.barrier(84))
        for m_ in range(24): pre[162 + 2 * m_].append(lambda m_=m_: Q.gate(f'xf{l}_{m_}'))
        spread(post, [lambda: Q.need('ST', lambda: sttag[0])] + rstd_stream(ST, 'sq'), 74, 80)
        HP = [v(144, 4), v(148, 4)]
        htag = {}
        def epi(p):
            G, U = acc[p & 1]; o = []
            for c in range(2):
                for k in range(8 * c, 8 * c + 8, 2):
                    o += [V('v_max_f32', G[k], 0, G[k]), V('v_max_f32', G[k + 1], 0, G[k + 1]), V('v_mul_f32', U[k], vrs, U[k]), V('v_mul_f32', U[k + 1], vrs, U[k + 1]),
                          V('v_mul_f32', G[k], G[k], U[k]), V('v_mul_f32', G[k + 1], G[k + 1], U[k + 1]), V('v_cvt_pk_bf16_f32', HP[c][(k & 7) >> 1], G[k], G[k + 1])]
                def st(c=c):
                    A.s_add_u32(t_s[2], sHst, B.h(l))
                    htag[p] = A.buffer_store_dwordx4(HP[c], vHst, WS, t_s[2], mods=f'offen offset:{p*1024 + c*512}' + (' sc1' if cfg.hsc1 and l == 0 else ''))
                o.append(st)
            return o
        spread(post, epi(0), 82, 112)
        spread(post, epi(1), 162, 178)
        chk = {}
        post[204].append(lambda: publish(htag[1], sFlW1, flg(l, K_H), 2))
        post[226].append(lambda: chk.__setitem__(2, check_issue(vFlA, sFl, flg(l, K_H))))
        stamp('p3')
        for idx in (20, 40, 60, 80, 100, 120, 140, 160, 180, 200, 220): pre[idx].insert(0, lambda: stamp('p3'))
        Z.run(0, 240, mf, pre, post, 240)
        stamp('p3')
        stamp()
        atag = {}
        def aload(n, tau):
            def f():
                ms = p4order[n]
                setreg(so, sHld[tau], B.h(l) + (ms >> 2) * 4096)
                atag[n, tau] = A.buffer_load_dwordx4(HF[(4 * n + tau) % len(HF)], L16, WS, so, mods=f'offen offset:{(ms & 3)*1024} sc1')
            return f
        sched = defaultdict(list)
        check_wait(chk[2], vFlA, sFl, flg(l, K_H), 2)
        def hgate(n): return None if n < NH else f'h{l}_{n}'
        Q.merge_front([(2 * n + 1, (f'H{n}_{tau}', aload(n, tau), hgate(n), 'hit', True)) for n in range(12) for tau in ((0, 1, 2, 3) if n < 10 else (1, 2, 3, 0))],
                      lambda name: 2 * int(name.split('_')[2]) if name.startswith(f'W4_{l}_') else None)
        run_valu(epi(2), 4)
        stamp()
        A.cmt(f'======== P4 layer {l}'); stamp('p4')
        sched[(cfg.pub3, 1, 2)].append(lambda: publish(htag[2], sFlW1, flg(l, K_H), 3))
        sched[(cfg.pub3 + 1, 3, 2)].append(lambda: chk.__setitem__(3, check_issue(vFlA, sFl, flg(l, K_H))))
        st8 = {'ok': False}
        def stepdone(n):
            Q.gate(f'p4d{l}_{n}')
            for m_ in range(NH, 12):
                if m_ - NH <= n and (m_ < 8 or st8['ok']): Q.gate(f'h{l}_{m_}')
        for n in range(9): sched[(n, 3, 4)].append(lambda n=n: stepdone(n))
        def open8():
            check_wait(chk[3], vFlA, sFl, flg(l, K_H), 3); st8['ok'] = True
        sched[(cfg.pub3 + 2, 3, 4)].insert(0, open8)
        if l == 1 and cfg.wb:
            def wb():
                L = A.newlabel('nowb')
                while Q.items: Q.emit(0)
                A.wait_vm()
                if cfg.wb == 1: A.s_cmp_lg_u32(sFlW1, sFl); A.s_cbranch_scc1(L)
                if cfg.wb == 2: A.s_cmp_lg_u32(w, 0); A.s_cbranch_scc1(L)
                vm = list(A.vm); A.I('buffer_wbl2', mods='sc1'); A.vm = vm
                A.label(L)
            sched[(cfg.wbat, 3, 4)].append(wb)
        if l == 0:
            A.s_barrier(); Q.gate('p4s'); sched[(6, 0, 1)].append(lambda: Q.gate('p4m'))
            Q.quiet_for('XAst')
        acc = ksplit_gemm(12, lambda n, ft: W4F[5 * n + ft], lambda n, ft: Q.need(f'W4_{l}_{n}', lambda: wt['w4'][5 * n + ft]),
                          lambda n, tau: HF[(4 * n + tau) % len(HF)], lambda n, tau: Q.need(f'H{n}_{tau}', lambda: atag[n, tau]), sched)
        stamp()
        reduce_epilogue(acc, l == 1, B.xa(l + 1), B.sta(l + 1), flg(l + 1, K_XA) if l == 0 else None, 'XAst', 'RD4')
        stamp()
    for l in range(2):
        p1(l); p2(l); p34(l)
    assert not Q.items, [x[0] for x in Q.items]
    ev['end'] = A.t
    if cfg.diag:
        A.I('s_waitcnt', 'vmcnt(0)'); stamp('always')
        A.s_memrealtime(s(98, 2)); A.wait_lg()
        n = nstamp[0]
        A.s_lshl_b32(t_s[0], b, 10); A.s_lshl_b32(t_s[1], w, 8); A.s_add_u32(t_s[0], t_s[0], t_s[1]); A.s_add_u32(t_s[0], t_s[0], DBG_OFF)
        if cfg.hdbg:
            Lh = A.newlabel('hd'); A.s_cmp_lg_u32(b, cfg.hdbg - 1); A.s_cbranch_scc1(Lh); A.s_cmp_lg_u32(w, 0); A.s_cbranch_scc1(Lh)
            sel = [1, 3, 4, 7, 9, 12, 13, 15, 17, 18, 23, 26, 27, n - 1]
            for k, x in enumerate(sel):
                A.s_sub_u32(t_s[1], STAMPS[x], STAMPS[0]); A.v_mov_b32(MISC[0], t_s[1])
                A.buffer_store_dword(MISC[0], vZ, DBG, 0, mods=f'offen offset:{4*(k+1)}')
            A.s_sub_u32(t_s[1], s(98), s(96)); A.v_mov_b32(MISC[0], t_s[1])
            A.buffer_store_dword(MISC[0], vZ, DBG, 0, mods='offen offset:60')
            A.label(Lh)
        for k, sr in enumerate(STAMPS[:n] + [s(96), s(98), sfast]):
            A.v_mov_b32(MISC[0], sr)
            A.buffer_store_dword(MISC[0], vZ, WS, t_s[0], mods=f'offen offset:{4*(k if k < n else 40 + k - n)}')
    A.label('M_end')
    A.s_endpgm()
    k = 0
    evs = dict(ev); evs['trace'] = list(A.trace)
    while k < len(tail):
        A.vm = []; A.lg = []; tail[k](); k += 1
    A.label('M_codeend'); A.s_endpgm()
    nn = A.finalize()
    return A, nn, nstamp[0], evs
def gen_iter(cfg):
    ev = None
    class ND(cfg): diag = False
    for it in range(4): _, _, _, ev = gen_main(ND, ev)
    A, nn, ns, ev2 = gen_main(cfg, ev)
    return A, nn, ns, ev
```

```python
from asmlib import *
from layout import *

N_W1, N_W3, N_X, N_W24 = 48, 96, 64, 46
B_W3 = N_W1; B_X = B_W3 + N_W3; B_W24 = B_X + N_X; B_END = B_W24 + N_W24; PRE_GRID = 256
PRE_LDS = 81920 + 4096
PHI_LDS = 61440

def srd(A, d, ptr, size):
    A.s_mov_b32(d[0], ptr[0]); A.s_mov_b32(d[1], ptr[1]); A.s_mov_b32(d[2], size); A.s_mov_b32(d[3], 0x20000)

def sel_frag(A, dst, idx, t0, t1):
    A.v_and_b32(t0, 1, idx); A.v_lshlrev_b32(t0, 4, t0); A.v_mov_b32(t1, 0x3f80); A.v_lshlrev_b32(t0, t0, t1)
    A.v_ashrrev_i32(t1, 1, idx)
    for n in range(4):
        A.v_cmp_eq_u32('vcc', n, t1)
        A.v_cndmask_b32(dst[n], 0, t0, 'vcc')

def emit_prep(A, fill, after_karg, SC=' sc1', pstamp=lambda k: None, HELP=1, NT=0, SC2=' sc1'):
    nt = lambda bit: ' nt' if NT >> bit & 1 else ''
    diag = False
    def end():
        A.s_branch('PP_done'); A.vm = []; A.lg = []
    def stamp(): pstamp(1)
    P = s(40, 16); PX, PQKV, PPHI, PWO, PWG, PWU, PWD = P[0:2], P[2:4], P[4:6], P[6:8], P[10:12], P[12:14], P[14:16]
    PWS = s(62, 2)
    WS, SRC, PHI = s(8, 4), s(12, 4), s(16, 4)
    b, w = s(2), s(20)
    A.s_load_dwordx16(P, s(0, 2), 0); A.s_load_dwordx4(s(56, 4), s(0, 2), 64); A.s_load_dwordx2(PWS, s(0, 2), 80)
    tid, lane, l16, m, hf, g, h, r, pm = v(0), v(1), v(2), v(3), v(4), v(5), v(6), v(7), v(8)
    t0, t1, t2, t3 = v(9), v(10), v(11), v(12)
    A.v_and_b32(lane, 63, tid); A.v_lshlrev_b32(l16, 4, lane)
    A.v_lshrrev_b32(t0, 6, tid); A.v_and_b32(m, 31, tid); A.v_readfirstlane_b32(w, t0)
    A.v_lshrrev_b32(hf, 5, lane); A.v_lshrrev_b32(g, 3, m); A.v_bfe_u32(h, m, 2, 1); A.v_and_b32(r, 3, m)
    A.v_and_b32(pm, 0x13, m); A.v_lshl_or_b32(pm, h, 3, pm); A.v_bfe_u32(t0, m, 3, 1); A.v_lshl_or_b32(pm, t0, 2, pm)
    def head():
        A.lg = ['smem']; A.wait_lg()
        srd(A, WS, PWS, WS_USED)
        after_karg()
    sj, st, so, sb, sstr, sm0 = s(21), s(22), s(23), s(24), s(25), s(30)
    def helper(rank_base, bbase):
        if not HELP: return
        srd(A, PHI, PQKV, D * 3 * D * 2)
        A.s_sub_u32(s(26), b, bbase); A.s_lshr_b32(s(26), s(26), 3); A.s_add_u32(s(26), s(26), rank_base); A.s_lshl_b32(s(26), s(26), 8)
        A.v_add_u32(t0, s(26), tid); A.v_mul_u32_u24(t1, 10923, t0); A.v_lshrrev_b32(t1, 16, t1)
        A.v_mul_u32_u24(t2, 6, t1); A.v_sub_u32(t2, t0, t2); A.v_lshrrev_b32(t3, 1, t2); A.v_mul_u32_u24(t3, 1280, t3)
        A.v_and_b32(t2, 1, t2); A.v_lshl_add_u32(t3, t2, 7, t3); A.v_mad_u32_u24(t3, t1, A_const(A, s(27), 3840), t3)
        A.s_and_b32(s(26), b, 7); A.s_mul_i32(s(26), s(26), 160); A.s_andn2_b32(s(26), s(26), 127)
        A.buffer_load_dword(v(254), t3, PHI, s(26), mods='offen' + nt(4))
    A.s_cmp_ge_u32(b, B_END); A.s_cbranch_scc1('PP_fillonly')
    A.s_cmp_ge_u32(b, B_W24); A.s_cbranch_scc1('PP_w24')
    A.s_cmp_ge_u32(b, B_X); A.s_cbranch_scc1('PP_x')
    A.s_cmp_ge_u32(b, B_W3); A.s_cbranch_scc1('PP_w3')
    acc = [v(32 + 16 * k, 16) for k in range(10)]
    AF = [v(192 + 4 * k, 4) for k in range(6)]
    T = [v(216 + 4 * k, 4) for k in range(6)]
    vA = [v(13 + k) for k in range(5)]
    def center_store(nct, voff, vstr, SC=SC):
        neg = []
        for ct in range(nct):
            sm = v(240 + 2 * ct, 2)
            base = 32 + 80 * ct
            s2 = v(244, 2)
            A.v_pk_add_f32(sm, v(base, 2), v(base + 2, 2)); A.v_pk_add_f32(s2, v(base + 4, 2), v(base + 6, 2))
            for k in range(4, 40, 2): A.v_pk_add_f32(sm, sm, v(base + 2 * k, 2)); A.v_pk_add_f32(s2, s2, v(base + 2 * k + 2, 2))
            A.v_pk_add_f32(sm, sm, s2)
            A.v_add_f32(sm[0], sm[0], sm[1]); A.v_mov_b32(sm[1], sm[0])
            A.v_permlane32_swap_b32(sm[0], sm[1]); A.v_add_f32(sm[0], sm[0], sm[1])
        A.s_lshl_b32(s(26), w, 7); A.s_add_u32(s(26), s(26), 65536); A.v_lshl_add_u32(t2, m, 2, s(26))
        for ct in range(nct): A.ds_write_b32(t2, v(240 + 2 * ct), mods=f'offset:{512*ct}')
        A.wait_lg(); A.s_barrier()
        pstamp(2)
        A.v_lshlrev_b32(t2, 2, m); A.v_add_u32(t2, 65536, t2)
        for ct in range(nct):
            for k in range(4): A.ds_read_b32(v(244 + 4 * ct + k), t2, mods=f'offset:{512*ct + k*128}')
        A.wait_lg()
        for ct in range(nct):
            sm = v(240 + 2 * ct, 2); q = v(244 + 4 * ct, 4)
            A.v_add_f32(t0, q[0], q[1]); A.v_add_f32(t1, q[2], q[3]); A.v_add_f32(t0, t0, t1)
            A.v_mul_f32(sm[0], 0xbacccccd, t0); A.v_mov_b32(sm[1], sm[0])
        n = 0
        for ct in reversed(range(nct)):
            sm = v(240 + 2 * ct, 2)
            for bb in range(5):
                for hh in range(2):
                    o = AF[n % 6]; n += 1
                    ac = acc[ct * 5 + bb]
                    for k in range(4):
                        pr = ac[8 * hh + 2 * k: 8 * hh + 2 * k + 2]
                        A.v_pk_add_f32(pr, pr, sm)
                    for k in range(4): A.v_cvt_pk_bf16_f32(o[k], ac[8 * hh + 2 * k], ac[8 * hh + 2 * k + 1])
                    if ct == 1: A.ds_write_b128(vstr[1], o, mods=f'offset:{(2*bb + hh)*256}')
                    else:
                        A.buffer_store_dwordx4(o, voff[ct], WS, 0, mods='offen' + SC)
                        A.v_add_u32(voff[ct], vstr[ct], voff[ct])
            if ct == 1:
                A.wait_lg()
                C = [acc[5][0:4], acc[5][4:8], acc[5][8:12]]
                tg_ = [A.ds_read_b128(C[k], v(26), mods=f'offset:{k*1024}') for k in range(3)]
                A.s_lshl_b32(s(28), 4, s(29))
                for k in range(3):
                    if k == 2:
                        A.v_cmp_gt_u32('vcc', 32, lane); A.v_mov_b32(t2, OOB); A.v_cndmask_b32(voff[1], t2, voff[1], 'vcc')
                    A.wait_lg(tg_[k])
                    A.buffer_store_dwordx4(C[k], voff[1], WS, s(30), mods='offen' + SC)
                    A.s_add_u32(s(30), s(30), s(28))
    A.cmt('role W1'); head()
    srd(A, SRC, PQKV, D * 3 * D * 2); srd(A, PHI, PPHI, H * DH * DH * 2)
    ssec = st
    A.s_and_b32(sj, b, 7); A.s_lshl_b32(sj, sj, 1); A.s_bfe_u32(s(26), b, (1 << 16) | 3); A.s_add_u32(sj, sj, s(26)); A.s_lshr_b32(ssec, b, 4)
    A.s_add_u32(s(26), ssec, 1); A.s_mul_i32(s(26), s(26), 1280); A.s_cmp_eq_u32(ssec, 2); A.s_cselect_b32(s(26), 0, s(26))
    A.s_mul_i32(s(27), sj, 80); A.s_add_u32(so, s(26), s(27)); A.s_mul_i32(s(27), w, 160 * 3840); A.s_add_u32(so, so, s(27))
    A.s_mul_i32(s(27), sj, 1600)
    A.v_mov_b32(t3, OOB)
    A.s_mov_b32('m0', PHI_LDS)
    A.v_cmp_gt_u32('vcc', 50, lane); A.v_cndmask_b32(t0, t3, l16, 'vcc')
    A.buffer_load_dwordx4(t0, PHI, s(27), mods='offen lds')
    A.s_mov_b32('m0', PHI_LDS + 1024)
    A.v_subrev_u32(t1, 96, l16); A.v_cmp_lt_u32('vcc', 55, lane); A.v_cndmask_b32(t0, t3, t1, 'vcc')
    A.buffer_load_dwordx4(t0, PHI, s(27), mods='offen lds')
    A.s_mov_b32('m0', PHI_LDS + 2048)
    A.v_add_u32(t1, 58 * 16, l16); A.v_cmp_gt_u32('vcc', 42, lane); A.v_cndmask_b32(t0, t3, t1, 'vcc')
    A.buffer_load_dwordx4(t0, PHI, s(27), mods='offen lds')
    lastP = A.vm[-1]
    dtag = {}
    A.s_mul_i32(sm0, w, 13312)
    for n in range(13):
        if n < 5:
            A.v_add_u32(t0, 64 * n, lane); A.v_mul_u32_u24(t1, 205, t0); A.v_lshrrev_b32(t1, 10, t1)
            A.v_mul_u32_u24(t2, 5, t1); A.v_sub_u32(t2, t0, t2); A.v_mul_u32_u24(t1, 3840, t1); A.v_lshl_add_u32(vA[n], t2, 4, t1)
        A.s_mov_b32('m0', sm0)
        dtag[n] = A.buffer_load_dwordx4(vA[n % 5], SRC, so, mods='offen' + nt(0) + ' lds')
        A.s_add_u32(sm0, sm0, 1024)
        if n % 5 == 4: A.s_add_u32(so, so, 64 * 3840)
    fill()
    dl0 = v(18); fv = [v(19), v(20)]
    A.v_mul_u32_u24(t0, 20, h); A.v_lshlrev_b32(dl0, 3, hf); A.v_sub_u32(dl0, dl0, t0)
    A.v_lshl_add_u32(fv[0], g, 2, r); A.v_add_u32(fv[1], 16, fv[0])
    A.s_cmp_eq_u32(ssec, 1); A.s_cbranch_scc1('PP_w1_v')
    vm_save = list(A.vm)
    A.wait_vm(lastP)
    US = [v(32 + k) for k in range(48)]
    B0 = v(21)
    A.v_mul_u32_u24(B0, 1920, h); A.v_lshl_add_u32(B0, fv[0], 1, B0)
    A.v_mul_i32_i24(t0, 40, dl0); A.v_add3_u32(B0, B0, t0, A_const(A, s(26), PHI_LDS))
    for ct in range(2):
        for c in list(range(0, 8)) + list(range(16, 24)) + list(range(32, 40)):
            k = (c >> 4) * 8 + (c & 7)
            A.ds_read_u16(US[24 * ct + k], B0, mods=f'offset:{c*40 + 32*ct}')
            if len(A.lg) > 14: A.wait_lg(A.lg[-8])
    A.wait_lg()
    for k in range(24): A.v_lshl_or_b32(T[k >> 2][k & 3], US[2 * k + 1], 16, US[2 * k])
    A.s_branch('PP_w1_go')
    A.label('PP_w1_v')
    A.vm = vm_save
    for ct in range(2):
        A.v_cmp_gt_u32('vcc', 20, fv[ct]); A.v_sub_u32(t0, fv[ct], dl0); A.v_mov_b32(t1, -1000 & 0xffffffff); A.v_cndmask_b32(v(21), t1, t0, 'vcc')
        for u in range(3):
            if u: A.v_subrev_u32(v(21), 16, v(21))
            sel_frag(A, T[3 * ct + u], v(21), t0, t1)
    A.wait_vm(lastP)
    A.label('PP_w1_go')
    stamp()
    A.s_mul_i32(s(26), w, 13312); A.v_mul_u32_u24(t0, 80, pm); A.v_lshl_add_u32(t0, hf, 4, t0); A.v_add_u32(v(21), s(26), t0)
    tg = {}
    def rdA(i):
        bb, u = divmod(i, 3); tg[i] = A.ds_read_b128(AF[i % 6], v(21), mods=f'offset:{bb*2560 + u*32}')
    def rdB(bb):
        A.wait_vm(dtag[(160 * (bb + 1)) >> 6])
        for u in range(3): rdA(3 * bb + u)
    rdB(0)
    for bb in range(5):
        if bb < 4: rdB(bb + 1)
        for u in range(3):
            i = 3 * bb + u
            A.wait_lg(tg[i])
            for ct in range(2): A.v_mfma_f32_32x32x16_bf16(acc[ct * 5 + bb], AF[i % 6], T[3 * ct + u], acc[ct * 5 + bb] if u else 0)
    voff = [v(22), v(23)]; vstr = [v(24), v(25)]
    A.s_mul_i32(s(26), ssec, 5); A.s_mul_i32(s(27), sj, W1_J); A.s_add_u32(s(27), s(27), W1_OFF); A.s_mul_i32(s(28), w, 10)
    A.v_add_u32(t0, s(26), g)
    A.v_lshrrev_b32(t1, 2, t0); A.v_and_b32(t0, 3, t0)
    A.v_cmp_gt_u32('vcc', 2, t1); A.v_mov_b32(t2, 2048); A.v_mov_b32(t3, 1024); A.v_cndmask_b32(vstr[0], t3, t2, 'vcc')
    A.v_mul_u32_u24(t2, 40, t1); A.v_cndmask_b32(t1, t2, t1, 'vcc'); A.v_lshlrev_b32(t1, 10, t1)
    A.v_mad_u32_u24(t1, vstr[0], s(28), t1)
    A.v_and_b32(t2, 7, m); A.v_lshl_add_u32(t2, t0, 3, t2); A.v_lshl_add_u32(t2, hf, 5, t2)
    A.v_lshl_add_u32(t1, t2, 4, t1); A.v_add_u32(voff[0], s(27), t1)
    A.s_add_u32(s(29), ssec, 1); A.s_mul_i32(s(30), s(29), 40); A.s_cmp_eq_u32(ssec, 0); A.s_cselect_b32(s(30), 1, s(30)); A.s_cselect_b32(s(29), 11, 10)
    A.s_lshl_b32(s(30), s(30), 10); A.s_add_u32(s(30), s(30), s(27)); A.s_lshl_b32(s(28), s(28), s(29)); A.s_add_u32(s(30), s(30), s(28))
    A.s_lshl_b32(s(28), ssec, 7); A.s_add_u32(s(30), s(30), s(28))
    A.v_lshrrev_b32(t0, 4, lane); A.v_lshlrev_b32(t0, s(29), t0); A.v_and_b32(t1, 7, lane); A.v_lshl_add_u32(t0, t1, 4, t0)
    A.v_bfe_u32(t1, lane, 3, 1); A.v_lshl_add_u32(voff[1], t1, 9, t0)
    A.s_mul_i32(s(26), w, 13312)
    A.v_and_b32(t0, 7, m); A.v_lshl_add_u32(t0, hf, 3, t0); A.v_lshl_add_u32(t0, t0, 4, s(26))
    A.v_add_u32(t1, s(26), l16); A.v_add_u32(t2, 4096, t1); A.v_cmp_eq_u32('vcc', 0, g); A.v_cndmask_b32(vstr[1], t2, t0, 'vcc')
    A.v_mov_b32(v(26), t1)
    center_store(2, voff, vstr)
    end()
    A.label('PP_w3'); A.cmt('role W3'); head()
    helper(0, B_W3)
    A.s_sub_u32(s(26), b, B_W3); A.s_lshr_b32(s(27), s(26), 4); A.s_lshl_b32(s(27), s(27), 3); A.s_and_b32(s(28), s(26), 7); A.s_add_u32(s(27), s(27), s(28))
    A.s_cmp_ge_u32(s(27), 24); A.s_cselect_b32(SRC[0], PWU[0], PWG[0]); A.s_cselect_b32(SRC[1], PWU[1], PWG[1]); A.s_cselect_b32(s(28), 1, 0); A.s_cselect_b32(s(29), 24, 0)
    A.s_mov_b32(SRC[2], D * F * 2); A.s_mov_b32(SRC[3], 0x20000)
    A.s_sub_u32(s(27), s(27), s(29)); A.s_lshl_b32(s(27), s(27), 1); A.s_bfe_u32(s(26), s(26), (1 << 16) | 3); A.s_add_u32(s(27), s(27), s(26))
    A.s_mul_i32(sj, s(27), 43); A.s_lshr_b32(sj, sj, 7); A.s_mul_i32(s(26), sj, 3); A.s_sub_u32(st, s(27), s(26))
    A.s_lshl_b32(so, s(27), 6); A.s_mul_i32(s(26), w, 160 * 3072); A.s_add_u32(so, so, s(26))
    A.v_lshrrev_b32(t0, 2, lane); A.v_mul_u32_u24(t0, 3072, t0); A.v_lshrrev_b32(t1, 4, lane); A.v_xor_b32(t1, t1, lane); A.v_and_b32(t1, 3, t1)
    A.v_lshl_add_u32(vA[0], t1, 4, t0)
    A.s_mul_i32(sm0, w, 10240)
    tags = []
    for n in range(10):
        A.s_mov_b32('m0', sm0)
        tags.append(A.buffer_load_dwordx4(vA[0], SRC, so, mods='offen' + nt(1) + ' lds'))
        A.s_add_u32(sm0, sm0, 1024); A.s_add_u32(so, so, 16 * 3072)
    fill()
    A.v_lshlrev_b32(t2, 3, hf); A.v_sub_u32(v(18), pm, t2)
    for u in range(2):
        if u: A.v_subrev_u32(v(18), 16, v(18))
        sel_frag(A, T[u], v(18), t0, t1)
    A.s_mul_i32(s(26), w, 10240)
    A.v_bfe_u32(t0, pm, 2, 2); A.v_xor_b32(t0, t0, hf); A.v_lshlrev_b32(t0, 4, t0); A.v_lshl_add_u32(t0, pm, 6, t0); A.v_add_u32(v(19), s(26), t0)
    A.v_xor_b32(v(20), 32, v(19))
    for bb in range(5):
        A.wait_vm(tags[2 * bb + 1])
        if bb == 0: stamp()
        tg = [A.ds_read_b128(AF[(2 * bb + u) % 6], v(19 + u), mods=f'offset:{bb*2048}') for u in range(2)]
        for u in range(2):
            A.wait_lg(tg[u]); A.v_mfma_f32_32x32x16_bf16(acc[bb], AF[(2 * bb + u) % 6], T[u], acc[bb] if u else 0)
    A.s_mul_i32(sb, st, 80); A.s_add_u32(sb, sb, s(28)); A.s_mul_i32(s(26), w, 20); A.s_add_u32(sb, sb, s(26)); A.s_lshl_b32(sb, sb, 10)
    A.s_mul_i32(s(26), sj, W3_J); A.s_add_u32(sb, sb, s(26)); A.s_add_u32(sb, sb, W3_OFF)
    A.v_add_u32(v(22), sb, l16)
    center_store(1, [v(22)], [2048], SC2)
    end()
    A.label('PP_w24'); A.cmt('role W2/W4'); head()
    helper(12, B_W24)
    su = s(21)
    rowi = [v(32 + k) for k in range(5)]; chk = [v(37 + k) for k in range(5)]
    for n in range(5):
        A.v_add_u32(t0, 64 * n, lane); A.v_mul_u32_u24(t1, 205, t0); A.v_lshrrev_b32(rowi[n], 11, t1)
        A.v_mul_u32_u24(t2, 10, rowi[n]); A.v_sub_u32(t2, t0, t2); A.v_lshlrev_b32(chk[n], 4, t2)
    A.s_sub_u32(su, b, B_W24); A.s_mul_i32(su, su, 12); A.s_add_u32(su, su, w)
    A.s_mul_i32(sm0, w, 15360)
    dst = [s(33), s(34), s(35)]
    last = []
    SR2 = s(36, 4)
    for it in range(3):
        L2, LG = A.newlabel('PP_w2'), A.newlabel('PP_go')
        A.s_cmp_ge_u32(su, 384); A.s_cbranch_scc1(L2)
        srd(A, SR2, PWD, F * D * 2)
        A.s_lshr_b32(s(26), su, 3); A.s_and_b32(s(27), su, 7)
        A.s_mul_i32(dst[it], s(27), 48); A.s_add_u32(dst[it], dst[it], s(26)); A.s_mul_i32(dst[it], dst[it], 5120); A.s_add_u32(dst[it], dst[it], W4_OFF)
        A.s_lshl_b32(s(26), s(26), 5)
        for n in range(5): A.v_add_u32(vA[n], s(26), rowi[n])
        A.s_branch(LG)
        A.label(L2)
        srd(A, SR2, PWO, D * D * 2)
        A.s_sub_u32(s(28), su, 384); A.s_lshr_b32(s(26), s(28), 3); A.s_and_b32(s(27), s(28), 7)
        A.s_mul_i32(dst[it], s(27), 20); A.s_add_u32(dst[it], dst[it], s(26)); A.s_mul_i32(dst[it], dst[it], 5120); A.s_add_u32(dst[it], dst[it], W2_OFF)
        A.s_cmp_ge_u32(su, 544); A.s_cselect_b32(dst[it], OOB, dst[it])
        A.s_lshl_b32(s(26), s(26), 5)
        for n in range(5):
            kp = vA[n]
            A.v_add_u32(kp, s(26), rowi[n])
            A.v_mul_u32_u24(t0, 1639, kp); A.v_lshrrev_b32(t0, 16, t0); A.v_mul_u32_u24(t0, 40, t0)
            A.v_sub_u32(t1, kp, t0)
            A.v_lshrrev_b32(t2, 4, t1); A.v_mul_u32_u24(t2, 20, t2); A.v_and_b32(t3, 15, t1); A.v_add_u32(t2, t2, t3)
            A.v_bfe_u32(t3, t1, 2, 1); A.v_mul_u32_u24(t3, 20, t3); A.v_and_b32(kp, 3, t1); A.v_add3_u32(t3, t3, kp, 16)
            A.v_cmp_gt_u32('vcc', 32, t1); A.v_cndmask_b32(t2, t3, t2, 'vcc')
            A.v_add_u32(kp, t0, t2)
        A.label(LG)
        A.s_mul_i32(so, s(27), 160)
        for n in range(5):
            A.v_mad_u32_u24(vA[n], vA[n], A_const(A, s(29), 1280), chk[n])
            A.s_mov_b32('m0', sm0)
            tgl = A.buffer_load_dwordx4(vA[n], SR2, so, mods='offen' + nt(2) + ' lds')
            A.s_add_u32(sm0, sm0, 1024)
        last.append(tgl)
        A.s_add_u32(su, su, 4)
    fill()
    row, qp, Q = v(14), v(15), v(16)
    A.v_bfe_u32(qp, lane, 2, 2); A.v_lshrrev_b32(Q, 4, lane)
    A.v_lshl_add_u32(row, qp, 3, r)
    SE = [T[0], T[1], T[2]]
    A.v_lshlrev_b32(t2, 3, Q)
    A.v_sub_u32(v(19), row, t2); sel_frag(A, SE[0], v(19), t0, t1)
    A.v_add_u32(v(19), 4, v(19)); sel_frag(A, SE[1], v(19), t0, t1)
    A.v_and_b32(v(19), 15, lane); A.v_sub_u32(v(19), v(19), t2); sel_frag(A, SE[2], v(19), t0, t1)
    A.s_mul_i32(s(26), w, 15360)
    A.v_mul_u32_u24(t0, 160, row); A.v_add_u32(t0, s(26), t0)
    A.v_lshl_add_u32(v(19), Q, 4, t0)
    A.v_and_b32(t1, 1, Q); A.v_lshl_add_u32(v(20), t1, 4, t0)
    for it in range(3):
        A.wait_vm(last[it])
        if it == 0: stamp()
        tg = {}
        for cg in range(3):
            for aa in range(2):
                tg[cg, aa] = A.ds_read_b128(AF[cg * 2 + aa], v(19) if cg < 2 else v(20), mods=f'offset:{it*5120 + aa*640 + cg*64}')
        for ft in range(5):
            cg = ft >> 1
            A.wait_lg(tg[cg, 1])
            for aa in range(2):
                A.v_mfma_f32_16x16x32_bf16(v(48 + ft * 8 + aa * 4, 4), AF[cg * 2 + aa], SE[ft & 1 if ft < 4 else 2], 0)
        for ft in range(5):
            o = v(96 + 20 * it + 4 * ft, 4)
            for k in range(4): A.v_cvt_pk_bf16_f32(o[k], v(48 + ft * 8 + 2 * k), v(48 + ft * 8 + 2 * k + 1))
            if ft == 4: A.s_add_u32(dst[it], dst[it], 4096)
            A.buffer_store_dwordx4(o, l16, WS, dst[it], mods=f'offen offset:{(ft & 3) * 1024}' + SC2)
    end()
    A.label('PP_x'); A.cmt('role X'); head()
    srd(A, SRC, PX, X_SZ)
    A.s_sub_u32(su, b, B_X)
    tk, cp = v(14), v(15)
    A.v_lshrrev_b32(tk, 3, lane); A.s_lshl_b32(s(26), w, 3); A.v_add_u32(tk, s(26), tk)
    A.v_and_b32(cp, 7, lane)
    A.v_mul_u32_u24(t0, 1280, tk); A.v_lshl_add_u32(vA[0], cp, 4, t0)
    A.s_mul_i32(so, su, 40960)
    XF = [v(32 + 4 * k, 4) for k in range(10)]
    tags = [A.buffer_load_dwordx4(XF[k], vA[0], SRC, so, mods=f'offen offset:{k*128}' + nt(3)) for k in range(10)]
    fill()
    A.v_lshrrev_b32(t0, 1, cp); A.v_lshlrev_b32(t0, 10, t0); A.v_and_b32(t1, 1, cp); A.v_lshl_add_u32(t1, t1, 5, tk); A.v_lshl_add_u32(v(16), t1, 4, t0)
    A.s_add_u32(so, so, XA_OFF)
    A.v_lshrrev_b32(t0, 4, tk); A.v_lshlrev_b32(t0, 10, t0); A.v_lshl_add_u32(t0, cp, 7, t0); A.v_and_b32(t1, 15, tk); A.v_lshl_add_u32(v(17), t1, 3, t0)
    A.s_lshl_b32(s(26), su, 11); A.s_add_u32(s(26), s(26), STA_OFF)
    A.v_mov_b32(v(18), 0x3f803f80)
    S_, Q_ = v(20), v(21)
    A.v_mov_b32(S_, 0); A.v_mov_b32(Q_, 0)
    for k in range(10):
        A.wait_vm(tags[k])
        if k == 0: stamp()
        A.buffer_store_dwordx4(XF[k], v(16), WS, so, mods='offen' + SC)
        A.s_add_u32(so, so, 4096)
        for n in range(4):
            A.v_dot2_f32_bf16(S_, XF[k][n], v(18), S_); A.v_dot2_f32_bf16(Q_, XF[k][n], XF[k][n], Q_)
    A.s_nop(2)
    A.buffer_store_dwordx2(v(20, 2), v(17), WS, s(26), mods='offen' + SC)
    end()
    A.label('PP_fillonly'); head()
    fill()
    end()
def A_const(A, sreg, val):
    A.s_mov_b32(sreg, val); return sreg
```

```python
import sys
from asmlib import *
from layout import *
import prepass, main
NAME = 'interleave_layers__linear_kernel_hedgehog__glu_gated_reglu__prompt'
def build(path, cfg=main.Cfg, extra_empty=0):
    M, nn, ns, ev = main.gen_iter(cfg)
    st = ev['stamps']; print('  model:', ' '.join(str(b - a) for a, b in zip(st, st[1:])), 'total', ev['end'])
    if getattr(cfg, 'occ', 0):
        import collections, re
        names = ['prep', 'pfpub', 'pfseen'] + 2 * ['B2', 'kvpub', 'smq', 'B3', 'Ost', 'Osync', 'P2g', 'st', 'sync', 'P3g', 'epi', 'P4g', 'st', 'sync']
        for k, (a_, b_) in enumerate(zip(st, st[1:])):
            if k < 3: continue
            its = [x for x in ev['trace'] if x[3] and a_ <= x[0] < b_]
            occ = sum(max(0, min(x[1], b_) - max(x[0], a_)) for x in ev['trace'] if x[3]) / max(b_ - a_, 1)
            c = collections.Counter(re.sub(r'[_0-9]+$', '', re.sub(r'^(W\d)_.*', r'\1', x[2])) for x in its)
            print(f'   {names[k]:6s} len {b_-a_:6d} items {len(its):3d} clk/item {(b_-a_)/max(len(its),1):6.0f} occ {occ:4.1f}  {dict(c)}')
    if getattr(cfg, 'trace', 0):
        last = None; t0 = None; prevdone = 0
        for t, d, n, _b in ev['trace'] + [(0, 0, None, 0)]:
            if n != last:
                if last is not None: print(f'    {last:14s} x{cnt:<3d} issue {t0}..{t1}  done {d1}  gap_before {gap}')
                last, t0, cnt, gap = n, t, 0, max(0, t - prevdone)
            cnt += 1; t1 = t; d1 = d; prevdone = d
        import itertools
        print('   stamps abs', st)
    hdr = open('cdna_kernels/' + NAME + '.s.ref').read().split('; Override')[0]
    hdr += f'; @launch grid=(256,1,1) block=(256,1,1) lds={main.MAIN_LDS}\n'
    txt = hdr + '.amdgcn_target "amdgcn-amd-amdhsa--gfx950"\n' + kernel_text(NAME + '_kernel', M, 512, 256)
    desc = descriptor(NAME + '_kernel', 512, 256)
    if extra_empty:
        E = Asm(); E.s_endpgm(); txt += kernel_text('empty_kernel', E, 8, 8); desc += descriptor('empty_kernel', 8, 8)
    open(path, 'w').write(txt + desc)
    print(path, 'main:', dict(M.count()), 'nops inserted', nn, 'stamps', ns)
if __name__ == '__main__':
    class C(main.Cfg): pass
    extra = 0
    for kv in sys.argv[2:]:
        k, x = kv.split('=')
        if k == 'empty': extra = int(x)
        else: setattr(C, k, int(x) if x.lstrip('-').isdigit() else x)
    build(sys.argv[1], C, extra)
```
